```python
import torch

def _softmax(x, axis=-1):
    return torch.softmax(x, dim=axis)
def _gelu(x):
    return torch.nn.functional.gelu(x, approximate="tanh")
def _silu(x):
    return torch.nn.functional.silu(x)
def _sigmoid(x):
    return torch.sigmoid(x)
def _layernorm(x, axis=-1, eps=1e-5):
    m = x.mean(dim=axis, keepdim=True)
    v = x.var(dim=axis, keepdim=True, unbiased=False)
    return (x - m) / torch.sqrt(v + eps)
def _scatter_add(tgt, idx, src, axis=0):
    return tgt.clone().index_add_(axis, idx, src)
def _segment_sum(src, seg, n):
    out = torch.zeros((n,) + src.shape[1:], dtype=src.dtype)
    return out.index_add_(0, seg, src)
def _pad(x, pw):
    flat = tuple(v for pair in reversed(pw) for v in pair)
    return torch.nn.functional.pad(x, flat)

kernel_name = 'parallel_sum__compressed_kv_cla__mixer_channel_mlp__prompt'

def setup_inputs():

    _w = (lambda a: (lambda t: t.to(torch.bfloat16) if t.is_floating_point() else t)(torch.as_tensor(a)))
    def _A_setup():
        B, H, Sq, Sk, D, M = 1, 32, 2048, 2048, 128, 512
        Dc = 4 * D
        return {
            "x": _w((lambda *s: torch.randn(*s, dtype=torch.bfloat16) * 0.05)(B, Sq, M)),
            "c_kv": _w((lambda *s: torch.randn(*s, dtype=torch.bfloat16) * 0.4)(B, Sk, Dc)),
            "w_q": _w((lambda *s: torch.randn(*s, dtype=torch.bfloat16) * 3.2)(M, H, D) * (M ** -0.5)),
            "w_uk": _w((lambda *s: torch.randn(*s, dtype=torch.bfloat16) * 3.2)(Dc, H, D) * (Dc ** -0.5)),
            "w_uv": _w((lambda *s: torch.randn(*s, dtype=torch.bfloat16) * 0.4)(Dc, H, D) * (Dc ** -0.5)),
            "w_o": _w((lambda *s: torch.randn(*s, dtype=torch.bfloat16) * 0.4)(H, D, M) * ((H * D) ** -0.5)),
        }
    _A_in = _A_setup()

    def _B_setup():
        B, S, D, F = 1, 2048, 512, 1376
        return {
            "x": _w((lambda *s: torch.randn(*s, dtype=torch.bfloat16) * 0.05)(B, S, D)),
            "w1": _w((lambda *s: torch.randn(*s, dtype=torch.bfloat16) * 0.8)(D, F) * (D ** -0.5)),
            "b1": _w((lambda *s: torch.randn(*s, dtype=torch.bfloat16) * 0.4)(F)),
            "w2": _w((lambda *s: torch.randn(*s, dtype=torch.bfloat16) * 0.05)(F, D) * (F ** -0.5)),
            "b2": _w((lambda *s: torch.randn(*s, dtype=torch.bfloat16) * 0.05)(D)),
        }
    _B_in = _B_setup()

    return {
        "A_x": _A_in["x"],
        "A_c_kv": _A_in["c_kv"],
        "A_w_q": _A_in["w_q"],
        "A_w_uk": _A_in["w_uk"],
        "A_w_uv": _A_in["w_uv"],
        "A_w_o": _A_in["w_o"],
        "B_x": _B_in["x"],
        "B_w1": _B_in["w1"],
        "B_b1": _B_in["b1"],
        "B_w2": _B_in["w2"],
        "B_b2": _B_in["b2"],
    }

def reference(A_x, A_c_kv, A_w_q, A_w_uk, A_w_uv, A_w_o, B_x, B_w1, B_b1, B_w2, B_b2):
    def _A_ref(x, c_kv, w_q, w_uk, w_uv, w_o):
        B, Sq, M = x.shape[0], x.shape[1], x.shape[2]
        Sk = c_kv.shape[1]
        H, D = w_q.shape[1], w_q.shape[2]
        q = torch.einsum("bqm,mhd->bhqd", x, w_q)
        k = torch.einsum("bkc,chd->bhkd", c_kv, w_uk)
        v = torch.einsum("bkc,chd->bhkd", c_kv, w_uv)
        scores = torch.einsum("bhqd,bhkd->bhqk", q, k) * (D ** -0.5)
        off = Sk - Sq
        qi = torch.arange(Sq)[:, None]
        kj = torch.arange(Sk)[None, :]
        cmask = kj <= (qi + off)
        scores = torch.where(cmask[None, None], scores, -1e9)
        p = _softmax(scores, axis=-1)
        ctx = torch.einsum("bhqk,bhkd->bhqd", p, v)
        return torch.einsum("bhqd,hdm->bqm", ctx, w_o)

    def _B_ref(x, w1, b1, w2, b2):
        y = _layernorm(x, axis=-1)
        h = _gelu(torch.einsum("bsd,df->bsf", y, w1) + b1)
        return torch.einsum("bsf,fd->bsd", h, w2) + b2

    x = A_x
    xn = _layernorm(x, axis=-1)
    return x + _A_ref(xn, A_c_kv, A_w_q, A_w_uk, A_w_uv, A_w_o) + _B_ref(xn, B_w1, B_b1, B_w2, B_b2)
```

```python
import re

class Asm:
    def __init__(self):
        self.lines = []
    def __call__(self, s):
        for l in s.split("\n"):
            l = l.strip()
            if l:
                self.lines.append("    " + l)
    def label(self, l):
        self.lines.append(l + ":")
    def raw(self, s):
        self.lines.append(s)
    def comment(self, s):
        self.lines.append("    ; " + s)
    def text(self):
        return "\n".join(self.lines) + "\n"

def vr(b, n=4):
    return f"v[{b}:{b+n-1}]" if n > 1 else f"v{b}"
def sr(b, n=4):
    return f"s[{b}:{b+n-1}]" if n > 1 else f"s{b}"

def mfma(d, a, b, c=None):
    cs = vr(d) if c is None else (c if isinstance(c, str) else vr(c))
    return f"v_mfma_f32_16x16x32_bf16 {vr(d)}, {vr(a)}, {vr(b)}, {cs}"

class Sched:
    def __init__(self, lookahead=10, per_slot=1):
        self.slots = []
        self.ops = []
        self.fill = {}
        self.pre = {}
        self.LA = lookahead
        self.per_slot = per_slot
    def add_slot(self, text, needs=()):
        self.slots.append((text, list(needs)))
        return len(self.slots) - 1
    def add_load(self, fid, instrs, regs):
        self.ops.append(dict(kind='ld', id=fid, instrs=list(instrs), regs=regs))
    def add_sync(self, text, drain=True, delay=0):
        self.ops.append(dict(kind='sync', text=text, drain=drain, delay=delay))
    def add_fill(self, slot, text):
        self.fill.setdefault(slot, []).append(text)
    def add_pre(self, slot, text):
        self.pre.setdefault(slot, []).append(text)
    def build(self, cuts=()):
        first_use, last_use = {}, {}
        for i, (_, needs) in enumerate(self.slots):
            for f in needs:
                first_use.setdefault(f, i)
                last_use[f] = i
        occ = {}
        nslots = len(self.slots)
        for op in self.ops:
            if op['kind'] == 'ld':
                prev = occ.get(op['regs'])
                op['earliest'] = 0 if prev is None else last_use.get(prev, -1) + 1
                occ[op['regs']] = op['id']
                op['need'] = first_use.get(op['id'], nslots + 10**6)
        nxt = nslots + 10**6
        for op in reversed(self.ops):
            if op['kind'] == 'ld':
                nxt = op['need']
            else:
                op['need'] = nxt
                op['earliest'] = 0
                if 'force_at' in op: op['need'] = op['force_at'] + self.LA
        segs = [[]]
        out = []
        qi = 0
        sub = 0
        last_issue_pos = [-10**6]
        def emit(t):
            segs[-1].append(t)
        def issue_one(pos):
            nonlocal qi, sub
            op = self.ops[qi]
            if op['kind'] == 'sync':
                if op['drain'] and out:
                    emit("s_waitcnt lgkmcnt(0)")
                    out.clear()
                emit(op['text'])
                qi += 1; sub = 0
                return
            emit(op['instrs'][sub]); out.append(op['id'])
            last_issue_pos[0] = pos
            sub += 1
            if sub == len(op['instrs']):
                qi += 1; sub = 0
        def can_issue(pos):
            if qi >= len(self.ops): return False
            op = self.ops[qi]
            if op['earliest'] > pos: return False
            if op['need'] - self.LA > pos: return False
            if op['kind'] == 'sync' and pos < last_issue_pos[0] + op['delay']: return False
            return True
        while can_issue(0):
            issue_one(0)
        for i, (text, needs) in enumerate(self.slots):
            if i in cuts:
                segs.append([])
            while qi < len(self.ops) and self.ops[qi]['need'] <= i:
                assert self.ops[qi]['earliest'] <= i, "ring too small"
                issue_one(i)
            for t in self.pre.get(i, []):
                emit(t)
            idx = max([k for k, tag in enumerate(out) if tag in needs], default=-1)
            if idx >= 0:
                n = len(out) - 1 - idx
                emit(f"s_waitcnt lgkmcnt({min(n, 15)})")
                if n > 15: n = 15
                del out[:len(out) - n]
            emit(text)
            k = 0
            while k < self.per_slot and can_issue(i + 1):
                issue_one(i + 1); k += 1
            for t in self.fill.get(i, []):
                emit(t)
        while qi < len(self.ops):
            issue_one(nslots)
        return segs

_reg = re.compile(r"\b([vs])(\d+)\b|\b([vs])\[(\d+):(\d+)\]|\b(vcc|m0|exec)\b")
def _regs(tok):
    out = []
    for m in _reg.finditer(tok):
        if m.group(1): out.append((m.group(1), int(m.group(2))))
        elif m.group(3): out += [(m.group(3), r) for r in range(int(m.group(4)), int(m.group(5)) + 1)]
        else: out.append((m.group(6), 0))
    return out
TRANS = ("v_exp_", "v_log_", "v_rcp_", "v_rsq_", "v_sqrt_", "v_sin_", "v_cos_")
def lint(text):
    probs = []
    hist = []
    pos = 0
    for ln, line in enumerate(text.split("\n"), 1):
        s = line.split(";")[0].strip()
        if not s or s.startswith(".") : continue
        if s.endswith(":"):
            continue
        parts = s.split(None, 1)
        op = parts[0]; args = parts[1] if len(parts) > 1 else ""
        ops_ = [a.strip() for a in args.split(",")]
        if op == "s_nop":
            pos += int(args, 0) + 1; continue
        if op in ("s_endpgm", "s_branch", "s_setpc_b64"):
            hist = []; pos += 1; continue
        w, r = [], []
        kind = 's'
        if op.startswith("v_mfma"):
            kind = 'mfma'; w = _regs(ops_[0]); r = _regs(",".join(ops_[1:]))
            rab = _regs(ops_[1]) + _regs(ops_[2]); rc = _regs(ops_[3])
        elif op.startswith("v_cmp"):
            kind = 'valu'; w = _regs(ops_[0]); r = _regs(",".join(ops_[1:]))
        elif op.startswith("v_permlane"):
            kind = 'perm'; w = _regs(args); r = _regs(args)
        elif op.startswith("v_readlane") or op.startswith("v_readfirstlane"):
            kind = 'rdl'; w = _regs(ops_[0]); r = _regs(",".join(ops_[1:]))
        elif op.startswith("v_"):
            kind = 'trans' if op.startswith(TRANS) else 'valu'
            w = _regs(ops_[0]); r = _regs(",".join(ops_[1:]))
            if op.startswith("v_fmac") : r += w
            if op.startswith("v_cndmask") and len(ops_) == 3: r.append(('vcc', 0))
            if "_co_" in op: w += _regs(ops_[1])
            if "dpp" in op: kind = 'dpp'
        elif op.startswith("ds_read"):
            kind = 'ds'; w = _regs(ops_[0]); r = _regs(",".join(ops_[1:]))
        elif op.startswith("ds_"):
            kind = 'ds'; r = _regs(args)
        elif op.startswith("buffer_load"):
            kind = 'vmem'
            if " lds" in s: r = _regs(args) + [('m0', 0)]; kind = 'dma'
            else: w = _regs(ops_[0]); r = _regs(",".join(ops_[1:]))
        elif op.startswith("buffer_store"):
            kind = 'store4' if "x4" in op or "x3" in op else 'vmem'; r = _regs(args); sdata = _regs(ops_[0])
        elif op.startswith("s_"):
            kind = 's'
            if ops_ and ops_[0] and not op.startswith(("s_cmp", "s_cbranch", "s_waitcnt", "s_barrier", "s_sleep", "s_setprio", "s_bitcmp")):
                w = _regs(ops_[0])
            r = _regs(",".join(ops_[1:]))
        isvalu = kind in ('valu', 'trans', 'perm', 'rdl', 'dpp')
        for (p0, k0, w0, r0, l0, x0) in hist:
            d = pos - p0 - 1
            def need(n, why):
                if d < n: probs.append(f"line {ln}: '{s}' needs {n} ws after line {l0} ({why}), has {d}")
            sw = set(w0)
            k0valu = k0 in ('valu', 'trans', 'perm', 'rdl', 'dpp')
            if k0valu and kind == 'mfma' and sw & set(r): need(2, "valu->mfma")
            if k0 == 'mfma':
                if kind == 'mfma':
                    if sw & set(rab): need(8, "mfmaD->mfmaAB")
                    if sw & set(rc) and set(rc) != sw: need(6, "mfmaD->partial C")
                elif kind != 's' and (sw & set(r) or sw & set(w)): need(8, "mfmaD->use")
                if isvalu and set(x0) & set(w) and not (sw & set(w)): need(3, "mfma C WAR")
            if k0 == 'trans' and isvalu and kind != 'trans' and sw & set(r): need(1, "trans")
            if k0 == 'trans' and kind == 'mfma' and sw & set(r): need(2, "trans->mfma")
            if k0valu and kind in ('perm', 'dpp') and sw & set(r): need(2, "valu->perm/dpp")
            if k0valu and kind == 'rdl' and {x for x in sw if x[0] == 'v'} & set(r): need(1, "valu->readlane")
            sg = {x for x in sw if x[0] in ('s', 'vcc')}
            if k0valu and isvalu and sg & set(r): need(2, "valu sgpr->valu")
            if k0valu and kind in ('vmem', 'dma', 'store4') and sg & set(r): need(5, "valu sgpr->vmem")
            if k0 == 's' and kind == 'dma' and ('m0', 0) in sw: need(1, "m0->dma")
            if k0 == 'store4' and isvalu and set(x0) & set(w): need(2, "store data WAR")
            if k0 == 'store4' and kind in ('ds', 'vmem', 'mfma') and set(x0) & set(w): need(1, "store data WAR")
        extra = rc if kind == 'mfma' else (sdata if kind == 'store4' else [])
        hist.append((pos, kind, w, r, ln, extra))
        pos += 1
        hist = [h for h in hist if pos - h[0] < 14]
    return probs
```

```python
import sys, re
from asmlib import *

NAME = "parallel_sum__compressed_kv_cla__mixer_channel_mlp__prompt"
MB = 1 << 20
XNF, YF, KF, VF, AF, QDBG = 0, 2*MB, 4*MB, 20*MB, 36*MB, 64*MB
AFS = 171 * 1024
WS_BYTES = 268435456

sW, sH, sP, sF = 3, 4, 5, 6
SX, SCKV, SWQ, SWKV, SWO, SW1, SW2, SB1, SB2, SOUT, SDBG, SWS = 8, 12, 16, 20, 24, 28, 32, 36, 40, 44, 48, 52
vLANE, vL16 = 255, 254

def srd(a, d, ptr, nbytes):
    a(f"s_mov_b32 s{d}, s{ptr}")
    a(f"s_and_b32 s{d+1}, s{ptr+1}, 0xffff")
    a(f"s_mov_b32 s{d+2}, {nbytes}")
    a(f"s_mov_b32 s{d+3}, 0x20000")

def setup(a, endlabel):
    a(f"s_cmp_ge_u32 s2, 256\ns_cbranch_scc1 {endlabel}")
    a("s_load_dwordx16 s[64:79], s[0:1], 0")
    a("s_load_dwordx8 s[80:87], s[0:1], 64")
    a("s_load_dwordx4 s[88:91], s[0:1], 96")
    a(f"v_lshrrev_b32 v1, 6, v0\nv_and_b32 v{vLANE}, 63, v0")
    a(f"v_readfirstlane_b32 s{sW}, v1")
    a(f"v_lshlrev_b32 v{vL16}, 4, v{vLANE}")
    a(f"s_and_b32 s56, s2, 7\ns_lshl_b32 s56, s56, 2\ns_lshr_b32 s57, s2, 3\ns_and_b32 s57, s57, 3\ns_add_u32 s{sH}, s56, s57")
    a(f"s_lshr_b32 s{sP}, s2, 5\ns_lshl_b32 s{sF}, s{sH}, 3\ns_add_u32 s{sF}, s{sF}, s{sP}")
    a("s_waitcnt lgkmcnt(0)")
    srd(a, SX, 64, 2*MB); srd(a, SCKV, 66, 2*MB); srd(a, SWQ, 68, 4*MB)
    a(f"s_cmp_lt_u32 s{sW}, 4")
    a("s_cselect_b32 s56, s70, s72\ns_cselect_b32 s57, s71, s73")
    srd(a, SWKV, 56, 4*MB)
    srd(a, SWO, 74, 4*MB); srd(a, SW1, 78, 512*1376*2); srd(a, SB1, 80, 1376*2); srd(a, SW2, 82, 512*1376*2)
    srd(a, SB2, 84, 1024); srd(a, SOUT, 86, 2*MB); srd(a, SDBG, 88, 256); srd(a, SWS, 90, WS_BYTES)

def allreduce_add(a, v, t):
    a(f"s_nop 1\nv_add_f32_dpp v{v}, v{v}, v{v} quad_perm:[1,0,3,2] row_mask:0xf bank_mask:0xf")
    a(f"s_nop 1\nv_add_f32_dpp v{v}, v{v}, v{v} quad_perm:[2,3,0,1] row_mask:0xf bank_mask:0xf")
    a(f"s_nop 1\nv_add_f32_dpp v{v}, v{v}, v{v} row_half_mirror row_mask:0xf bank_mask:0xf")
    a(f"s_nop 1\nv_add_f32_dpp v{v}, v{v}, v{v} row_mirror row_mask:0xf bank_mask:0xf")
    a(f"v_mov_b32 v{t}, v{v}\ns_nop 1\nv_permlane16_swap_b32 v{v}, v{t}\nv_add_f32 v{v}, v{v}, v{t}")
    a(f"v_mov_b32 v{t}, v{v}\ns_nop 1\nv_permlane32_swap_b32 v{v}, v{t}\nv_add_f32 v{v}, v{v}, v{t}")

def rbf(a, v):
    a(f"v_cvt_pk_bf16_f32 v{v}, v{v}, v{v}\nv_lshlrev_b32 v{v}, 16, v{v}")

def unpack8(a, src, dst):
    for i in range(4):
        a(f"v_lshlrev_b32 v{dst+2*i}, 16, v{src+i}\nv_and_b32 v{dst+2*i+1}, 0xffff0000, v{src+i}")

def layernorm8(a, x, pk, t):
    m, s, u, r = t, t+1, t+2, t+3
    d = t + 4
    a(f"v_add_f32 v{m}, v{x}, v{x+1}\nv_add_f32 v{s}, v{x+2}, v{x+3}\nv_add_f32 v{u}, v{x+4}, v{x+5}\nv_add_f32 v{r}, v{x+6}, v{x+7}")
    a(f"v_add_f32 v{m}, v{m}, v{s}\nv_add_f32 v{u}, v{u}, v{r}\nv_add_f32 v{m}, v{m}, v{u}")
    allreduce_add(a, m, u)
    a(f"v_mul_f32 v{m}, 0x3b000000, v{m}")
    for i in range(8):
        a(f"v_sub_f32 v{d+i}, v{x+i}, v{m}")
    a(f"v_mul_f32 v{s}, v{d}, v{d}\nv_mul_f32 v{r}, v{d+1}, v{d+1}")
    for i in range(2, 8, 2):
        a(f"v_fmac_f32 v{s}, v{d+i}, v{d+i}\nv_fmac_f32 v{r}, v{d+i+1}, v{d+i+1}")
    a(f"v_add_f32 v{s}, v{s}, v{r}")
    allreduce_add(a, s, u)
    a(f"v_mul_f32 v{s}, 0x3b000000, v{s}")
    rbf(a, m); rbf(a, s)
    a(f"v_add_f32 v{s}, 0x3727c5ac, v{s}")
    rbf(a, s)
    a(f"v_sqrt_f32 v{s}, v{s}\ns_nop 0")
    rbf(a, s)
    a(f"v_rcp_f32 v{r}, v{s}")
    for i in range(8):
        a(f"v_sub_f32 v{d+i}, v{x+i}, v{m}")
    for i in range(4):
        a(f"v_cvt_pk_bf16_f32 v{pk+i}, v{d+2*i}, v{d+2*i+1}")
    unpack8(a, pk, d)
    for i in range(8):
        a(f"v_mul_f32 v{x+i}, v{d+i}, v{r}")
        a(f"v_fma_f32 v{d+i}, -v{x+i}, v{s}, v{d+i}")
        a(f"v_fmac_f32 v{x+i}, v{d+i}, v{r}")
    for i in range(4):
        a(f"v_cvt_pk_bf16_f32 v{pk+i}, v{x+2*i}, v{x+2*i+1}")

def ln_issue(a):
    a(f"s_lshl_b32 s56, s{sF}, 3\ns_add_u32 s56, s56, s{sW}\ns_lshl_b32 s57, s56, 10")
    a(f"buffer_load_dwordx4 v[200:203], v{vL16}, s[{SX}:{SX+3}], s57 offen")

def ln_compute(a, st):
    a(f"v_lshrrev_b32 v230, 2, v{vLANE}\nv_lshlrev_b32 v230, 10, v230\nv_and_b32 v231, 3, v{vLANE}\nv_lshlrev_b32 v231, 8, v231\nv_add_u32 v230, v230, v231")
    a("s_lshr_b32 s57, s56, 4\ns_lshl_b32 s57, s57, 14\ns_and_b32 s58, s56, 15\ns_lshl_b32 s58, s58, 4\ns_add_u32 s57, s57, s58")
    a(f"s_add_u32 s58, s57, {YF}")
    unpack8(a, 200, 204)
    layernorm8(a, 204, 200, 212)
    a(f"buffer_store_dwordx4 v[200:203], v230, s[{SWS}:{SWS+3}], s57 offen{st}")
    unpack8(a, 200, 204)
    layernorm8(a, 204, 232, 212)
    a(f"buffer_store_dwordx4 v[232:235], v230, s[{SWS}:{SWS+3}], s58 offen{st}")

P1_W, P1_A, P1_NA = 128, 160, 8
vAr, vWr, vDA, vDW = 192, 194, 198, 244
sAoff, sWoff, sLdsA, sLdsW, sCnt, sT = 60, 61, 62, 63, 92, 93

def w_dma_voff(a, v, stride, t):
    a(f"v_lshrrev_b32 v{t}, 4, v{vLANE}")
    a(f"v_bfe_u32 v{t+1}, v{vLANE}, 1, 3")
    a(f"v_xor_b32 v{t+1}, v{t+1}, v{t}")
    a(f"v_lshlrev_b32 v{t+1}, 5, v{t+1}")
    a(f"v_and_b32 v{t+2}, 1, v{vLANE}\nv_lshlrev_b32 v{t+2}, 4, v{t+2}\nv_add_u32 v{t+1}, v{t+1}, v{t+2}")
    a(f"v_mul_u32_u24 v{t}, {stride}, v{t}")
    a(f"v_add_u32 v{v}, v{t}, v{t+1}")
    a(f"v_xor_b32 v{t+1}, 128, v{t+1}\nv_add_u32 v{v+1}, v{t}, v{t+1}")

def w_read_addr(a, v, n, base_s, dt0_s, t):
    a(f"v_lshrrev_b32 v{t}, 4, v{vLANE}")
    a(f"v_bfe_u32 v{t+1}, v{vLANE}, 2, 2")
    a(f"v_lshl_add_u32 v{t+2}, v{t}, 3, v{t+1}\nv_lshlrev_b32 v{t+2}, 8, v{t+2}")
    a(f"v_and_b32 v{t+3}, 3, v{vLANE}\nv_lshl_add_u32 v{t+2}, v{t+3}, 3, v{t+2}")
    a(f"v_add_u32 v{t+2}, s{base_s}, v{t+2}")
    a(f"v_and_b32 v{t}, 1, v{t}\nv_lshl_or_b32 v{t}, v{t}, 2, v{t+1}")
    for i in range(n):
        a(f"s_add_u32 s{sT}, s{dt0_s}, {i}")
        a(f"v_xor_b32 v{t+3}, s{sT}, v{t}\nv_lshl_add_u32 v{v+i}, v{t+3}, 5, v{t+2}")

def p1_dma(i):
    if i < 4:
        return (f"s_add_u32 m0, s{sLdsA}, {i*1024}\ns_add_u32 s{sT}, s{sAoff}, {i*8192}\n"
                f"buffer_load_dwordx4 v{vDA+(i&1)}, s[{SCKV}:{SCKV+3}], s{sT} offen lds")
    j = i - 4
    return (f"s_add_u32 m0, s{sLdsW}, {j*1024}\ns_add_u32 s{sT}, s{sWoff}, {j*4*8192}\n"
            f"buffer_load_dwordx4 v{vDW+(j>>1)}, s[{SWKV}:{SWKV+3}], s{sT} offen lds")

def p1_dma_adv():
    return (f"s_add_u32 s{sAoff}, s{sAoff}, 128\ns_add_u32 s{sWoff}, s{sWoff}, {64*8192}\n"
            f"s_xor_b32 s{sLdsA}, s{sLdsA}, 0x10000\ns_xor_b32 s{sLdsW}, s{sLdsW}, 0x10000")

def p1_setup(a):
    t = 236
    a(f"v_lshrrev_b32 v{t}, 3, v{vLANE}\nv_lshlrev_b32 v{t}, 10, v{t}")
    a(f"v_and_b32 v{t+1}, 7, v{vLANE}\nv_lshrrev_b32 v{t+2}, 4, v{vLANE}\nv_xor_b32 v{t+1}, v{t+1}, v{t+2}\nv_lshlrev_b32 v{t+1}, 4, v{t+1}")
    a(f"v_add_u32 v{vDA}, v{t}, v{t+1}\nv_xor_b32 v{t+1}, 64, v{t+1}\nv_add_u32 v{vDA+1}, v{t}, v{t+1}")
    w_dma_voff(a, vDW, 8192, t)
    a(f"s_lshl_b32 s{sAoff}, s{sP}, 8\ns_lshl_b32 s{sT}, s{sW}, 5\ns_add_u32 s{sAoff}, s{sAoff}, s{sT}\ns_lshl_b32 s{sAoff}, s{sAoff}, 10")
    a(f"s_lshl_b32 s{sLdsA}, s{sW}, 12")
    a(f"s_and_b32 s{sT}, s{sW}, 3\ns_lshl_b32 s{sWoff}, s{sT}, 17\ns_lshl_b32 s{sT}, s{sH}, 8\ns_add_u32 s{sWoff}, s{sWoff}, s{sT}")
    a(f"s_lshl_b32 s{sLdsW}, s{sW}, 12\ns_add_u32 s{sLdsW}, s{sLdsW}, 32768")
    for st in range(2):
        for i in range(8):
            a(p1_dma(i))
        a(p1_dma_adv())

def p1_addr(a):
    t = 236
    a(f"s_and_b32 s{sT}, s{sW}, 1\ns_lshl_b32 s{sT}, s{sT}, 14")
    a(f"v_and_b32 v{t}, 15, v{vLANE}\nv_lshlrev_b32 v{t+1}, 7, v{t}\nv_add_u32 v{t+1}, s{sT}, v{t+1}")
    a(f"v_lshrrev_b32 v{t}, 1, v{t}\nv_lshrrev_b32 v{t+2}, 4, v{vLANE}\nv_xor_b32 v{t}, v{t}, v{t+2}")
    a(f"v_lshl_add_u32 v{vAr}, v{t}, 4, v{t+1}\nv_xor_b32 v{vAr+1}, 64, v{vAr}")
    a(f"s_lshr_b32 s56, s{sW}, 2\ns_lshl_b32 s56, s56, 14\ns_add_u32 s56, s56, 32768")
    a(f"s_bfe_u32 s57, s{sW}, 0x10001\ns_lshl_b32 s57, s57, 2")
    w_read_addr(a, vWr, 4, 56, 57, t)
    for r in range(128):
        a(f"v_mov_b32 v{r}, 0")

def p1_main(a, isV, tag):
    S = Sched(lookahead=24, per_slot=1)
    na = 0
    for st in range(8):
        for ks in range(2):
            for kt in range(8):
                for dt in range(4):
                    acc = (kt*4 + dt) * 4
                    wf = P1_W + ((st*2+ks) & 1) * 16 + dt * 4
                    af = P1_A + ((st*16 + ks*8 + kt) % P1_NA) * 4
                    txt = mfma(acc, af, wf) if isV else mfma(acc, wf, af)
                    S.add_slot(txt, [('W', st, ks, dt), ('A', st, ks, kt)])
    for st in range(8):
        dmas = []
        if st > 0:
            x = "\n".join(f"v_xor_b32 v{r}, 0x10000, v{r}" for r in list(range(vAr, vAr+2)) + list(range(vWr, vWr+4)))
            S.add_sync("s_waitcnt vmcnt(0)\ns_barrier\n" + x, drain=True, delay=3)
            if st + 1 < 8:
                dmas = [p1_dma(i) for i in range(8)]
                dmas[7] += "\n" + p1_dma_adv()
        for ks in range(2):
            order = [('W', 0), ('W', 1), ('A', 0), ('W', 2), ('W', 3)] + [('A', k) for k in range(1, 8)]
            for (kind, i) in order:
                if kind == 'W':
                    wf = P1_W + ((st*2+ks) & 1) * 16 + i * 4
                    S.add_load(('W', st, ks, i),
                               [f"ds_read_b64_tr_b16 v[{wf}:{wf+1}], v{vWr+i} offset:{ks*8192}",
                                f"ds_read_b64_tr_b16 v[{wf+2}:{wf+3}], v{vWr+i} offset:{ks*8192+1024}"], wf)
                else:
                    af = P1_A + ((st*16 + ks*8 + i) % P1_NA) * 4
                    S.add_load(('A', st, ks, i), [f"ds_read_b128 v[{af}:{af+3}], v{vAr+ks} offset:{i*2048}"], af)
                if dmas and ks == 0:
                    S.add_sync(dmas.pop(0), drain=False)
                    if kind == 'W' and dmas: S.add_sync(dmas.pop(0), drain=False)
    segs = S.build(cuts=[64*s for s in range(8)])
    body = segs[2]
    for k in range(3, 7):
        assert body == segs[k], "p1 not periodic"
    bi = [i for i, l in enumerate(body) if "s_barrier" in l][0]
    for l in body[bi+1:]:
        if l.startswith("ds_read"): a(l)
    a(f"s_mov_b32 s{sCnt}, 6")
    a.label(f"L_p1_{tag}")
    for l in body: a(l)
    a(f"s_sub_u32 s{sCnt}, s{sCnt}, 1\ns_cmp_lg_u32 s{sCnt}, 0\ns_cbranch_scc1 L_p1_{tag}")
    for l in segs[7] + segs[8]: a(l)

def pack_store(a, accA, accB, tq, srdn, soff, imm, st, voff=vL16):
    a(f"v_cvt_pk_bf16_f32 v{tq}, v{accA}, v{accA+1}\nv_cvt_pk_bf16_f32 v{tq+1}, v{accA+2}, v{accA+3}")
    a(f"v_cvt_pk_bf16_f32 v{tq+2}, v{accB}, v{accB+1}\nv_cvt_pk_bf16_f32 v{tq+3}, v{accB+2}, v{accB+3}")
    a(f"buffer_store_dwordx4 v[{tq}:{tq+3}], v{voff}, s[{srdn}:{srdn+3}], s{soff} offen offset:{imm}{st}")

def p1_epilogue(a, isV, st):
    a(f"s_lshl_b32 s56, s{sH}, 19\ns_and_b32 s57, s{sW}, 1\ns_bfe_u32 s58, s{sW}, 0x10001")
    n = 0
    if not isV:
        a(f"s_lshl_b32 s59, s{sP}, 16\ns_add_u32 s56, s56, s59\ns_lshl_b32 s57, s57, 15\ns_add_u32 s56, s56, s57")
        a(f"s_lshl_b32 s58, s58, 11\ns_add_u32 s56, s56, s58\ns_add_u32 s56, s56, {KF}")
        a("s_nop 7")
        for kt in range(8):
            for s2 in range(2):
                pack_store(a, (kt*4+2*s2)*4, (kt*4+2*s2+1)*4, 128 + (n % 4)*4, SWS, 56, s2*1024, st); n += 1
            a("s_add_u32 s56, s56, 4096")
    else:
        a(f"s_lshl_b32 s59, s{sP}, 16\ns_add_u32 s56, s56, s59\ns_lshl_b32 s57, s57, 15\ns_add_u32 s56, s56, s57")
        a(f"s_lshl_b32 s58, s58, 12\ns_add_u32 s56, s56, s58\ns_add_u32 s56, s56, {VF}")
        a("s_nop 7")
        for u2 in range(4):
            for dt in range(4):
                pack_store(a, ((2*u2)*4+dt)*4, ((2*u2+1)*4+dt)*4, 128 + (n % 4)*4, SWS, 56, dt*1024, st); n += 1
            a("s_add_u32 s56, s56, 8192")

def phase1(a, st=""):
    ln_issue(a)
    p1_setup(a)
    a("s_waitcnt vmcnt(16)")
    ln_compute(a, st)
    p1_addr(a)
    a("s_waitcnt vmcnt(10)\ns_barrier")
    a(f"s_cmp_ge_u32 s{sW}, 4\ns_cbranch_scc1 L_p1v")
    p1_main(a, False, "k"); p1_epilogue(a, False, st)
    a("s_branch L_p1_done")
    a.label("L_p1v")
    p1_main(a, True, "v"); p1_epilogue(a, True, st)
    a.label("L_p1_done")

def kernel_header(a, name):
    a.raw(f".globl {name}\n.p2align 8\n.type {name},@function\n{name}:")

def descriptor(name):
    return (f".amdhsa_kernel {name}\n  .amdhsa_next_free_vgpr 256\n  .amdhsa_next_free_sgpr 102\n  .amdhsa_accum_offset 256\n"
            "  .amdhsa_group_segment_fixed_size 0\n  .amdhsa_kernarg_size 112\n  .amdhsa_user_sgpr_count 2\n"
            "  .amdhsa_user_sgpr_kernarg_segment_ptr 1\n  .amdhsa_system_sgpr_workgroup_id_x 1\n.end_amdhsa_kernel\n")

def build(kernels):
    head = open("cdna_kernels/" + NAME + ".s.ref").read().split("; Override launch")[0]
    out = head
    for (name, fn) in kernels:
        out += f"; @launch kernel={name} grid=(256,1,1) block=(512,1,1) lds=163840\n"
    out += '.amdgcn_target "amdgcn-amd-amdhsa--gfx950"\n.text\n'
    for (name, fn) in kernels:
        a = Asm()
        kernel_header(a, name)
        setup(a, f"L_end_{name}")
        fn(a)
        a.label(f"L_end_{name}")
        a("s_endpgm")
        t = a.text()
        for p in lint(t): print("LINT", name, p, file=sys.stderr)
        out += t
    out += '.section .rodata,"a"\n'
    for (name, fn) in kernels:
        out += ".p2align 6\n" + descriptor(name)
    return out

if __name__ == "__main__":
    ks = [("k1_kernel", phase1)]
    open(sys.argv[1], "w").write(build(ks))
```

```python
from gen import *

X0, ACC2, WR2, NWR2 = 0, 128, 192, 8
vW2, vD2 = 224, 232
sSrc, sLds, sXo = 60, 61, 62

def p2_dma(srdn, stride, half, i):
    return (f"s_add_u32 m0, s{sLds}, {half*65536 + i*1024}\ns_add_u32 s{sT}, s{sSrc}, {(half*256 + i*4)*stride}\n"
            f"buffer_load_dwordx4 v{vD2+((i>>1)&1)}, s[{srdn}:{srdn+3}], s{sT} offen lds")

def p2_gemm(a, nct, srdn, stride, ld):
    for i in range(8): a(p2_dma(srdn, stride, 0, i))
    a(f"s_add_u32 s63, s{sXo}, 16384")
    for ks in range(16):
        for rt in range(2):
            r = X0 + (rt*16 + ks)*4
            so = sXo if rt == 0 else 63
            if ks and ks % 4 == 0:
                a(f"s_add_u32 s{so}, s{so}, 4096")
            a(f"buffer_load_dwordx4 v[{r}:{r+3}], v{vL16}, s[{SWS}:{SWS+3}], s{so} offen offset:{(ks%4)*1024}{ld}")
    for i in range(8): a(p2_dma(srdn, stride, 1, i))
    a("s_waitcnt vmcnt(40)\ns_barrier")
    S = Sched(lookahead=14, per_slot=2)
    n = 0
    for ks in range(16):
        if ks == 8:
            x = "\n".join(f"v_xor_b32 v{r}, 0x10000, v{r}" for r in range(vW2, vW2+nct))
            S.add_sync("s_waitcnt vmcnt(0)\ns_barrier\n" + x, drain=False)
        for ct in range(nct):
            wf = WR2 + (n % NWR2)*4; n += 1
            S.add_load((ks, ct), [f"ds_read_b64_tr_b16 v[{wf}:{wf+1}], v{vW2+ct} offset:{(ks%8)*8192}",
                                  f"ds_read_b64_tr_b16 v[{wf+2}:{wf+3}], v{vW2+ct} offset:{(ks%8)*8192+1024}"], wf)
            for rt in range(2):
                sl = S.add_slot(mfma(ACC2 + (rt*nct + ct)*4, wf, X0 + (rt*16+ks)*4), [(ks, ct)])
                if ct == 0 and rt == 0 and ks < 8:
                    S.add_pre(sl, f"s_waitcnt vmcnt({8 + 32 - 2*(ks+1)})")
    for l in S.build()[0]: a(l)

def mlp1(a, st, ld):
    a(f"s_sub_u32 s56, 7, s{sP}\ns_lshl_b32 s56, s56, 5\ns_add_u32 s56, s56, s{sH}")
    a("s_cmp_ge_u32 s56, 176\ns_cbranch_scc1 L_mlp1_done")
    a("s_and_b32 s57, s56, 15\ns_lshr_b32 s58, s56, 4")
    a(f"s_and_b32 s59, s{sW}, 3\ns_lshr_b32 s96, s{sW}, 2")
    a(f"s_lshl_b32 s97, s57, 3\ns_lshl_b32 s{sT}, s59, 1\ns_add_u32 s97, s97, s{sT}")
    a(f"s_lshl_b32 s{sXo}, s97, 14\ns_add_u32 s{sXo}, s{sXo}, {YF}")
    a(f"s_mul_i32 s{sSrc}, s{sW}, {32*2752}\ns_lshl_b32 s{sT}, s58, 8\ns_add_u32 s{sSrc}, s{sSrc}, s{sT}")
    a(f"s_lshl_b32 s{sLds}, s{sW}, 13")
    a(f"v_lshrrev_b32 v236, 4, v{vLANE}\nv_lshlrev_b32 v236, 3, v236")
    a(f"s_lshl_b32 s98, s58, 8\ns_lshl_b32 s{sT}, s96, 7\ns_add_u32 s98, s98, s{sT}")
    for ct in range(4):
        a(f"buffer_load_dwordx2 v[{240+2*ct}:{241+2*ct}], v236, s[{SB1}:{SB1+3}], s98 offen offset:{ct*32}")
    w_dma_voff(a, vD2, 2752, 236)
    a("s_mov_b32 s99, 0\ns_lshl_b32 s98, s96, 2")
    w_read_addr(a, vW2, 4, 99, 98, 236)
    a("s_waitcnt vmcnt(0)")
    for ct in range(4):
        for rt in range(2):
            r = ACC2 + (rt*4+ct)*4
            a(f"v_lshlrev_b32 v{r}, 16, v{240+2*ct}\nv_and_b32 v{r+1}, 0xffff0000, v{240+2*ct}")
            a(f"v_lshlrev_b32 v{r+2}, 16, v{241+2*ct}\nv_and_b32 v{r+3}, 0xffff0000, v{241+2*ct}")
    p2_gemm(a, 4, SW1, 2752, ld)
    import struct
    def fb(x): return "0x%08x" % struct.unpack("<I", struct.pack("<f", x))[0]
    k = -2.0 * 0.7978845608028654 * 1.4426950408889634
    a(f"s_mov_b32 s98, {fb(k*0.044715)}\nv_mov_b32 v236, {fb(k)}")
    a("s_nop 7")
    for r0 in range(ACC2, ACC2+32, 4):
        for j in range(4): a(f"v_mul_f32 v{240+j}, v{r0+j}, v{r0+j}")
        for j in range(4): a(f"v_fma_f32 v{240+j}, v{240+j}, s98, v236")
        for j in range(4): a(f"v_mul_f32 v{240+j}, v{240+j}, v{r0+j}")
        for j in range(4): a(f"v_exp_f32 v{240+j}, v{240+j}")
        for j in range(4): a(f"v_add_f32 v{240+j}, 1.0, v{240+j}")
        for j in range(4): a(f"v_rcp_f32 v{240+j}, v{240+j}")
        for j in range(4): a(f"v_mul_f32 v{r0+j}, v{r0+j}, v{240+j}")
    a(f"s_lshl_b32 s98, s58, 2\ns_lshl_b32 s{sT}, s96, 1\ns_add_u32 s98, s98, s{sT}")
    a(f"s_mul_i32 s99, s97, {AFS}\ns_lshl_b32 s{sT}, s98, 10\ns_add_u32 s99, s99, s{sT}\ns_add_u32 s99, s99, {AF + 128*1024}")
    a(f"s_add_u32 s100, s99, {AFS}")
    pack_store(a, ACC2, ACC2+4, 192, SWS, 99, 0, st)
    pack_store(a, ACC2+16, ACC2+20, 196, SWS, 100, 0, st)
    a("s_cmp_ge_u32 s98, 42\ns_cbranch_scc1 L_mlp1_nost")
    pack_store(a, ACC2+8, ACC2+12, 200, SWS, 99, 1024, st)
    pack_store(a, ACC2+24, ACC2+28, 204, SWS, 100, 1024, st)
    a.label("L_mlp1_nost")
    a("s_waitcnt lgkmcnt(0)\ns_barrier")
    a.label("L_mlp1_done")

sG, sRQ, sBlk, sN, sNW, sIt, sKs, sVs, sThr, sFloor, sMask, sRt0 = 56, 57, 58, 59, 60, 61, 62, 63, 96, 97, 98, 99
sRet = 94

def att_ids(a):
    a(f"s_lshr_b32 s{sG}, s{sW}, 2\ns_and_b32 s{sRQ}, s{sW}, 3")
    a(f"s_sub_u32 s{sBlk}, 15, s{sP}\ns_cmp_eq_u32 s{sG}, 0\ns_cselect_b32 s{sBlk}, s{sBlk}, s{sP}")
    a(f"s_lshl_b32 s{sRt0}, s{sBlk}, 3\ns_lshl_b32 s{sT}, s{sRQ}, 1\ns_add_u32 s{sRt0}, s{sRt0}, s{sT}")

def qproj(a, ld):
    att_ids(a)
    a(f"s_lshl_b32 s{sXo}, s{sRt0}, 14")
    a(f"s_lshl_b32 s{sSrc}, s{sW}, 18\ns_lshl_b32 s{sT}, s{sH}, 8\ns_add_u32 s{sSrc}, s{sSrc}, s{sT}")
    a(f"s_lshl_b32 s{sLds}, s{sW}, 13")
    w_dma_voff(a, vD2, 8192, 236)
    a("s_mov_b32 s100, 0")
    w_read_addr(a, vW2, 8, 100, 100, 236)
    for r in range(ACC2, ACC2+64): a(f"v_mov_b32 v{r}, 0")
    p2_gemm(a, 8, SWQ, 8192, ld)
    a("s_mov_b32 s100, 0x3e0293ee")
    a("s_nop 7")
    for j in range(8):
        s, d = ACC2 + 8*j, ACC2 + 4*j
        for i in range(8): a(f"v_mul_f32 v{s+i}, s100, v{s+i}")
        for i in range(4): a(f"v_cvt_pk_bf16_f32 v{d+i}, v{s+2*i}, v{s+2*i+1}")

vO, vS, vQ, vP, vF, NF, vCm, vT, vL, vTS, vK, vV, vDm, vNEG = 0, 64, 128, 160, 192, 8, 224, 232, 240, 242, 244, 245, 246, 247
def rS(b, kt, qt): return vS + b*32 + (kt*2 + qt)*4
def rP(b, ks, qt): return vP + b*16 + (ks*2 + qt)*4
def rO(dt, qt): return vO + (dt*2 + qt)*4
def rQ(qt, ds): return vQ + (qt*4 + ds)*4

_uid = [0]
def att_sync(ld):
    _uid[0] += 1; u = _uid[0]
    t = f"s_cmp_eq_u32 s{sG}, 0\ns_cbranch_scc1 L_sy_n{u}\n"
    t += f"s_add_u32 s{sT}, s{sIt}, 4\ns_cmp_ge_i32 s{sT}, s{sNW}\ns_cbranch_scc1 L_sy_e{u}\n"
    t += "s_waitcnt vmcnt(8)\ns_barrier\n"
    t += f"s_and_b32 s100, s{sT}, 1\ns_lshl_b32 s100, s100, 14\ns_and_b32 s101, s{sT}, 2\ns_lshl_b32 s101, s101, 15\ns_add_u32 s100, s100, s101\n"
    t += f"s_add_u32 m0, s100, s92\ns_lshl_b32 s101, s{sT}, 14\ns_add_u32 s101, s101, s{sKs}\n"
    for i in range(4):
        t += f"buffer_load_dwordx4 v{vL16}, s[{SWS}:{SWS+3}], s101 offen offset:{i*1024}{ld} lds\n"
    t += f"s_branch L_sy_v{u}\n"
    t += f"L_sy_e{u}:\ns_waitcnt vmcnt(0)\ns_barrier\n"
    t += f"L_sy_v{u}:\ns_add_u32 s{sT}, s{sIt}, 2\ns_cmp_ge_i32 s{sT}, s{sNW}\ns_cbranch_scc1 L_sy_d{u}\n"
    t += f"s_and_b32 s100, s{sT}, 1\ns_lshl_b32 s100, s100, 14\ns_and_b32 s101, s{sT}, 2\ns_lshl_b32 s101, s101, 15\ns_add_u32 s100, s100, s101\n"
    t += f"s_add_u32 s100, s100, 32768\ns_add_u32 m0, s100, s92\ns_lshl_b32 s101, s{sT}, 14\ns_add_u32 s101, s101, s{sVs}\n"
    for i in range(4):
        t += f"buffer_load_dwordx4 v{vL16}, s[{SWS}:{SWS+3}], s101 offen offset:{i*1024}{ld} lds\n"
    t += f"s_branch L_sy_d{u}\n"
    t += f"L_sy_n{u}:\ns_barrier\nL_sy_d{u}:"
    return t

def add_qk(S, tile, cnt, tagn=""):
    b = tile & 1
    if b == 0: S.add_sync(f"v_xor_b32 v{vK}, 0x10000, v{vK}{tagn}", drain=False)
    for kt in range(4):
        for ds in range(4):
            f = vF + (cnt[0] % NF)*4; cnt[0] += 1
            S.add_load(('K', tile, kt, ds), [f"ds_read_b128 v[{f}:{f+3}], v{vK} offset:{b*16384 + (kt*4+ds)*1024}{tagn}"], f)
            for qt in range(2):
                S.add_slot(mfma(rS(b, kt, qt), f, rQ(qt, ds), vCm + 4*qt if ds == 0 else None), [('K', tile, kt, ds)])

def add_pv(S, tile, cnt):
    b = tile & 1
    if b == 0: S.add_sync(f"v_xor_b32 v{vV}, 0x10000, v{vV}", drain=False)
    for ks in range(2):
        for dt in range(8):
            f = vF + (cnt[0] % NF)*4; cnt[0] += 1
            S.add_load(('V', tile, ks, dt), [f"ds_read_b128 v[{f}:{f+3}], v{vV} offset:{32768 + b*16384 + (ks*8+dt)*1024}"], f)
            for qt in range(2):
                S.add_slot(mfma(rO(dt, qt), f, rP(b, ks, qt)), [('V', tile, ks, dt)])

def sm_pairs(b):
    out = []
    for qt in range(2):
        for ks in range(2):
            for h in range(2):
                kt = 2*ks + h
                for j in range(2):
                    s = rS(b, kt, qt) + 2*j
                    out.append((s, s+1, rP(b, ks, qt) + 2*h + j, qt, ks == 0 and h == 0 and j == 0))
    return out

def emit_blk(a, fn, tile):
    S = Sched(lookahead=10, per_slot=1)
    fn(S, tile, [0])
    for l in S.build()[0]: a(l)

def exact(a, b):
    a.label(f"L_exact{b}")
    a("s_nop 7")
    a(f"s_cmp_eq_u32 s{sMask}, 0\ns_cbranch_scc1 L_exact_nm{b}")
    els = [(kt, qt, r) for kt in range(4) for qt in range(2) for r in range(4)]
    prs = [64, 66, 68, 70]
    for i in range(len(els) + 3):
        if i < len(els):
            kt, qt, r = els[i]
            a(f"v_cmp_ge_i32 s[{prs[i%4]}:{prs[i%4]+1}], v{vDm}, {16*(kt-qt)+r}")
        if i >= 3:
            kt, qt, r = els[i-3]; s = rS(b, kt, qt) + r
            if i >= len(els): a("s_nop 0")
            a(f"v_cndmask_b32 v{s}, v{vNEG}, v{s}, s[{prs[(i-3)%4]}:{prs[(i-3)%4]+1}]")
    a.label(f"L_exact_nm{b}")
    D, Fc, U = vT, vT+2, vT+4
    for qt in range(2):
        regs = [rS(b, kt, qt) + r for kt in range(4) for r in range(4)]
        a(f"v_max3_f32 v{D+qt}, v{regs[0]}, v{regs[1]}, v{regs[2]}")
        for i in range(3, 15, 2): a(f"v_max3_f32 v{D+qt}, v{D+qt}, v{regs[i]}, v{regs[i+1]}")
        a(f"v_max_f32 v{D+qt}, v{D+qt}, v{regs[15]}")
    for sw in ("v_permlane16_swap_b32", "v_permlane32_swap_b32"):
        a(f"v_mov_b32 v{U}, v{D}\nv_mov_b32 v{U+1}, v{D+1}\ns_nop 1")
        a(f"{sw} v{D}, v{U}\n{sw} v{D+1}, v{U+1}")
        a(f"v_max_f32 v{D}, v{D}, v{U}\nv_max_f32 v{D+1}, v{D+1}, v{U+1}")
    for qt in range(2):
        a(f"v_max_f32 v{D+qt}, s{sFloor}, v{D+qt}")
        a(f"v_max_f32 v{Fc+qt}, 0, v{D+qt}")
        a(f"v_exp_f32 v{Fc+qt}, -v{Fc+qt}")
    for (s0, s1, dp, qt, first) in sm_pairs(b):
        a(f"v_sub_f32 v{U}, v{s0}, v{D+qt}\nv_sub_f32 v{U+1}, v{s1}, v{D+qt}")
        a(f"v_exp_f32 v{U}, v{U}\nv_exp_f32 v{U+1}, v{U+1}\ns_nop 0")
        if first: a(f"v_add_f32 v{vTS+qt}, v{U}, v{U+1}")
        else: a(f"v_add_f32 v{vTS+qt}, v{vTS+qt}, v{U}\nv_add_f32 v{vTS+qt}, v{vTS+qt}, v{U+1}")
        a(f"v_cvt_pk_bf16_f32 v{dp}, v{U}, v{U+1}")
    for qt in range(2):
        a(f"v_fma_f32 v{vL+qt}, v{vL+qt}, v{Fc+qt}, v{vTS+qt}")
    a(f"s_cmp_lg_u32 s{sFloor}, 0\ns_cbranch_scc1 L_exact_no{b}")
    for dt in range(8):
        for qt in range(2):
            for r in range(4): a(f"v_mul_f32 v{rO(dt,qt)+r}, v{rO(dt,qt)+r}, v{Fc+qt}")
    a.label(f"L_exact_no{b}")
    a(f"s_cmp_lg_u32 s{sMask}, 0\ns_cbranch_scc1 L_exact_ns{b}")
    for kt in range(4):
        for qt in range(2):
            for r in range(4): a(f"v_sub_f32 v{rS(b^1,kt,qt)+r}, v{rS(b^1,kt,qt)+r}, v{D+qt}")
    for qt in range(2):
        for r in range(4): a(f"v_sub_f32 v{vCm+4*qt+r}, v{vCm+4*qt+r}, v{D+qt}")
    a.label(f"L_exact_ns{b}")
    a(f"s_mov_b32 s{sThr}, 0x53800000\ns_mov_b32 s{sFloor}, 0")
    a(f"s_nop 1\ns_setpc_b64 s[{sRet}:{sRet+1}]")

def attention(a, st, ld):
    att_ids(a)
    a(f"s_lshl_b32 s{sN}, s{sBlk}, 1\ns_lshr_b32 s{sT}, s{sRQ}, 1\ns_add_u32 s{sN}, s{sN}, s{sT}\ns_add_u32 s{sN}, s{sN}, 1")
    a(f"s_lshl_b32 s{sT}, s{sP}, 1\ns_sub_u32 s{sNW}, 32, s{sT}")
    a(f"s_lshl_b32 s92, s{sRQ}, 12")
    a(f"s_lshl_b32 s{sKs}, s{sH}, 19\ns_add_u32 s{sKs}, s{sKs}, s92\ns_add_u32 s{sVs}, s{sKs}, {VF}\ns_add_u32 s{sKs}, s{sKs}, {KF}")
    a("s_waitcnt lgkmcnt(0)\ns_barrier")
    a(f"s_cmp_eq_u32 s{sG}, 0\ns_cbranch_scc1 L_att_nod")
    for (src, t, slot) in [(sKs, 0, 0), (sKs, 1, 16384), (sKs, 2, 65536), (sVs, 0, 32768)]:
        a(f"s_add_u32 m0, s92, {slot}\ns_add_u32 s{sT}, s{src}, {t*16384}")
        for i in range(4):
            a(f"buffer_load_dwordx4 v{vL16}, s[{SWS}:{SWS+3}], s{sT} offen offset:{i*1024}{ld} lds")
    a.label("L_att_nod")
    for r in list(range(vO, vO+64)) + list(range(vCm, vCm+8)) + [vL, vL+1]: a(f"v_mov_b32 v{r}, 0")
    a(f"v_xor_b32 v{vK}, 0x10000, v{vL16}\nv_xor_b32 v{vV}, 0x10000, v{vL16}")
    a(f"v_mov_b32 v{vNEG}, 0xf149f2ca")
    a(f"s_and_b32 s{sT}, s{sRQ}, 1\ns_lshl_b32 s{sT}, s{sT}, 5")
    a(f"v_and_b32 v{vDm}, 15, v{vLANE}\nv_add_u32 v{vDm}, s{sT}, v{vDm}\nv_lshrrev_b32 v{vT}, 4, v{vLANE}\nv_lshlrev_b32 v{vT}, 2, v{vT}\nv_sub_u32 v{vDm}, v{vDm}, v{vT}")
    a(f"s_mov_b32 s{sThr}, 0x53800000\ns_mov_b32 s{sFloor}, 0xff7fffff\ns_mov_b32 s{sMask}, 0\ns_mov_b32 s{sIt}, -1")
    a("s_waitcnt vmcnt(12)\ns_barrier")
    emit_blk(a, add_qk, 0)
    a(att_sync(ld))
    a(f"s_mov_b32 s{sIt}, 0")
    a(f"s_cmp_eq_u32 s{sN}, 1\ns_cbranch_scc1 L_att_n1")
    emit_blk(a, add_qk, 1)
    a("s_branch L_att_i0")
    a.label("L_att_n1")
    a(f"s_mov_b32 s{sMask}, 1")
    a.label("L_att_i0")
    a(att_sync(ld))
    a(f"s_call_b64 s[{sRet}:{sRet+1}], L_exact0")
    a(f"s_mov_b32 s{sIt}, 1")
    a(f"s_cmp_eq_u32 s{sN}, 1\ns_cbranch_scc1 L_att_last0")
    a(f"s_cmp_eq_u32 s{sN}, 2\ns_cbranch_scc1 L_att_tail1")
    S = Sched(lookahead=10, per_slot=1)
    cnt = [0]
    its = list(range(1, 8))
    for it in its:
        base = len(S.slots)
        add_qk(S, it+1, cnt, " ;@k")
        add_pv(S, it-1, cnt)
        S.add_pre(base + 32, "@SYNC")
        for i, (s0, s1, dp, qt, first) in enumerate(sm_pairs(it & 1)):
            t0 = vT + (i & 1)*2
            S.add_fill(base + 4*i, f"v_exp_f32 v{t0}, v{s0}")
            S.add_fill(base + 4*i + 1, f"v_exp_f32 v{t0+1}, v{s1}")
            if first: S.add_fill(base + 4*i + 2, f"v_add_f32 v{vTS+qt}, v{t0}, v{t0+1}")
            else: S.add_fill(base + 4*i + 2, f"v_add_f32 v{vTS+qt}, v{vTS+qt}, v{t0}\nv_add_f32 v{vTS+qt}, v{vTS+qt}, v{t0+1}")
            S.add_fill(base + 4*i + 3, f"v_cvt_pk_bf16_f32 v{dp}, v{t0}, v{t0+1}")
    segs = S.build(cuts=[64*i for i in range(len(its))])
    body1, body0 = segs[3], segs[4]
    assert body1 == segs[5] and body0 == segs[6], "attention not periodic"
    si = body0.index("@SYNC")
    for l in body0[si:]:
        if ";@k" in l: a(l)
    def steady(body, b, nxt):
        for l in body:
            a(att_sync(ld) if l == "@SYNC" else l)
        a(f"v_add_f32 v{vT+4}, v{vTS}, v{vTS+1}")
        a(f"v_cmp_nge_f32 vcc, s{sThr}, v{vT+4}")
        a(f"s_add_u32 s{sIt}, s{sIt}, 1")
        a(f"s_cbranch_vccz L_att_ok{b}")
        a(f"s_call_b64 s[{sRet}:{sRet+1}], L_exact{b}")
        a(f"s_branch L_att_af{b}")
        a.label(f"L_att_ok{b}")
        a(f"v_add_f32 v{vL}, v{vL}, v{vTS}\nv_add_f32 v{vL+1}, v{vL+1}, v{vTS+1}")
        a.label(f"L_att_af{b}")
        a(f"s_add_u32 s{sT}, s{sIt}, 2\ns_cmp_gt_u32 s{sT}, s{sN}")
    a.label("L_att_loop")
    steady(body1, 1, 0)
    a("s_cbranch_scc1 L_att_tail0")
    steady(body0, 0, 1)
    a("s_cbranch_scc0 L_att_loop")
    for b in (1, 0):
        a.label(f"L_att_tail{b}")
        a("s_waitcnt lgkmcnt(0)")
        a(att_sync(ld))
        emit_blk(a, add_pv, b ^ 1)
        a(f"s_mov_b32 s{sMask}, 1")
        a(f"s_call_b64 s[{sRet}:{sRet+1}], L_exact{b}")
        a(f"s_add_u32 s{sIt}, s{sIt}, 1")
        a.label(f"L_att_last{b}")
        a(f"s_cmp_ge_u32 s{sIt}, s{sNW}\ns_cbranch_scc1 L_att_ls{b}")
        a(att_sync(ld))
        a.label(f"L_att_ls{b}")
        emit_blk(a, add_pv, b)
        a("s_branch L_att_epi")
    exact(a, 0); exact(a, 1)
    a.label("L_att_epi")
    U = vT
    for sw in ("v_permlane16_swap_b32", "v_permlane32_swap_b32"):
        a(f"v_mov_b32 v{U}, v{vL}\nv_mov_b32 v{U+1}, v{vL+1}\ns_nop 1")
        a(f"{sw} v{vL}, v{U}\n{sw} v{vL+1}, v{U+1}")
        a(f"v_add_f32 v{vL}, v{vL}, v{U}\nv_add_f32 v{vL+1}, v{vL+1}, v{U+1}")
    a(f"v_rcp_f32 v{vL}, v{vL}\nv_rcp_f32 v{vL+1}, v{vL+1}")
    a(f"s_mul_i32 s100, s{sRt0}, {AFS}\ns_lshl_b32 s{sT}, s{sH}, 12\ns_add_u32 s100, s100, s{sT}\ns_add_u32 s100, s100, {AF}\ns_add_u32 s101, s100, {AFS}")
    n = 0
    for qt in range(2):
        for s in range(4):
            for d in (2*s, 2*s+1):
                for r in range(4): a(f"v_mul_f32 v{rO(d,qt)+r}, v{rO(d,qt)+r}, v{vL+qt}")
            pack_store(a, rO(2*s, qt), rO(2*s+1, qt), vF + (n % 4)*4, SWS, 100 + qt, s*1024, st); n += 1
    a.label("L_att_idle")
    a(f"s_add_u32 s{sIt}, s{sIt}, 1")
    a(f"s_cmp_ge_u32 s{sIt}, s{sNW}\ns_cbranch_scc1 L_att_done")
    a(att_sync(ld))
    a("s_branch L_att_idle")
    a.label("L_att_done")

def phase2(a, st="", ld=""):
    mlp1(a, st, ld)
    qproj(a, ld)
    attention(a, st, ld)

if __name__ == "__main__":
    ks = [("k1_kernel", phase1), ("k2_kernel", phase2)]
    open(sys.argv[1], "w").write(build(ks))
```

```python
from gen2 import *

CACC, CW, CX, CD = 0, 64, 96, 4
vCr, vCd = 224, 228
sCa, sCw, sCl, sRt, sCt = 56, 57, 58, 59, 60

def resolve_vm(lines):
    out = []; ops = []
    for l in lines:
        for s in l.split("\n"):
            if s.startswith("@vmwait"):
                tag = s.split()[1]
                idx = max(i for i, t in enumerate(ops) if t == tag)
                n = len(ops) - 1 - idx
                assert n <= 63
                out.append(f"s_waitcnt vmcnt({n})")
            else:
                m = re.search(r";@vm (\S+)", s)
                if m: ops.append(m.group(1))
                out.append(s)
    return out

def phase3(a, ld=""):
    a(f"s_and_b32 s{sRt}, s2, 7\ns_lshl_b32 s{sRt}, s{sRt}, 2\ns_bfe_u32 s{sT}, s2, 0x20003\ns_add_u32 s{sRt}, s{sRt}, s{sT}\ns_lshr_b32 s{sCt}, s2, 5")
    a(f"s_mul_i32 s61, s{sRt}, {4*AFS}\ns_add_u32 s61, s61, {AF}\ns_lshl_b32 s{sT}, s{sW}, 10\ns_add_u32 s61, s61, s{sT}")
    a(f"s_lshl_b32 s62, s{sW}, 15\ns_lshl_b32 s{sT}, s{sCt}, 7\ns_add_u32 s62, s62, s{sT}")
    a(f"s_lshl_b32 s{sCl}, s{sW}, 14")
    t = 236
    a(f"v_lshrrev_b32 v{t}, 3, v{vLANE}\nv_lshlrev_b32 v{t}, 10, v{t}\nv_bfe_u32 v{t+1}, v{vLANE}, 1, 2\nv_lshrrev_b32 v{t+2}, 4, v{vLANE}")
    a(f"v_xor_b32 v{t+1}, v{t+1}, v{t+2}\nv_lshl_add_u32 v{t}, v{t+1}, 5, v{t}\nv_and_b32 v{t+1}, 1, v{vLANE}\nv_lshl_add_u32 v{vCd}, v{t+1}, 4, v{t}")
    a(f"v_lshrrev_b32 v{t}, 2, v{vLANE}")
    a(f"v_lshlrev_b32 v{t+1}, 7, v{t}\nv_and_b32 v{t+2}, 3, v{vLANE}\nv_lshl_add_u32 v{t+1}, v{t+2}, 3, v{t+1}\nv_add_u32 v{t+1}, s{sCl}, v{t+1}")
    a(f"v_bfe_u32 v{t}, v{t}, 1, 2")
    for ct in range(4):
        a(f"v_xor_b32 v{t+2}, {ct}, v{t}\nv_lshl_add_u32 v{vCr+ct}, v{t+2}, 5, v{t+1}")
    for r in range(CACC, CACC+64): a(f"v_mov_b32 v{r}, 0")
    a(f"s_cmp_lt_u32 s{sW}, 3\ns_cselect_b32 s63, 0, 0x40000000")
    steps = [('H', j) for j in range(6)] + [('C', j) for j in range(16)]
    def group(g):
        kind, j = steps[g]
        ops = []
        sl = g % CD
        if kind == 'H':
            ao, wo, srdn = (128 + 8*j)*1024, 8*j*32*1024, SW2
        else:
            ao, wo, srdn = 8*j*1024, 8*j*32*1024, SWO
        pre = f"s_add_u32 s{sCa}, s61, {ao}\ns_add_u32 s{sCw}, s62, {wo}\n"
        if kind == 'H' and j == 5:
            pre += f"s_add_u32 s{sCa}, s{sCa}, s63\ns_add_u32 s{sCw}, s{sCw}, s63\n"
        for i in range(4):
            ops.append((pre if i == 0 else "") + f"s_add_u32 m0, s{sCl}, {sl*4096 + i*1024}\ns_add_u32 s{sT}, s{sCw}, {i*8192}\n"
                       f"buffer_load_dwordx4 v{vCd}, s[{srdn}:{srdn+3}], s{sT} offen lds ;@vm g{g}")
        for rt in range(4):
            r = CX + sl*16 + rt*4
            ops.append(f"s_add_u32 s{sT}, s{sCa}, {rt*AFS}\n"
                       f"buffer_load_dwordx4 v[{r}:{r+3}], v{vL16}, s[{SWS}:{SWS+3}], s{sT} offen{ld} ;@vm g{g}")
        return ops
    lines = []
    for g in range(CD): lines += group(g)
    S = Sched(lookahead=12, per_slot=2)
    for g in range(len(steps)):
        S.add_sync(f"@vmwait g{g}", drain=False)
        base = len(S.slots)
        for ct in range(4):
            wf = CW + (g & 1)*16 + ct*4
            off = (g % CD)*4096
            S.add_load((g, ct), [f"ds_read_b64_tr_b16 v[{wf}:{wf+1}], v{vCr+ct} offset:{off}",
                                 f"ds_read_b64_tr_b16 v[{wf+2}:{wf+3}], v{vCr+ct} offset:{off+2048}"], wf)
            for rt in range(4):
                S.add_slot(mfma(CACC + (rt*4+ct)*4, wf, CX + (g % CD)*16 + rt*4), [(g, ct)])
        if g >= 1 and g - 1 + CD < len(steps):
            for i, op in enumerate(group(g - 1 + CD)):
                S.add_fill(base + (i // 2), op)
    lines += S.build()[0]
    for l in resolve_vm(lines): a(l)
    a(f"v_lshrrev_b32 v{t}, 3, v{vLANE}\nv_and_b32 v{t+1}, 7, v{vLANE}\nv_lshlrev_b32 v{t+2}, 4, v{t+1}\nv_lshl_add_u32 v{t+3}, v{t}, 10, v{t+2}")
    a(f"s_lshl_b32 s61, s{sRt}, 6\ns_lshl_b32 s{sT}, s{sW}, 3\ns_add_u32 s61, s61, s{sT}\ns_lshl_b32 s61, s61, 10\ns_lshl_b32 s62, s{sCt}, 7\ns_add_u32 s61, s61, s62")
    a(f"buffer_load_dwordx4 v[100:103], v{t+3}, s[{SX}:{SX+3}], s61 offen")
    a(f"buffer_load_dwordx4 v[104:107], v{t+2}, s[{SB2}:{SB2+3}], s62 offen")
    a(f"v_and_b32 v96, 15, v{vLANE}\nv_mul_u32_u24 v96, 272, v96\nv_lshrrev_b32 v97, 4, v{vLANE}\nv_lshl_add_u32 v96, v97, 4, v96")
    a(f"s_mul_i32 s{sT}, s{sW}, 17408\nv_add_u32 v96, s{sT}, v96")
    a("s_barrier")
    for rt in range(4):
        for ct in range(4):
            r = CACC + (rt*4+ct)*4
            a(f"ds_write_b128 v96, v[{r}:{r+3}] offset:{rt*16*272 + ct*64}")
    a(f"s_mul_i32 s{sT}, s{sW}, {8*272}\nv_mul_u32_u24 v97, 272, v{t}\nv_lshl_add_u32 v97, v{t+1}, 5, v97\nv_add_u32 v97, s{sT}, v97")
    a("v_add_u32 v98, 0x11000, v97")
    a("s_waitcnt lgkmcnt(0)\ns_barrier")
    for w in range(8):
        ad = 97 if w < 4 else 98
        a(f"ds_read_b128 v[{w*8}:{w*8+3}], v{ad} offset:{(w%4)*17408}")
        a(f"ds_read_b128 v[{w*8+4}:{w*8+7}], v{ad} offset:{(w%4)*17408+16}")
    a("s_waitcnt vmcnt(0)")
    unpack8(a, 100, 108); unpack8(a, 104, 116)
    for i in range(8): a(f"v_add_f32 v{108+i}, v{108+i}, v{116+i}")
    for w in range(8):
        a(f"s_waitcnt lgkmcnt({14-2*w})")
        for i in range(8): a(f"v_add_f32 v{108+i}, v{108+i}, v{w*8+i}")
    for i in range(4): a(f"v_cvt_pk_bf16_f32 v{100+i}, v{108+2*i}, v{109+2*i}")
    a(f"buffer_store_dwordx4 v[100:103], v{t+3}, s[{SOUT}:{SOUT+3}], s61 offen")

if __name__ == "__main__":
    ks = [("k1_kernel", phase1), ("k2_kernel", phase2), ("k3_kernel", phase3)]
    open(sys.argv[1], "w").write(build(ks))
```

```python
import sys, re
from asmlib import *

NAME = "parallel_sum__compressed_kv_cla__mixer_channel_mlp__prompt"
MB = 1 << 20
XNF, YF, KF, VF, AF, QDBG = 0, 2*MB, 4*MB, 20*MB, 36*MB, 64*MB
AFS = 171 * 1024
WS_BYTES = 268435456

sW, sH, sP, sF = 3, 4, 5, 6
SX, SCKV, SWQ, SWKV, SWO, SW1, SW2, SB1, SB2, SOUT, SDBG, SWS = 8, 12, 16, 20, 24, 28, 32, 36, 40, 44, 48, 52
vLANE, vL16 = 255, 254
import os
PROF = int(os.environ.get("PROF", "0"))
STAMP = 96*MB
def stamp(a, idx):
    if not PROF: return
    a("s_memrealtime s[72:73]\ns_memtime s[74:75]")
    a(f"s_lshl_b32 s76, s2, 3\ns_add_u32 s76, s76, s{sW}\ns_lshl_b32 s76, s76, 8\ns_add_u32 s76, s76, {STAMP + idx*8}")
    a("s_waitcnt lgkmcnt(0)")
    a("v_mov_b32 v252, s72\nv_mov_b32 v253, s74\nv_mov_b32 v251, 0")
    a(f"buffer_store_dwordx2 v[252:253], v251, s[{SWS}:{SWS+3}], s76 offen")

def srd(a, d, ptr, nbytes):
    a(f"s_mov_b32 s{d}, s{ptr}")
    a(f"s_and_b32 s{d+1}, s{ptr+1}, 0xffff")
    a(f"s_mov_b32 s{d+2}, {nbytes}")
    a(f"s_mov_b32 s{d+3}, 0x20000")

def setup(a, endlabel):
    a(f"s_cmp_ge_u32 s2, 256\ns_cbranch_scc1 {endlabel}")
    a("s_load_dwordx16 s[64:79], s[0:1], 0")
    a("s_load_dwordx8 s[80:87], s[0:1], 64")
    a("s_load_dwordx4 s[88:91], s[0:1], 96")
    a(f"v_lshrrev_b32 v1, 6, v0\nv_and_b32 v{vLANE}, 63, v0")
    a(f"v_readfirstlane_b32 s{sW}, v1")
    a(f"v_lshlrev_b32 v{vL16}, 4, v{vLANE}")
    a(f"s_and_b32 s56, s2, 7\ns_lshl_b32 s56, s56, 2\ns_lshr_b32 s57, s2, 3\ns_and_b32 s57, s57, 3\ns_add_u32 s{sH}, s56, s57")
    a(f"s_lshr_b32 s{sP}, s2, 5\ns_lshl_b32 s{sF}, s{sH}, 3\ns_add_u32 s{sF}, s{sF}, s{sP}")
    a("s_waitcnt lgkmcnt(0)")
    srd(a, SX, 64, 2*MB); srd(a, SCKV, 66, 2*MB); srd(a, SWQ, 68, 4*MB)
    a(f"s_cmp_lt_u32 s{sW}, 4")
    a("s_cselect_b32 s56, s70, s72\ns_cselect_b32 s57, s71, s73")
    srd(a, SWKV, 56, 4*MB)
    srd(a, SWO, 74, 4*MB); srd(a, SW1, 78, 512*1376*2); srd(a, SB1, 80, 1376*2); srd(a, SW2, 82, 512*1376*2)
    srd(a, SB2, 84, 1024); srd(a, SOUT, 86, 2*MB); srd(a, SDBG, 88, 256); srd(a, SWS, 90, WS_BYTES)

def allreduce_add(a, v, t):
    a(f"s_nop 1\nv_add_f32_dpp v{v}, v{v}, v{v} quad_perm:[1,0,3,2] row_mask:0xf bank_mask:0xf")
    a(f"s_nop 1\nv_add_f32_dpp v{v}, v{v}, v{v} quad_perm:[2,3,0,1] row_mask:0xf bank_mask:0xf")
    a(f"s_nop 1\nv_add_f32_dpp v{v}, v{v}, v{v} row_half_mirror row_mask:0xf bank_mask:0xf")
    a(f"s_nop 1\nv_add_f32_dpp v{v}, v{v}, v{v} row_mirror row_mask:0xf bank_mask:0xf")
    a(f"v_mov_b32 v{t}, v{v}\ns_nop 1\nv_permlane16_swap_b32 v{v}, v{t}\nv_add_f32 v{v}, v{v}, v{t}")
    a(f"v_mov_b32 v{t}, v{v}\ns_nop 1\nv_permlane32_swap_b32 v{v}, v{t}\nv_add_f32 v{v}, v{v}, v{t}")

def rbf(a, v):
    a(f"v_cvt_pk_bf16_f32 v{v}, v{v}, v{v}\nv_lshlrev_b32 v{v}, 16, v{v}")

def unpack8(a, src, dst):
    for i in range(4):
        a(f"v_lshlrev_b32 v{dst+2*i}, 16, v{src+i}\nv_and_b32 v{dst+2*i+1}, 0xffff0000, v{src+i}")

def layernorm8(a, x, pk, t):
    m, s, u, r = t, t+1, t+2, t+3
    d = t + 4
    a(f"v_add_f32 v{m}, v{x}, v{x+1}\nv_add_f32 v{s}, v{x+2}, v{x+3}\nv_add_f32 v{u}, v{x+4}, v{x+5}\nv_add_f32 v{r}, v{x+6}, v{x+7}")
    a(f"v_add_f32 v{m}, v{m}, v{s}\nv_add_f32 v{u}, v{u}, v{r}\nv_add_f32 v{m}, v{m}, v{u}")
    allreduce_add(a, m, u)
    a(f"v_mul_f32 v{m}, 0x3b000000, v{m}")
    for i in range(8):
        a(f"v_sub_f32 v{d+i}, v{x+i}, v{m}")
    a(f"v_mul_f32 v{s}, v{d}, v{d}\nv_mul_f32 v{r}, v{d+1}, v{d+1}")
    for i in range(2, 8, 2):
        a(f"v_fmac_f32 v{s}, v{d+i}, v{d+i}\nv_fmac_f32 v{r}, v{d+i+1}, v{d+i+1}")
    a(f"v_add_f32 v{s}, v{s}, v{r}")
    allreduce_add(a, s, u)
    a(f"v_mul_f32 v{s}, 0x3b000000, v{s}")
    rbf(a, m); rbf(a, s)
    a(f"v_add_f32 v{s}, 0x3727c5ac, v{s}")
    rbf(a, s)
    a(f"v_sqrt_f32 v{s}, v{s}\ns_nop 0")
    rbf(a, s)
    a(f"v_rcp_f32 v{r}, v{s}")
    for i in range(8):
        a(f"v_sub_f32 v{d+i}, v{x+i}, v{m}")
    for i in range(4):
        a(f"v_cvt_pk_bf16_f32 v{pk+i}, v{d+2*i}, v{d+2*i+1}")
    unpack8(a, pk, d)
    for i in range(8):
        a(f"v_mul_f32 v{x+i}, v{d+i}, v{r}")
        a(f"v_fma_f32 v{d+i}, -v{x+i}, v{s}, v{d+i}")
        a(f"v_fmac_f32 v{x+i}, v{d+i}, v{r}")
    for i in range(4):
        a(f"v_cvt_pk_bf16_f32 v{pk+i}, v{x+2*i}, v{x+2*i+1}")

def ln_issue(a):
    a(f"s_lshl_b32 s56, s{sF}, 3\ns_add_u32 s56, s56, s{sW}\ns_lshl_b32 s57, s56, 10")
    a(f"buffer_load_dwordx4 v[200:203], v{vL16}, s[{SX}:{SX+3}], s57 offen")

def ln_compute(a, st):
    a(f"v_lshrrev_b32 v230, 2, v{vLANE}\nv_lshlrev_b32 v230, 10, v230\nv_and_b32 v231, 3, v{vLANE}\nv_lshlrev_b32 v231, 8, v231\nv_add_u32 v230, v230, v231")
    a("s_lshr_b32 s57, s56, 4\ns_lshl_b32 s57, s57, 14\ns_and_b32 s58, s56, 15\ns_lshl_b32 s58, s58, 4\ns_add_u32 s57, s57, s58")
    a(f"s_add_u32 s58, s57, {YF}")
    unpack8(a, 200, 204)
    layernorm8(a, 204, 200, 212)
    a(f"buffer_store_dwordx4 v[200:203], v230, s[{SWS}:{SWS+3}], s57 offen{st}")
    unpack8(a, 200, 204)
    layernorm8(a, 204, 232, 212)
    a(f"buffer_store_dwordx4 v[232:235], v230, s[{SWS}:{SWS+3}], s58 offen{st}")

P1_W, P1_A, P1_NA = 128, 160, 8
vAr, vWr, vDA, vDW = 192, 194, 198, 244
sAoff, sWoff, sLdsA, sLdsW, sCnt, sT = 60, 61, 62, 63, 92, 93

def w_dma_voff(a, v, stride, t):
    a(f"v_lshrrev_b32 v{t}, 4, v{vLANE}")
    a(f"v_bfe_u32 v{t+1}, v{vLANE}, 1, 3")
    a(f"v_xor_b32 v{t+1}, v{t+1}, v{t}")
    a(f"v_lshlrev_b32 v{t+1}, 5, v{t+1}")
    a(f"v_and_b32 v{t+2}, 1, v{vLANE}\nv_lshlrev_b32 v{t+2}, 4, v{t+2}\nv_add_u32 v{t+1}, v{t+1}, v{t+2}")
    a(f"v_mul_u32_u24 v{t}, {stride}, v{t}")
    a(f"v_add_u32 v{v}, v{t}, v{t+1}")
    a(f"v_xor_b32 v{t+1}, 128, v{t+1}\nv_add_u32 v{v+1}, v{t}, v{t+1}")

def w_read_addr(a, v, n, base_s, dt0_s, t):
    a(f"v_lshrrev_b32 v{t}, 4, v{vLANE}")
    a(f"v_bfe_u32 v{t+1}, v{vLANE}, 2, 2")
    a(f"v_lshl_add_u32 v{t+2}, v{t}, 3, v{t+1}\nv_lshlrev_b32 v{t+2}, 8, v{t+2}")
    a(f"v_and_b32 v{t+3}, 3, v{vLANE}\nv_lshl_add_u32 v{t+2}, v{t+3}, 3, v{t+2}")
    a(f"v_add_u32 v{t+2}, s{base_s}, v{t+2}")
    a(f"v_and_b32 v{t}, 1, v{t}\nv_lshl_or_b32 v{t}, v{t}, 2, v{t+1}")
    for i in range(n):
        a(f"s_add_u32 s{sT}, s{dt0_s}, {i}")
        a(f"v_xor_b32 v{t+3}, s{sT}, v{t}\nv_lshl_add_u32 v{v+i}, v{t+3}, 5, v{t+2}")

def p1_dma(i):
    if i < 4:
        return (f"s_add_u32 m0, s{sLdsA}, {i*1024}\ns_add_u32 s{sT}, s{sAoff}, {i*8192}\n"
                f"buffer_load_dwordx4 v{vDA+(i&1)}, s[{SCKV}:{SCKV+3}], s{sT} offen lds")
    j = i - 4
    return (f"s_add_u32 m0, s{sLdsW}, {j*1024}\ns_add_u32 s{sT}, s{sWoff}, {j*4*8192}\n"
            f"buffer_load_dwordx4 v{vDW+(j>>1)}, s[{SWKV}:{SWKV+3}], s{sT} offen lds")

def p1_dma_adv():
    return (f"s_add_u32 s{sAoff}, s{sAoff}, 128\ns_add_u32 s{sWoff}, s{sWoff}, {64*8192}\n"
            f"s_xor_b32 s{sLdsA}, s{sLdsA}, 0x10000\ns_xor_b32 s{sLdsW}, s{sLdsW}, 0x10000")

def p1_setup(a):
    t = 236
    a(f"v_lshrrev_b32 v{t}, 3, v{vLANE}\nv_lshlrev_b32 v{t}, 10, v{t}")
    a(f"v_and_b32 v{t+1}, 7, v{vLANE}\nv_lshrrev_b32 v{t+2}, 4, v{vLANE}\nv_xor_b32 v{t+1}, v{t+1}, v{t+2}\nv_lshlrev_b32 v{t+1}, 4, v{t+1}")
    a(f"v_add_u32 v{vDA}, v{t}, v{t+1}\nv_xor_b32 v{t+1}, 64, v{t+1}\nv_add_u32 v{vDA+1}, v{t}, v{t+1}")
    w_dma_voff(a, vDW, 8192, t)
    a(f"s_lshl_b32 s{sAoff}, s{sP}, 8\ns_lshl_b32 s{sT}, s{sW}, 5\ns_add_u32 s{sAoff}, s{sAoff}, s{sT}\ns_lshl_b32 s{sAoff}, s{sAoff}, 10")
    a(f"s_lshl_b32 s{sLdsA}, s{sW}, 12")
    a(f"s_and_b32 s{sT}, s{sW}, 3\ns_lshl_b32 s{sWoff}, s{sT}, 17\ns_lshl_b32 s{sT}, s{sH}, 8\ns_add_u32 s{sWoff}, s{sWoff}, s{sT}")
    a(f"s_lshl_b32 s{sLdsW}, s{sW}, 12\ns_add_u32 s{sLdsW}, s{sLdsW}, 32768")
    for st in range(2):
        for i in range(8):
            a(p1_dma(i))
        a(p1_dma_adv())

def p1_addr(a):
    t = 236
    a(f"s_and_b32 s{sT}, s{sW}, 1\ns_lshl_b32 s{sT}, s{sT}, 14")
    a(f"v_and_b32 v{t}, 15, v{vLANE}\nv_lshlrev_b32 v{t+1}, 7, v{t}\nv_add_u32 v{t+1}, s{sT}, v{t+1}")
    a(f"v_lshrrev_b32 v{t}, 1, v{t}\nv_lshrrev_b32 v{t+2}, 4, v{vLANE}\nv_xor_b32 v{t}, v{t}, v{t+2}")
    a(f"v_lshl_add_u32 v{vAr}, v{t}, 4, v{t+1}\nv_xor_b32 v{vAr+1}, 64, v{vAr}")
    a(f"s_lshr_b32 s56, s{sW}, 2\ns_lshl_b32 s56, s56, 14\ns_add_u32 s56, s56, 32768")
    a(f"s_bfe_u32 s57, s{sW}, 0x10001\ns_lshl_b32 s57, s57, 2")
    w_read_addr(a, vWr, 4, 56, 57, t)
    for r in range(128):
        a(f"v_mov_b32 v{r}, 0")

def p1_main(a, isV, tag):
    S = Sched(lookahead=24, per_slot=1)
    na = 0
    for st in range(8):
        for ks in range(2):
            for kt in range(8):
                for dt in range(4):
                    acc = (kt*4 + dt) * 4
                    wf = P1_W + ((st*2+ks) & 1) * 16 + dt * 4
                    af = P1_A + ((st*16 + ks*8 + kt) % P1_NA) * 4
                    txt = mfma(acc, af, wf) if isV else mfma(acc, wf, af)
                    S.add_slot(txt, [('W', st, ks, dt), ('A', st, ks, kt)])
    for st in range(8):
        dmas = []
        if st > 0:
            x = "\n".join(f"v_xor_b32 v{r}, 0x10000, v{r}" for r in list(range(vAr, vAr+2)) + list(range(vWr, vWr+4)))
            sy = "s_waitcnt vmcnt(0)\ns_barrier\n"
            if PROF == 3:
                sy = ("s_memtime s[78:79]\ns_waitcnt vmcnt(0)\ns_memtime s[80:81]\ns_barrier\ns_memtime s[84:85]\ns_waitcnt lgkmcnt(0)\n"
                      "s_sub_u32 s84, s84, s80\ns_sub_u32 s80, s80, s78\ns_add_u32 s82, s82, s80\ns_add_u32 s83, s83, s84\n")
            S.add_sync(sy + x, drain=True, delay=3)
            if st + 1 < 8:
                dmas = [p1_dma(i) for i in range(8)]
                dmas[7] += "\n" + p1_dma_adv()
        for ks in range(2):
            order = [('W', 0), ('W', 1), ('A', 0), ('W', 2), ('W', 3)] + [('A', k) for k in range(1, 8)]
            for (kind, i) in order:
                if kind == 'W':
                    wf = P1_W + ((st*2+ks) & 1) * 16 + i * 4
                    S.add_load(('W', st, ks, i),
                               [f"ds_read_b64_tr_b16 v[{wf}:{wf+1}], v{vWr+i} offset:{ks*8192}",
                                f"ds_read_b64_tr_b16 v[{wf+2}:{wf+3}], v{vWr+i} offset:{ks*8192+1024}"], wf)
                else:
                    af = P1_A + ((st*16 + ks*8 + i) % P1_NA) * 4
                    S.add_load(('A', st, ks, i), [f"ds_read_b128 v[{af}:{af+3}], v{vAr+ks} offset:{i*2048}"], af)
                if dmas and ks == 0:
                    S.add_sync(dmas.pop(0), drain=False)
                    if kind == 'W' and dmas: S.add_sync(dmas.pop(0), drain=False)
    segs = S.build(cuts=[64*s for s in range(8)])
    body = segs[2]
    for k in range(3, 7):
        assert body == segs[k], "p1 not periodic"
    bi = [i for i, l in enumerate(body) if "s_barrier" in l][0]
    for l in body[bi+1:]:
        if l.startswith("ds_read"): a(l)
    a(f"s_mov_b32 s{sCnt}, 6")
    a.label(f"L_p1_{tag}")
    for l in body: a(l)
    a(f"s_sub_u32 s{sCnt}, s{sCnt}, 1\ns_cmp_lg_u32 s{sCnt}, 0\ns_cbranch_scc1 L_p1_{tag}")
    for l in segs[7] + segs[8]: a(l)

def pack_store(a, accA, accB, tq, srdn, soff, imm, st, voff=vL16):
    a(f"v_cvt_pk_bf16_f32 v{tq}, v{accA}, v{accA+1}\nv_cvt_pk_bf16_f32 v{tq+1}, v{accA+2}, v{accA+3}")
    a(f"v_cvt_pk_bf16_f32 v{tq+2}, v{accB}, v{accB+1}\nv_cvt_pk_bf16_f32 v{tq+3}, v{accB+2}, v{accB+3}")
    a(f"buffer_store_dwordx4 v[{tq}:{tq+3}], v{voff}, s[{srdn}:{srdn+3}], s{soff} offen offset:{imm}{st}")

def p1_epilogue(a, isV, st):
    a(f"s_lshl_b32 s56, s{sH}, 19\ns_and_b32 s57, s{sW}, 1\ns_bfe_u32 s58, s{sW}, 0x10001")
    n = 0
    if not isV:
        a(f"s_lshl_b32 s59, s{sP}, 16\ns_add_u32 s56, s56, s59\ns_lshl_b32 s57, s57, 15\ns_add_u32 s56, s56, s57")
        a(f"s_lshl_b32 s58, s58, 11\ns_add_u32 s56, s56, s58\ns_add_u32 s56, s56, {KF}")
        a("s_nop 7")
        for kt in range(8):
            for s2 in range(2):
                pack_store(a, (kt*4+2*s2)*4, (kt*4+2*s2+1)*4, 128 + (n % 4)*4, SWS, 56, s2*1024, st); n += 1
            a("s_add_u32 s56, s56, 4096")
    else:
        a(f"s_lshl_b32 s59, s{sP}, 16\ns_add_u32 s56, s56, s59\ns_lshl_b32 s57, s57, 15\ns_add_u32 s56, s56, s57")
        a(f"s_lshl_b32 s58, s58, 12\ns_add_u32 s56, s56, s58\ns_add_u32 s56, s56, {VF}")
        a("s_nop 7")
        for u2 in range(4):
            for dt in range(4):
                pack_store(a, ((2*u2)*4+dt)*4, ((2*u2+1)*4+dt)*4, 128 + (n % 4)*4, SWS, 56, dt*1024, st); n += 1
            a("s_add_u32 s56, s56, 8192")

def phase1(a, st=""):
    stamp(a, 0)
    ln_issue(a)
    p1_setup(a)
    a("s_waitcnt vmcnt(16)")
    ln_compute(a, st)
    p1_addr(a)
    a("s_waitcnt vmcnt(10)\ns_barrier")
    stamp(a, 1)
    a("s_mov_b32 s82, 0\ns_mov_b32 s83, 0")
    a(f"s_cmp_ge_u32 s{sW}, 4\ns_cbranch_scc1 L_p1v")
    p1_main(a, False, "k"); stamp(a, 2); p1_epilogue(a, False, st)
    a("s_branch L_p1_done")
    a.label("L_p1v")
    p1_main(a, True, "v"); stamp(a, 2); p1_epilogue(a, True, st)
    a.label("L_p1_done")
    if PROF: a("s_waitcnt vmcnt(0)")
    stamp(a, 3)
    if PROF == 3:
        a(f"v_mov_b32 v252, s82\nv_mov_b32 v253, s83\nv_mov_b32 v251, 0\ns_add_u32 s76, s76, {11*8}")
        a(f"buffer_store_dwordx2 v[252:253], v251, s[{SWS}:{SWS+3}], s76 offen")

def kernel_header(a, name):
    a.raw(f".globl {name}\n.p2align 8\n.type {name},@function\n{name}:")

def descriptor(name):
    return (f".amdhsa_kernel {name}\n  .amdhsa_next_free_vgpr 256\n  .amdhsa_next_free_sgpr 102\n  .amdhsa_accum_offset 256\n"
            "  .amdhsa_group_segment_fixed_size 0\n  .amdhsa_kernarg_size 112\n  .amdhsa_user_sgpr_count 2\n"
            "  .amdhsa_user_sgpr_kernarg_segment_ptr 1\n  .amdhsa_system_sgpr_workgroup_id_x 1\n.end_amdhsa_kernel\n")

def build(kernels):
    head = open("cdna_kernels/" + NAME + ".s.ref").read().split("; Override launch")[0]
    out = head
    for (name, fn) in kernels:
        out += f"; @launch kernel={name} grid=(256,1,1) block=(512,1,1) lds=163840\n"
    out += '.amdgcn_target "amdgcn-amd-amdhsa--gfx950"\n.text\n'
    for (name, fn) in kernels:
        a = Asm()
        kernel_header(a, name)
        setup(a, f"L_end_{name}")
        fn(a)
        a.label(f"L_end_{name}")
        a("s_endpgm")
        t = a.text()
        for p in lint(t): print("LINT", name, p, file=sys.stderr)
        out += t
    out += '.section .rodata,"a"\n'
    for (name, fn) in kernels:
        out += ".p2align 6\n" + descriptor(name)
    return out

if __name__ == "__main__":
    ks = [("k1_kernel", phase1)]
    open(sys.argv[1], "w").write(build(ks))
```

```python
from gen import *

X0, ACC2, WR2, NWR2 = 0, 128, 192, 8
vW2, vD2 = 224, 232
sSrc, sLds, sXo = 60, 61, 62

def p2_dma(srdn, stride, half, i):
    return (f"s_add_u32 m0, s{sLds}, {half*65536 + i*1024}\ns_add_u32 s{sT}, s{sSrc}, {(half*256 + i*4)*stride}\n"
            f"buffer_load_dwordx4 v{vD2+((i>>1)&1)}, s[{srdn}:{srdn+3}], s{sT} offen lds")

def p2_gemm(a, nct, srdn, stride, ld):
    for i in range(8): a(p2_dma(srdn, stride, 0, i))
    a(f"s_add_u32 s63, s{sXo}, 16384")
    for ks in range(16):
        for rt in range(2):
            r = X0 + (rt*16 + ks)*4
            so = sXo if rt == 0 else 63
            if ks and ks % 4 == 0:
                a(f"s_add_u32 s{so}, s{so}, 4096")
            a(f"buffer_load_dwordx4 v[{r}:{r+3}], v{vL16}, s[{SWS}:{SWS+3}], s{so} offen offset:{(ks%4)*1024}{ld}")
    for i in range(8): a(p2_dma(srdn, stride, 1, i))
    a("s_waitcnt vmcnt(40)\ns_barrier")
    S = Sched(lookahead=14, per_slot=2)
    n = 0
    for ks in range(16):
        if ks == 8:
            x = "\n".join(f"v_xor_b32 v{r}, 0x10000, v{r}" for r in range(vW2, vW2+nct))
            S.add_sync("s_waitcnt vmcnt(0)\ns_barrier\n" + x, drain=False)
        for ct in range(nct):
            wf = WR2 + (n % NWR2)*4; n += 1
            S.add_load((ks, ct), [f"ds_read_b64_tr_b16 v[{wf}:{wf+1}], v{vW2+ct} offset:{(ks%8)*8192}",
                                  f"ds_read_b64_tr_b16 v[{wf+2}:{wf+3}], v{vW2+ct} offset:{(ks%8)*8192+1024}"], wf)
            for rt in range(2):
                sl = S.add_slot(mfma(ACC2 + (rt*nct + ct)*4, wf, X0 + (rt*16+ks)*4), [(ks, ct)])
                if ct == 0 and rt == 0 and ks < 8:
                    S.add_pre(sl, f"s_waitcnt vmcnt({8 + 32 - 2*(ks+1)})")
    for l in S.build()[0]: a(l)

def mlp1(a, st, ld):
    a(f"s_sub_u32 s56, 7, s{sP}\ns_lshl_b32 s56, s56, 5\ns_add_u32 s56, s56, s{sH}")
    a("s_cmp_ge_u32 s56, 176\ns_cbranch_scc1 L_mlp1_done")
    a("s_and_b32 s57, s56, 15\ns_lshr_b32 s58, s56, 4")
    a(f"s_and_b32 s59, s{sW}, 3\ns_lshr_b32 s96, s{sW}, 2")
    a(f"s_lshl_b32 s97, s57, 3\ns_lshl_b32 s{sT}, s59, 1\ns_add_u32 s97, s97, s{sT}")
    a(f"s_lshl_b32 s{sXo}, s97, 14\ns_add_u32 s{sXo}, s{sXo}, {YF}")
    a(f"s_mul_i32 s{sSrc}, s{sW}, {32*2752}\ns_lshl_b32 s{sT}, s58, 8\ns_add_u32 s{sSrc}, s{sSrc}, s{sT}")
    a(f"s_lshl_b32 s{sLds}, s{sW}, 13")
    a(f"v_lshrrev_b32 v236, 4, v{vLANE}\nv_lshlrev_b32 v236, 3, v236")
    a(f"s_lshl_b32 s98, s58, 8\ns_lshl_b32 s{sT}, s96, 7\ns_add_u32 s98, s98, s{sT}")
    for ct in range(4):
        a(f"buffer_load_dwordx2 v[{240+2*ct}:{241+2*ct}], v236, s[{SB1}:{SB1+3}], s98 offen offset:{ct*32}")
    w_dma_voff(a, vD2, 2752, 236)
    a("s_mov_b32 s99, 0\ns_lshl_b32 s98, s96, 2")
    w_read_addr(a, vW2, 4, 99, 98, 236)
    a("s_waitcnt vmcnt(0)")
    for ct in range(4):
        for rt in range(2):
            r = ACC2 + (rt*4+ct)*4
            a(f"v_lshlrev_b32 v{r}, 16, v{240+2*ct}\nv_and_b32 v{r+1}, 0xffff0000, v{240+2*ct}")
            a(f"v_lshlrev_b32 v{r+2}, 16, v{241+2*ct}\nv_and_b32 v{r+3}, 0xffff0000, v{241+2*ct}")
    p2_gemm(a, 4, SW1, 2752, ld)
    import struct
    def fb(x): return "0x%08x" % struct.unpack("<I", struct.pack("<f", x))[0]
    k = -2.0 * 0.7978845608028654 * 1.4426950408889634
    a(f"s_mov_b32 s98, {fb(k*0.044715)}\nv_mov_b32 v236, {fb(k)}")
    a("s_nop 7")
    for r0 in range(ACC2, ACC2+32, 4):
        for j in range(4): a(f"v_mul_f32 v{240+j}, v{r0+j}, v{r0+j}")
        for j in range(4): a(f"v_fma_f32 v{240+j}, v{240+j}, s98, v236")
        for j in range(4): a(f"v_mul_f32 v{240+j}, v{240+j}, v{r0+j}")
        for j in range(4): a(f"v_exp_f32 v{240+j}, v{240+j}")
        for j in range(4): a(f"v_add_f32 v{240+j}, 1.0, v{240+j}")
        for j in range(4): a(f"v_rcp_f32 v{240+j}, v{240+j}")
        for j in range(4): a(f"v_mul_f32 v{r0+j}, v{r0+j}, v{240+j}")
    a(f"s_lshl_b32 s98, s58, 2\ns_lshl_b32 s{sT}, s96, 1\ns_add_u32 s98, s98, s{sT}")
    a(f"s_mul_i32 s99, s97, {AFS}\ns_lshl_b32 s{sT}, s98, 10\ns_add_u32 s99, s99, s{sT}\ns_add_u32 s99, s99, {AF + 128*1024}")
    a(f"s_add_u32 s100, s99, {AFS}")
    pack_store(a, ACC2, ACC2+4, 192, SWS, 99, 0, st)
    pack_store(a, ACC2+16, ACC2+20, 196, SWS, 100, 0, st)
    a("s_cmp_ge_u32 s98, 42\ns_cbranch_scc1 L_mlp1_nost")
    pack_store(a, ACC2+8, ACC2+12, 200, SWS, 99, 1024, st)
    pack_store(a, ACC2+24, ACC2+28, 204, SWS, 100, 1024, st)
    a.label("L_mlp1_nost")
    a("s_waitcnt lgkmcnt(0)\ns_barrier")
    a.label("L_mlp1_done")

sG, sRQ, sBlk, sN, sNW, sIt, sKs, sVs, sThr, sFloor, sMask, sRt0 = 56, 57, 58, 59, 60, 61, 62, 63, 96, 97, 98, 99
sRet = 94

def att_ids(a):
    a(f"s_lshr_b32 s{sG}, s{sW}, 2\ns_and_b32 s{sRQ}, s{sW}, 3")
    a(f"s_sub_u32 s{sBlk}, 15, s{sP}\ns_cmp_eq_u32 s{sG}, 0\ns_cselect_b32 s{sBlk}, s{sBlk}, s{sP}")
    a(f"s_lshl_b32 s{sRt0}, s{sBlk}, 3\ns_lshl_b32 s{sT}, s{sRQ}, 1\ns_add_u32 s{sRt0}, s{sRt0}, s{sT}")

def qproj(a, ld):
    att_ids(a)
    a(f"s_lshl_b32 s{sXo}, s{sRt0}, 14")
    a(f"s_lshl_b32 s{sSrc}, s{sW}, 18\ns_lshl_b32 s{sT}, s{sH}, 8\ns_add_u32 s{sSrc}, s{sSrc}, s{sT}")
    a(f"s_lshl_b32 s{sLds}, s{sW}, 13")
    w_dma_voff(a, vD2, 8192, 236)
    a("s_mov_b32 s100, 0")
    w_read_addr(a, vW2, 8, 100, 100, 236)
    for r in range(ACC2, ACC2+64): a(f"v_mov_b32 v{r}, 0")
    p2_gemm(a, 8, SWQ, 8192, ld)
    a("s_mov_b32 s100, 0x3e0293ee")
    a("s_nop 7")
    for j in range(8):
        s, d = ACC2 + 8*j, ACC2 + 4*j
        for i in range(8): a(f"v_mul_f32 v{s+i}, s100, v{s+i}")
        for i in range(4): a(f"v_cvt_pk_bf16_f32 v{d+i}, v{s+2*i}, v{s+2*i+1}")

vO, vS, vQ, vP, vF, NF, vCm, vT, vL, vTS, vK, vV, vDm, vNEG = 0, 64, 128, 160, 192, 8, 224, 232, 240, 242, 244, 245, 246, 247
def rS(b, kt, qt): return vS + b*32 + (kt*2 + qt)*4
def rP(b, ks, qt): return vP + b*16 + (ks*2 + qt)*4
def rO(dt, qt): return vO + (dt*2 + qt)*4
def rQ(qt, ds): return vQ + (qt*4 + ds)*4

_uid = [0]
def att_sync(ld):
    _uid[0] += 1; u = _uid[0]
    t = ""
    if PROF == 2:
        t += "s_memtime s[78:79]\ns_waitcnt lgkmcnt(0)\n"
    t += f"s_cmp_eq_u32 s{sG}, 0\ns_cbranch_scc1 L_sy_n{u}\n"
    t += f"s_add_u32 s{sT}, s{sIt}, 4\ns_cmp_ge_i32 s{sT}, s{sNW}\ns_cbranch_scc1 L_sy_e{u}\n"
    t += "s_waitcnt vmcnt(8)\ns_barrier\n"
    t += f"s_and_b32 s100, s{sT}, 1\ns_lshl_b32 s100, s100, 14\ns_and_b32 s101, s{sT}, 2\ns_lshl_b32 s101, s101, 15\ns_add_u32 s100, s100, s101\n"
    t += f"s_xor_b32 m0, s100, s92\ns_lshl_b32 s101, s{sT}, 14\ns_add_u32 s101, s101, s{sKs}\n"
    for i in range(4):
        t += f"buffer_load_dwordx4 v{vL16}, s[{SWS}:{SWS+3}], s101 offen offset:{i*1024}{ld} lds\n"
    t += f"s_branch L_sy_v{u}\n"
    t += f"L_sy_e{u}:\ns_waitcnt vmcnt(0)\ns_barrier\n"
    t += f"L_sy_v{u}:\ns_add_u32 s{sT}, s{sIt}, 2\ns_cmp_ge_i32 s{sT}, s{sNW}\ns_cbranch_scc1 L_sy_d{u}\n"
    t += f"s_and_b32 s100, s{sT}, 1\ns_lshl_b32 s100, s100, 14\ns_and_b32 s101, s{sT}, 2\ns_lshl_b32 s101, s101, 15\ns_add_u32 s100, s100, s101\n"
    t += f"s_add_u32 s100, s100, 32768\ns_xor_b32 m0, s100, s92\ns_lshl_b32 s101, s{sT}, 14\ns_add_u32 s101, s101, s{sVs}\n"
    for i in range(4):
        t += f"buffer_load_dwordx4 v{vL16}, s[{SWS}:{SWS+3}], s101 offen offset:{i*1024}{ld} lds\n"
    t += f"s_branch L_sy_d{u}\n"
    t += f"L_sy_n{u}:\ns_barrier\nL_sy_d{u}:"
    if PROF == 2:
        t += "\ns_memtime s[80:81]\ns_waitcnt lgkmcnt(0)\ns_sub_u32 s80, s80, s78\ns_add_u32 s82, s82, s80"
    return t

def add_qk(S, tile, cnt, tagn=""):
    b = tile & 1
    if b == 0: S.add_sync(f"v_xor_b32 v{vK}, 0x10000, v{vK}{tagn}", drain=False)
    for kt in range(4):
        for ds in range(4):
            f = vF + (cnt[0] % NF)*4; cnt[0] += 1
            S.add_load(('K', tile, kt, ds), [f"ds_read_b128 v[{f}:{f+3}], v{vK} offset:{b*16384 + (kt*4+ds)*1024}{tagn}"], f)
            for qt in range(2):
                S.add_slot(mfma(rS(b, kt, qt), f, rQ(qt, ds), vCm + 4*qt if ds == 0 else None), [('K', tile, kt, ds)])

def add_pv(S, tile, cnt):
    b = tile & 1
    if b == 0: S.add_sync(f"v_xor_b32 v{vV}, 0x10000, v{vV}", drain=False)
    for ks in range(2):
        for dt in range(8):
            f = vF + (cnt[0] % NF)*4; cnt[0] += 1
            S.add_load(('V', tile, ks, dt), [f"ds_read_b128 v[{f}:{f+3}], v{vV} offset:{32768 + b*16384 + (ks*8+dt)*1024}"], f)
            for qt in range(2):
                S.add_slot(mfma(rO(dt, qt), f, rP(b, ks, qt)), [('V', tile, ks, dt)])

def sm_pairs(b):
    out = []
    for qt in range(2):
        for ks in range(2):
            for h in range(2):
                kt = 2*ks + h
                for j in range(2):
                    s = rS(b, kt, qt) + 2*j
                    out.append((s, s+1, rP(b, ks, qt) + 2*h + j, qt, ks == 0 and h == 0 and j == 0))
    return out

def emit_blk(a, fn, tile):
    S = Sched(lookahead=10, per_slot=1)
    fn(S, tile, [0])
    for l in S.build()[0]: a(l)

def exact(a, b):
    a.label(f"L_exact{b}")
    if PROF == 2: a("s_add_u32 s83, s83, 1")
    a("s_nop 7")
    a(f"s_cmp_eq_u32 s{sMask}, 0\ns_cbranch_scc1 L_exact_nm{b}")
    els = [(kt, qt, r) for kt in range(4) for qt in range(2) for r in range(4)]
    prs = [64, 66, 68, 70]
    for i in range(len(els) + 3):
        if i < len(els):
            kt, qt, r = els[i]
            a(f"v_cmp_ge_i32 s[{prs[i%4]}:{prs[i%4]+1}], v{vDm}, {16*(kt-qt)+r}")
        if i >= 3:
            kt, qt, r = els[i-3]; s = rS(b, kt, qt) + r
            if i >= len(els): a("s_nop 0")
            a(f"v_cndmask_b32 v{s}, v{vNEG}, v{s}, s[{prs[(i-3)%4]}:{prs[(i-3)%4]+1}]")
    a.label(f"L_exact_nm{b}")
    D, Fc, U = vT, vT+2, vT+4
    for qt in range(2):
        regs = [rS(b, kt, qt) + r for kt in range(4) for r in range(4)]
        a(f"v_max3_f32 v{D+qt}, v{regs[0]}, v{regs[1]}, v{regs[2]}")
        for i in range(3, 15, 2): a(f"v_max3_f32 v{D+qt}, v{D+qt}, v{regs[i]}, v{regs[i+1]}")
        a(f"v_max_f32 v{D+qt}, v{D+qt}, v{regs[15]}")
    for sw in ("v_permlane16_swap_b32", "v_permlane32_swap_b32"):
        a(f"v_mov_b32 v{U}, v{D}\nv_mov_b32 v{U+1}, v{D+1}\ns_nop 1")
        a(f"{sw} v{D}, v{U}\n{sw} v{D+1}, v{U+1}")
        a(f"v_max_f32 v{D}, v{D}, v{U}\nv_max_f32 v{D+1}, v{D+1}, v{U+1}")
    for qt in range(2):
        a(f"v_max_f32 v{D+qt}, s{sFloor}, v{D+qt}")
        a(f"v_max_f32 v{Fc+qt}, 0, v{D+qt}")
        a(f"v_exp_f32 v{Fc+qt}, -v{Fc+qt}")
    for (s0, s1, dp, qt, first) in sm_pairs(b):
        a(f"v_sub_f32 v{U}, v{s0}, v{D+qt}\nv_sub_f32 v{U+1}, v{s1}, v{D+qt}")
        a(f"v_exp_f32 v{U}, v{U}\nv_exp_f32 v{U+1}, v{U+1}\ns_nop 0")
        if first: a(f"v_add_f32 v{vTS+qt}, v{U}, v{U+1}")
        else: a(f"v_add_f32 v{vTS+qt}, v{vTS+qt}, v{U}\nv_add_f32 v{vTS+qt}, v{vTS+qt}, v{U+1}")
        a(f"v_cvt_pk_bf16_f32 v{dp}, v{U}, v{U+1}")
    for qt in range(2):
        a(f"v_fma_f32 v{vL+qt}, v{vL+qt}, v{Fc+qt}, v{vTS+qt}")
    a(f"s_cmp_lg_u32 s{sFloor}, 0\ns_cbranch_scc1 L_exact_no{b}")
    for dt in range(8):
        for qt in range(2):
            for r in range(4): a(f"v_mul_f32 v{rO(dt,qt)+r}, v{rO(dt,qt)+r}, v{Fc+qt}")
    a.label(f"L_exact_no{b}")
    a(f"s_cmp_lg_u32 s{sMask}, 0\ns_cbranch_scc1 L_exact_ns{b}")
    for kt in range(4):
        for qt in range(2):
            for r in range(4): a(f"v_sub_f32 v{rS(b^1,kt,qt)+r}, v{rS(b^1,kt,qt)+r}, v{D+qt}")
    for qt in range(2):
        for r in range(4): a(f"v_sub_f32 v{vCm+4*qt+r}, v{vCm+4*qt+r}, v{D+qt}")
    a.label(f"L_exact_ns{b}")
    a(f"s_mov_b32 s{sThr}, 0x53800000\ns_mov_b32 s{sFloor}, 0")
    a(f"s_nop 1\ns_setpc_b64 s[{sRet}:{sRet+1}]")

def attention(a, st, ld, fused=False, hook0=None):
    if not fused:
        att_ids(a)
        a(f"s_lshl_b32 s{sN}, s{sBlk}, 1\ns_lshr_b32 s{sT}, s{sRQ}, 1\ns_add_u32 s{sN}, s{sN}, s{sT}\ns_add_u32 s{sN}, s{sN}, 1")
        a(f"s_lshl_b32 s{sT}, s{sP}, 1\ns_sub_u32 s{sNW}, 32, s{sT}")
        a(f"s_lshl_b32 s92, s{sRQ}, 12\ns_mov_b32 s84, 0")
        a(f"s_lshl_b32 s{sKs}, s{sH}, 19\ns_add_u32 s{sKs}, s{sKs}, s92\ns_add_u32 s{sVs}, s{sKs}, {VF}\ns_add_u32 s{sKs}, s{sKs}, {KF}")
        a("s_waitcnt lgkmcnt(0)\ns_barrier")
        a(f"s_cmp_eq_u32 s{sG}, 0\ns_cbranch_scc1 L_att_nod")
        for (src, t, slot) in [(sKs, 0, 0), (sKs, 1, 16384), (sKs, 2, 65536), (sVs, 0, 32768)]:
            a(f"s_add_u32 m0, s92, {slot}\ns_add_u32 s{sT}, s{src}, {t*16384}")
            for i in range(4):
                a(f"buffer_load_dwordx4 v{vL16}, s[{SWS}:{SWS+3}], s{sT} offen offset:{i*1024}{ld} lds")
        a.label("L_att_nod")
    for r in list(range(vO, vO+64)) + list(range(vCm, vCm+8)) + [vL, vL+1]: a(f"v_mov_b32 v{r}, 0")
    a(f"s_xor_b32 s{sT}, s84, 0x10000\nv_xor_b32 v{vK}, s{sT}, v{vL16}\nv_xor_b32 v{vV}, s{sT}, v{vL16}")
    a(f"v_mov_b32 v{vNEG}, 0xf149f2ca")
    a(f"s_and_b32 s{sT}, s{sRQ}, 1\ns_lshl_b32 s{sT}, s{sT}, 5")
    a(f"v_and_b32 v{vDm}, 15, v{vLANE}\nv_add_u32 v{vDm}, s{sT}, v{vDm}\nv_lshrrev_b32 v{vT}, 4, v{vLANE}\nv_lshlrev_b32 v{vT}, 2, v{vT}\nv_sub_u32 v{vDm}, v{vDm}, v{vT}")
    a(f"s_mov_b32 s{sThr}, 0x53800000\ns_mov_b32 s{sFloor}, 0xff7fffff\ns_mov_b32 s{sMask}, 0\ns_mov_b32 s{sIt}, -1")
    if not fused: a("s_waitcnt vmcnt(12)\ns_barrier")
    stamp(a, 7)
    a("s_mov_b32 s82, 0\ns_mov_b32 s83, 0")
    emit_blk(a, add_qk, 0)
    a(att_sync(ld))
    a(f"s_mov_b32 s{sIt}, 0")
    a(f"s_cmp_eq_u32 s{sN}, 1\ns_cbranch_scc1 L_att_n1")
    emit_blk(a, add_qk, 1)
    a("s_branch L_att_i0")
    a.label("L_att_n1")
    a(f"s_mov_b32 s{sMask}, 1")
    a.label("L_att_i0")
    if hook0: a(f"s_cmp_lg_u32 s{sG}, 0\ns_cbranch_scc1 L_att_h0\ns_waitcnt vmcnt(0)\nL_att_h0:")
    a(att_sync(ld))
    if hook0: a(hook0)
    a(f"s_call_b64 s[{sRet}:{sRet+1}], L_exact0")
    a(f"s_mov_b32 s{sIt}, 1")
    a(f"s_cmp_eq_u32 s{sN}, 1\ns_cbranch_scc1 L_att_last0")
    a(f"s_cmp_eq_u32 s{sN}, 2\ns_cbranch_scc1 L_att_tail1")
    S = Sched(lookahead=10, per_slot=1)
    cnt = [0]
    its = list(range(1, 8))
    for it in its:
        base = len(S.slots)
        add_qk(S, it+1, cnt, " ;@k")
        add_pv(S, it-1, cnt)
        S.add_pre(base + 32, "@SYNC")
        for i, (s0, s1, dp, qt, first) in enumerate(sm_pairs(it & 1)):
            t0 = vT + (i & 1)*2
            S.add_fill(base + 4*i, f"v_exp_f32 v{t0}, v{s0}")
            S.add_fill(base + 4*i + 1, f"v_exp_f32 v{t0+1}, v{s1}")
            if first: S.add_fill(base + 4*i + 2, f"v_add_f32 v{vTS+qt}, v{t0}, v{t0+1}")
            else: S.add_fill(base + 4*i + 2, f"v_add_f32 v{vTS+qt}, v{vTS+qt}, v{t0}\nv_add_f32 v{vTS+qt}, v{vTS+qt}, v{t0+1}")
            S.add_fill(base + 4*i + 3, f"v_cvt_pk_bf16_f32 v{dp}, v{t0}, v{t0+1}")
    segs = S.build(cuts=[64*i for i in range(len(its))])
    body1, body0 = segs[3], segs[4]
    assert body1 == segs[5] and body0 == segs[6], "attention not periodic"
    si = body0.index("@SYNC")
    for l in body0[si:]:
        if ";@k" in l: a(l)
    def steady(body, b, nxt):
        for l in body:
            a(att_sync(ld) if l == "@SYNC" else l)
        a(f"v_add_f32 v{vT+4}, v{vTS}, v{vTS+1}")
        a(f"v_cmp_nge_f32 vcc, s{sThr}, v{vT+4}")
        a(f"s_add_u32 s{sIt}, s{sIt}, 1")
        a(f"s_cbranch_vccz L_att_ok{b}")
        a(f"s_call_b64 s[{sRet}:{sRet+1}], L_exact{b}")
        a(f"s_branch L_att_af{b}")
        a.label(f"L_att_ok{b}")
        a(f"v_add_f32 v{vL}, v{vL}, v{vTS}\nv_add_f32 v{vL+1}, v{vL+1}, v{vTS+1}")
        a.label(f"L_att_af{b}")
        a(f"s_add_u32 s{sT}, s{sIt}, 2\ns_cmp_gt_u32 s{sT}, s{sN}")
    a.label("L_att_loop")
    steady(body1, 1, 0)
    a("s_cbranch_scc1 L_att_tail0")
    steady(body0, 0, 1)
    a("s_cbranch_scc0 L_att_loop")
    for b in (1, 0):
        a.label(f"L_att_tail{b}")
        a("s_waitcnt lgkmcnt(0)")
        a(att_sync(ld))
        emit_blk(a, add_pv, b ^ 1)
        a(f"s_mov_b32 s{sMask}, 1")
        a(f"s_call_b64 s[{sRet}:{sRet+1}], L_exact{b}")
        a(f"s_add_u32 s{sIt}, s{sIt}, 1")
        a.label(f"L_att_last{b}")
        a(f"s_cmp_ge_u32 s{sIt}, s{sNW}\ns_cbranch_scc1 L_att_ls{b}")
        a(att_sync(ld))
        a.label(f"L_att_ls{b}")
        emit_blk(a, add_pv, b)
        a("s_branch L_att_epi")
    exact(a, 0); exact(a, 1)
    a.label("L_att_epi")
    stamp(a, 8)
    if PROF == 2:
        a(f"v_mov_b32 v252, s82\nv_mov_b32 v253, s83\nv_mov_b32 v251, 0\ns_add_u32 s76, s76, {6*8}")
        a(f"buffer_store_dwordx2 v[252:253], v251, s[{SWS}:{SWS+3}], s76 offen")
    U = vT
    for sw in ("v_permlane16_swap_b32", "v_permlane32_swap_b32"):
        a(f"v_mov_b32 v{U}, v{vL}\nv_mov_b32 v{U+1}, v{vL+1}\ns_nop 1")
        a(f"{sw} v{vL}, v{U}\n{sw} v{vL+1}, v{U+1}")
        a(f"v_add_f32 v{vL}, v{vL}, v{U}\nv_add_f32 v{vL+1}, v{vL+1}, v{U+1}")
    a(f"v_rcp_f32 v{vL}, v{vL}\nv_rcp_f32 v{vL+1}, v{vL+1}")
    a(f"s_mul_i32 s100, s{sRt0}, {AFS}\ns_lshl_b32 s{sT}, s{sH}, 12\ns_add_u32 s100, s100, s{sT}\ns_add_u32 s100, s100, {AF}\ns_add_u32 s101, s100, {AFS}")
    n = 0
    for qt in range(2):
        for s in range(4):
            for d in (2*s, 2*s+1):
                for r in range(4): a(f"v_mul_f32 v{rO(d,qt)+r}, v{rO(d,qt)+r}, v{vL+qt}")
            pack_store(a, rO(2*s, qt), rO(2*s+1, qt), vF + (n % 4)*4, SWS, 100 + qt, s*1024, st); n += 1
    stamp(a, 9)
    a.label("L_att_idle")
    a(f"s_add_u32 s{sIt}, s{sIt}, 1")
    a(f"s_cmp_ge_u32 s{sIt}, s{sNW}\ns_cbranch_scc1 L_att_done")
    a(att_sync(ld))
    a("s_branch L_att_idle")
    a.label("L_att_done")

def phase2(a, st="", ld=""):
    stamp(a, 4)
    mlp1(a, st, ld)
    stamp(a, 5)
    qproj(a, ld)
    stamp(a, 6)
    attention(a, st, ld)
    if PROF: a("s_waitcnt vmcnt(0)")
    stamp(a, 10)

if __name__ == "__main__":
    ks = [("k1_kernel", phase1), ("k2_kernel", phase2)]
    open(sys.argv[1], "w").write(build(ks))
```

```python
from gen2 import *

CACC, CW, CX, CD = 0, 64, 96, 4
vCr, vCd = 224, 228
sCa, sCw, sCl, sRt, sCt = 56, 57, 58, 59, 60

def resolve_vm(lines):
    out = []; ops = []
    for l in lines:
        for s in l.split("\n"):
            if s.startswith("@vmwait"):
                tag = s.split()[1]
                idx = max(i for i, t in enumerate(ops) if t == tag)
                n = len(ops) - 1 - idx
                assert n <= 63
                out.append(f"s_waitcnt vmcnt({n})")
            else:
                m = re.search(r";@vm (\S+)", s)
                if m: ops.append(m.group(1))
                out.append(s)
    return out

def phase3(a, ld="", fused=None):
    stamp(a, 11)
    a(f"s_and_b32 s{sRt}, s2, 7\ns_lshl_b32 s{sRt}, s{sRt}, 2\ns_bfe_u32 s{sT}, s2, 0x20003\ns_add_u32 s{sRt}, s{sRt}, s{sT}\ns_lshr_b32 s{sCt}, s2, 5")
    a(f"s_mul_i32 s61, s{sRt}, {4*AFS}\ns_add_u32 s61, s61, {AF}\ns_lshl_b32 s{sT}, s{sW}, 10\ns_add_u32 s61, s61, s{sT}")
    a(f"s_lshl_b32 s62, s{sW}, 15\ns_lshl_b32 s{sT}, s{sCt}, 7\ns_add_u32 s62, s62, s{sT}")
    a(f"s_lshl_b32 s{sCl}, s{sW}, 14")
    t = 236
    a(f"v_lshrrev_b32 v{t}, 3, v{vLANE}\nv_lshlrev_b32 v{t}, 10, v{t}\nv_bfe_u32 v{t+1}, v{vLANE}, 1, 2\nv_lshrrev_b32 v{t+2}, 4, v{vLANE}")
    a(f"v_xor_b32 v{t+1}, v{t+1}, v{t+2}\nv_lshl_add_u32 v{t}, v{t+1}, 5, v{t}\nv_and_b32 v{t+1}, 1, v{vLANE}\nv_lshl_add_u32 v{vCd}, v{t+1}, 4, v{t}")
    a(f"v_lshrrev_b32 v{t}, 2, v{vLANE}")
    a(f"v_lshlrev_b32 v{t+1}, 7, v{t}\nv_and_b32 v{t+2}, 3, v{vLANE}\nv_lshl_add_u32 v{t+1}, v{t+2}, 3, v{t+1}\nv_add_u32 v{t+1}, s{sCl}, v{t+1}")
    a(f"v_bfe_u32 v{t}, v{t}, 1, 2")
    for ct in range(4):
        a(f"v_xor_b32 v{t+2}, {ct}, v{t}\nv_lshl_add_u32 v{vCr+ct}, v{t+2}, 5, v{t+1}")
    for r in range(CACC, CACC+64): a(f"v_mov_b32 v{r}, 0")
    a(f"s_cmp_lt_u32 s{sW}, 3\ns_cselect_b32 s63, 0, 0x40000000")
    if fused:
        vPA = fused['vPA']
        a(f"s_lshr_b32 s{sT}, s{sRt}, 1\ns_sub_u32 s100, 15, s{sT}\ns_min_u32 s{sT}, s{sT}, s100")
        a(f"v_and_b32 v{t}, 31, v{vLANE}\nv_lshl_add_u32 v{vPA}, v{t}, 3, s{sT}")
        a(fused['poll_issue']() + "\ns_waitcnt vmcnt(0)\n" + fused['poll_check'](3))
    steps = [('H', j) for j in range(6)] + [('C', j) for j in range(16)]
    def group(g):
        kind, j = steps[g]
        ops = []
        sl = g % CD
        if kind == 'H':
            ao, wo, srdn = (128 + 8*j)*1024, 8*j*32*1024, SW2
        else:
            ao, wo, srdn = 8*j*1024, 8*j*32*1024, SWO
        pre = f"s_add_u32 s{sCa}, s61, {ao}\ns_add_u32 s{sCw}, s62, {wo}\n"
        if kind == 'H' and j == 5:
            pre += f"s_add_u32 s{sCa}, s{sCa}, s63\ns_add_u32 s{sCw}, s{sCw}, s63\n"
        for i in range(4):
            ops.append((pre if i == 0 else "") + f"s_add_u32 m0, s{sCl}, {sl*4096 + i*1024}\ns_add_u32 s{sT}, s{sCw}, {i*8192}\n"
                       f"buffer_load_dwordx4 v{vCd}, s[{srdn}:{srdn+3}], s{sT} offen lds ;@vm g{g}")
        for rt in range(4):
            r = CX + sl*16 + rt*4
            pl = ""
            if fused and g == 6 and rt == 0:
                pl = fused['poll_issue']() + "\ns_waitcnt vmcnt(0)\n" + fused['poll_check'](4) + "\n"
            ops.append(pl + f"s_add_u32 s{sT}, s{sCa}, {rt*AFS}\n"
                       f"buffer_load_dwordx4 v[{r}:{r+3}], v{vL16}, s[{SWS}:{SWS+3}], s{sT} offen{ld} ;@vm g{g}")
        return ops
    lines = []
    for g in range(CD): lines += group(g)
    S = Sched(lookahead=12, per_slot=2)
    for g in range(len(steps)):
        S.add_sync(f"@vmwait g{g}", drain=False)
        base = len(S.slots)
        for ct in range(4):
            wf = CW + (g & 1)*16 + ct*4
            off = (g % CD)*4096
            S.add_load((g, ct), [f"ds_read_b64_tr_b16 v[{wf}:{wf+1}], v{vCr+ct} offset:{off}",
                                 f"ds_read_b64_tr_b16 v[{wf+2}:{wf+3}], v{vCr+ct} offset:{off+2048}"], wf)
            for rt in range(4):
                S.add_slot(mfma(CACC + (rt*4+ct)*4, wf, CX + (g % CD)*16 + rt*4), [(g, ct)])
        if g >= 1 and g - 1 + CD < len(steps):
            for i, op in enumerate(group(g - 1 + CD)):
                S.add_fill(base + (i // 2), op)
    lines += S.build()[0]
    for l in resolve_vm(lines): a(l)
    stamp(a, 12)
    a(f"v_lshrrev_b32 v{t}, 3, v{vLANE}\nv_and_b32 v{t+1}, 7, v{vLANE}\nv_lshlrev_b32 v{t+2}, 4, v{t+1}\nv_lshl_add_u32 v{t+3}, v{t}, 10, v{t+2}")
    a(f"s_lshl_b32 s61, s{sRt}, 6\ns_lshl_b32 s{sT}, s{sW}, 3\ns_add_u32 s61, s61, s{sT}\ns_lshl_b32 s61, s61, 10\ns_lshl_b32 s62, s{sCt}, 7\ns_add_u32 s61, s61, s62")
    a(f"buffer_load_dwordx4 v[100:103], v{t+3}, s[{SX}:{SX+3}], s61 offen")
    a(f"buffer_load_dwordx4 v[104:107], v{t+2}, s[{SB2}:{SB2+3}], s62 offen")
    a(f"v_and_b32 v96, 15, v{vLANE}\nv_mul_u32_u24 v96, 272, v96\nv_lshrrev_b32 v97, 4, v{vLANE}\nv_lshl_add_u32 v96, v97, 4, v96")
    a(f"s_mul_i32 s{sT}, s{sW}, 17408\nv_add_u32 v96, s{sT}, v96")
    a("s_barrier")
    for rt in range(4):
        for ct in range(4):
            r = CACC + (rt*4+ct)*4
            a(f"ds_write_b128 v96, v[{r}:{r+3}] offset:{rt*16*272 + ct*64}")
    a(f"s_mul_i32 s{sT}, s{sW}, {8*272}\nv_mul_u32_u24 v97, 272, v{t}\nv_lshl_add_u32 v97, v{t+1}, 5, v97\nv_add_u32 v97, s{sT}, v97")
    a("v_add_u32 v98, 0x11000, v97")
    a("s_waitcnt lgkmcnt(0)\ns_barrier")
    for w in range(8):
        ad = 97 if w < 4 else 98
        a(f"ds_read_b128 v[{w*8}:{w*8+3}], v{ad} offset:{(w%4)*17408}")
        a(f"ds_read_b128 v[{w*8+4}:{w*8+7}], v{ad} offset:{(w%4)*17408+16}")
    a("s_waitcnt vmcnt(0)")
    unpack8(a, 100, 108); unpack8(a, 104, 116)
    for i in range(8): a(f"v_add_f32 v{108+i}, v{108+i}, v{116+i}")
    for w in range(8):
        a(f"s_waitcnt lgkmcnt({14-2*w})")
        for i in range(8): a(f"v_add_f32 v{108+i}, v{108+i}, v{w*8+i}")
    for i in range(4): a(f"v_cvt_pk_bf16_f32 v{100+i}, v{108+2*i}, v{109+2*i}")
    a(f"buffer_store_dwordx4 v[100:103], v{t+3}, s[{SOUT}:{SOUT+3}], s61 offen")
    if PROF: a("s_waitcnt vmcnt(0)")
    stamp(a, 13)

if __name__ == "__main__":
    ks = [("k1_kernel", phase1), ("k2_kernel", phase2), ("k3_kernel", phase3)]
    open(sys.argv[1], "w").write(build(ks))
```

```python
import gen, gen2, gen3
from gen3 import *
import struct
def fb(x): return "0x%08x" % struct.unpack("<I", struct.pack("<f", x))[0]

ST, LD = " sc1", " sc1"
STAT = YF
vPA, vPV = 250, 249
sFast, sXcc, sHasM, sC1, sXn, sJ, sSpin, sNlds, sStg = 78, 77, 71, 86, 87, 89, 90, 70, 91
sAb, sWb = 68, 69

def rX(rt, ks): return (((ks + 8) % 16) * 2 + rt) * 4

_u = [0]
def uid():
    _u[0] += 1; return _u[0]
def publish(val):
    u = uid()
    return (f"s_cmp_lg_u32 s{sW}, 0\ns_cbranch_scc1 L_pub{u}\n"
            f"s_or_b32 s{sT}, s{sXcc}, {val}\nv_mov_b32 v248, s{sT}\nv_mov_b32 v251, s{sF}\n"
            f"s_mov_b64 s[72:73], exec\ns_mov_b64 exec, 1\n"
            f"buffer_store_byte v248, v251, s[{SDBG}:{SDBG+3}], 0 offen sc1\n"
            f"s_mov_b64 exec, s[72:73]\nL_pub{u}:")
def poll_issue():
    return f"buffer_load_ubyte v{vPV}, v{vPA}, s[{SDBG}:{SDBG+3}], 0 offen sc1"
def poll_check(thr):
    u = uid()
    return (f"s_mov_b32 s{sSpin}, 0\nL_pl{u}:\nv_and_b32 v{vPV}, 7, v{vPV}\nv_cmp_gt_u32 vcc, {thr}, v{vPV}\ns_cbranch_vccz L_pd{u}\n"
            f"s_add_u32 s{sSpin}, s{sSpin}, 1\ns_cmp_gt_u32 s{sSpin}, 0x40000\ns_cbranch_scc1 L_pd{u}\n"
            f"s_sleep 4\n{poll_issue()}\ns_waitcnt vmcnt(0)\ns_branch L_pl{u}\nL_pd{u}:")
def poll2_issue():
    return (f"buffer_load_dword v{vPV}, v{vPA}, s[{SDBG}:{SDBG+3}], 0 offen sc1\n"
            f"buffer_load_ubyte v246, v247, s[{SDBG}:{SDBG+3}], 0 offen sc1")
def poll2_check(tag):
    u = tag
    return (f"s_mov_b32 s{sSpin}, 0\nL_pl{u}:\nv_subrev_u32 v248, 0x01010101, v{vPV}\nv_not_b32 v{vPV}, v{vPV}\nv_and_b32 v248, v248, v{vPV}\n"
            f"v_and_b32 v248, 0x80808080, v248\nv_cmp_eq_u32 s[72:73], 0, v246\nv_cmp_ne_u32 vcc, 0, v248\ns_or_b64 vcc, vcc, s[72:73]\ns_cbranch_vccz L_pd{u}\n"
            f"s_add_u32 s{sSpin}, s{sSpin}, 1\ns_cmp_gt_u32 s{sSpin}, 0x40000\ns_cbranch_scc1 L_pd{u}\n"
            f"s_sleep 4\n{poll2_issue()}\ns_waitcnt vmcnt(0)\ns_branch L_pl{u}\nL_pd{u}:\n"
            f"v_and_b32 v246, 0xf0, v246\nv_cmp_ne_u32 vcc, s{sXcc}, v246\n"
            f"s_mov_b32 s{sFast}, 0\ns_cbranch_vccnz L_pf{u}\ns_cmp_gt_u32 s{sSpin}, 0x40000\ns_cbranch_scc1 L_pf{u}\ns_mov_b32 s{sFast}, 1\nL_pf{u}:")

def stamp_txt(idx_expr_sgpr=None, idx=0, neg=False):
    if PROF != 4: return ""
    t = "s_memrealtime s[72:73]\ns_memtime s[74:75]\n"
    t += f"s_lshl_b32 s76, s2, 3\ns_add_u32 s76, s76, s{sW}\ns_lshl_b32 s76, s76, 8\ns_add_u32 s76, s76, {STAMP + idx*8}\n"
    if idx_expr_sgpr is not None:
        t += f"s_lshl_b32 s79, s{idx_expr_sgpr}, 3\ns_sub_u32 s76, s76, s79\n"
    t += "s_waitcnt lgkmcnt(0)\nv_mov_b32 v252, s72\nv_mov_b32 v253, s74\nv_mov_b32 v251, 0\n"
    t += f"buffer_store_dwordx2 v[252:253], v251, s[{SWS}:{SWS+3}], s76 offen\n"
    return t

def ln_stats(a, x, t):
    m, s, u, r = t, t+1, t+2, t+3
    d = t + 4
    a(f"v_add_f32 v{m}, v{x}, v{x+1}\nv_add_f32 v{s}, v{x+2}, v{x+3}\nv_add_f32 v{u}, v{x+4}, v{x+5}\nv_add_f32 v{r}, v{x+6}, v{x+7}")
    a(f"v_add_f32 v{m}, v{m}, v{s}\nv_add_f32 v{u}, v{u}, v{r}\nv_add_f32 v{m}, v{m}, v{u}")
    allreduce_add(a, m, u)
    a(f"v_mul_f32 v{m}, 0x3b000000, v{m}")
    for i in range(8): a(f"v_sub_f32 v{d+i}, v{x+i}, v{m}")
    a(f"v_mul_f32 v{s}, v{d}, v{d}\nv_mul_f32 v{r}, v{d+1}, v{d+1}")
    for i in range(2, 8, 2):
        a(f"v_fmac_f32 v{s}, v{d+i}, v{d+i}\nv_fmac_f32 v{r}, v{d+i+1}, v{d+i+1}")
    a(f"v_add_f32 v{s}, v{s}, v{r}")
    allreduce_add(a, s, u)
    a(f"v_mul_f32 v{s}, 0x3b000000, v{s}")
    rbf(a, m); rbf(a, s)
    a(f"v_add_f32 v{s}, 0x3727c5ac, v{s}")
    rbf(a, s)
    a(f"v_sqrt_f32 v{s}, v{s}\ns_nop 0")
    rbf(a, s)
    a(f"v_rcp_f32 v{r}, v{s}")

def ln_compute_f(a):
    x, t, pk = 204, 212, 200
    m, s, u, r, d = t, t+1, t+2, t+3, t+4
    a(f"s_mul_i32 s57, s{sW}, 1040\ns_add_u32 s57, s57, 131072\nv_add_u32 v230, s57, v{vL16}")
    unpack8(a, 200, x)
    ln_stats(a, x, t)
    for i in range(8): a(f"v_sub_f32 v{d+i}, v{x+i}, v{m}")
    for i in range(4): a(f"v_cvt_pk_bf16_f32 v{pk+i}, v{d+2*i}, v{d+2*i+1}")
    unpack8(a, pk, d)
    for i in range(8):
        a(f"v_mul_f32 v{x+i}, v{d+i}, v{r}")
        a(f"v_fma_f32 v{d+i}, -v{x+i}, v{s}, v{d+i}")
        a(f"v_fmac_f32 v{x+i}, v{d+i}, v{r}")
    for i in range(4): a(f"v_cvt_pk_bf16_f32 v{pk+i}, v{x+2*i}, v{x+2*i+1}")
    a("ds_write_b128 v230, v[200:203]")
    unpack8(a, pk, x)
    ln_stats(a, x, t)
    a(f"v_mov_b32 v232, v{m}\nv_mov_b32 v234, 0\nv_mov_b32 v233, v{r}")
    a(f"s_lshl_b32 s57, s56, 3\ns_add_u32 s57, s57, {STAT}")
    a("s_mov_b64 s[72:73], exec\ns_mov_b64 exec, 1")
    a(f"buffer_store_dwordx2 v[232:233], v234, s[{SWS}:{SWS+3}], s57 offen{ST}")
    a("s_mov_b64 exec, s[72:73]")

def ln_store_f(a):
    t = 204
    a(f"v_and_b32 v{t}, 7, v{vLANE}\nv_mul_u32_u24 v{t+1}, 1040, v{t}\nv_lshrrev_b32 v{t+2}, 3, v{vLANE}\nv_lshl_add_u32 v{t+1}, v{t+2}, 4, v{t+1}")
    a(f"s_lshl_b32 s57, s{sW}, 7\ns_add_u32 s57, s57, 131072\nv_add_u32 v{t+1}, s57, v{t+1}")
    a(f"ds_read_b128 v[200:203], v{t+1}")
    a(f"v_lshlrev_b32 v{t+2}, 8, v{t+2}\nv_lshl_add_u32 v{t+2}, v{t}, 4, v{t+2}")
    a(f"s_lshr_b32 s57, s{sF}, 1\ns_lshl_b32 s57, s57, 14\ns_lshl_b32 s58, s{sW}, 11\ns_add_u32 s57, s57, s58\ns_and_b32 s58, s{sF}, 1\ns_lshl_b32 s58, s58, 7\ns_add_u32 s57, s57, s58")
    a("s_waitcnt lgkmcnt(0)")
    a(f"buffer_store_dwordx4 v[200:203], v{t+2}, s[{SWS}:{SWS+3}], s57 offen{ST}")

def accP1(isV, kt, dt):
    return (((kt >> 1)*4 + dt)*2 + (kt & 1))*4 if isV else (kt*4 + dt)*4

def p1_adv():
    return (f"s_add_u32 s{sStg}, s{sStg}, 1\ns_and_b32 s{sStg}, s{sStg}, 7\ns_lshl_b32 s{sT}, s{sStg}, 7\ns_add_u32 s{sAoff}, s{sAb}, s{sT}\n"
            f"s_lshl_b32 s{sT}, s{sStg}, 19\ns_add_u32 s{sWoff}, s{sWb}, s{sT}\n"
            f"s_xor_b32 s{sLdsA}, s{sLdsA}, 0x10000\ns_xor_b32 s{sLdsW}, s{sLdsW}, 0x10000")

def wq_dma(i, half):
    return (f"s_add_u32 m0, s{sNlds}, {half*65536 + i*1024}\ns_add_u32 s{sT}, s{sJ}, {(half*256 + i*4)*8192}\n"
            f"buffer_load_dwordx4 v{vDW+((i>>1)&1)}, s[{SWQ}:{SWQ+3}], s{sT} offen lds")

def touches(tag):
    t = f"s_lshr_b32 s56, s2, 3\ns_lshl_b32 s56, s56, 16\ns_lshl_b32 s57, s{sW}, 13\ns_add_u32 s56, s56, s57\n"
    t += f"buffer_load_dword v229, v226, s[{SWS}:{SWS+3}], s56 offen sc1\n"
    t += f"s_cmp_ge_u32 s{sW}, 2\ns_cbranch_scc1 L_t3{tag}\n"
    t += f"s_lshl_b32 s57, s{sW}, 21\ns_lshl_b32 s58, s{sP}, 16\ns_add_u32 s57, s57, s58\ns_lshl_b32 s58, s{sH}, 8\ns_add_u32 s57, s57, s58\n"
    t += f"buffer_load_dword v229, v228, s[{SWQ}:{SWQ+3}], s57 offen\ns_branch L_t9{tag}\n"
    t += f"L_t3{tag}:\ns_cmp_ge_u32 s{sW}, 4\ns_cbranch_scc1 L_t4{tag}\n"
    t += f"s_lshl_b32 s57, s2, 1\ns_and_b32 s58, s{sW}, 1\ns_add_u32 s57, s57, s58\ns_lshl_b32 s57, s57, 13\n"
    t += f"buffer_load_dword v229, v226, s[{SWO}:{SWO+3}], s57 offen\ns_branch L_t9{tag}\n"
    t += f"L_t4{tag}:\ns_lshl_b32 s57, s2, 13\ns_cmp_eq_u32 s{sW}, 4\ns_cbranch_scc0 L_t5{tag}\n"
    t += f"buffer_load_dword v229, v226, s[{SW1}:{SW1+3}], s57 offen\ns_branch L_t9{tag}\n"
    t += f"L_t5{tag}:\ns_cmp_eq_u32 s{sW}, 5\ns_cbranch_scc0 L_t9{tag}\n"
    t += f"buffer_load_dword v229, v226, s[{SW2}:{SW2+3}], s57 offen\n"
    t += f"L_t9{tag}:"
    return t

def p1_main_f(a, isV, tag):
    S = Sched(lookahead=24, per_slot=1)
    for st in range(8):
        for ks in range(2):
            for kt in range(8):
                for dt in range(4):
                    acc = accP1(isV, kt, dt)
                    wf = P1_W + ((st*2+ks) & 1) * 16 + dt * 4
                    af = P1_A + ((st*16 + ks*8 + kt) % P1_NA) * 4
                    S.add_slot(mfma(acc, af, wf) if isV else mfma(acc, wf, af), [('W', st, ks, dt), ('A', st, ks, kt)])
    x = "\n".join(f"v_xor_b32 v{r}, 0x10000, v{r}" for r in list(range(vAr, vAr+2)) + list(range(vWr, vWr+4)))
    pub1 = publish(1)
    for st in range(9):
        dmas = []
        if st > 0:
            sy = "s_waitcnt vmcnt(0)\n"
            if st < 7:
                sy += f"s_cmp_eq_u32 s{sCnt}, 3\ns_cbranch_scc0 L_p1a_{tag}\n" + poll2_check(tag) + f"\nL_p1a_{tag}:\n"
            sy += "s_barrier\n"
            sy += stamp_txt(sCnt, 22) if st < 7 else stamp_txt(None, 15 + st)
            if st < 7:
                dmas = [p1_dma(i) for i in range(8)]
                dmas[7] += ("\n" + p1_adv() +
                            f"\ns_cmp_eq_u32 s{sCnt}, 6\ns_cbranch_scc0 L_p1b_{tag}\n" + pub1 + f"\nL_p1b_{tag}:\n"
                            f"s_cmp_eq_u32 s{sCnt}, 4\ns_cbranch_scc0 L_p1c_{tag}\n" + poll2_issue() + f"\nL_p1c_{tag}:\n"
                            f"s_cmp_eq_u32 s{sCnt}, 3\ns_cbranch_scc0 L_p1d_{tag}\n" + touches(tag) + f"\nL_p1d_{tag}:")
            else:
                dmas = [wq_dma(i, st - 7) for i in range(8)]
            if isV or st == 8:
                sy += "\n".join(dmas) + "\n"; dmas = []
            S.add_sync(sy + (x if st < 8 else ""), drain=True, delay=3)
        if st == 8: break
        for ks in range(2):
            order = [('W', 0), ('W', 1), ('A', 0), ('W', 2), ('W', 3)] + [('A', k) for k in range(1, 8)]
            for (kind, i) in order:
                if kind == 'W':
                    wf = P1_W + ((st*2+ks) & 1) * 16 + i * 4
                    S.add_load(('W', st, ks, i),
                               [f"ds_read_b64_tr_b16 v[{wf}:{wf+1}], v{vWr+i} offset:{ks*8192}",
                                f"ds_read_b64_tr_b16 v[{wf+2}:{wf+3}], v{vWr+i} offset:{ks*8192+1024}"], wf)
                else:
                    af = P1_A + ((st*16 + ks*8 + i) % P1_NA) * 4
                    S.add_load(('A', st, ks, i), [f"ds_read_b128 v[{af}:{af+3}], v{vAr+ks} offset:{i*2048}"], af)
                if dmas and ks == 0:
                    S.add_sync(dmas.pop(0), drain=False)
                    if kind == 'W' and dmas: S.add_sync(dmas.pop(0), drain=False)
    S.ops[-1]['force_at'] = 64*7 + 44
    segs = S.build(cuts=[64*s for s in range(8)])
    body = segs[2]
    for k in range(3, 7):
        assert body == segs[k], "p1 not periodic"
    bi = [i for i, l in enumerate(body) if "s_barrier" in l][0]
    for l in body[bi+1:]:
        if l.startswith("ds_read"): a(l)
    a(f"s_mov_b32 s{sCnt}, 6")
    a.label(f"L_p1_{tag}")
    for l in body: a(l)
    a(f"s_sub_u32 s{sCnt}, s{sCnt}, 1\ns_cmp_lg_u32 s{sCnt}, 0\ns_cbranch_scc1 L_p1_{tag}")
    for l in segs[7] + segs[8]: a(l)

def phase1_f(a):
    stamp(a, 0)
    ln_issue(a)
    a("s_mov_b32 s7, s56")
    t = 236
    a(f"v_lshrrev_b32 v{t}, 3, v{vLANE}\nv_lshlrev_b32 v{t}, 10, v{t}")
    a(f"v_and_b32 v{t+1}, 7, v{vLANE}\nv_lshrrev_b32 v{t+2}, 4, v{vLANE}\nv_xor_b32 v{t+1}, v{t+1}, v{t+2}\nv_lshlrev_b32 v{t+1}, 4, v{t+1}")
    a(f"v_add_u32 v{vDA}, v{t}, v{t+1}\nv_xor_b32 v{t+1}, 64, v{t+1}\nv_add_u32 v{vDA+1}, v{t}, v{t+1}")
    w_dma_voff(a, vDW, 8192, t)
    a(f"s_lshl_b32 s{sAb}, s{sP}, 8\ns_lshl_b32 s{sT}, s{sW}, 5\ns_add_u32 s{sAb}, s{sAb}, s{sT}\ns_lshl_b32 s{sAb}, s{sAb}, 10")
    a(f"s_and_b32 s{sT}, s{sW}, 3\ns_lshl_b32 s{sWb}, s{sT}, 17\ns_lshl_b32 s{sT}, s{sH}, 8\ns_add_u32 s{sWb}, s{sWb}, s{sT}")
    a(f"s_lshl_b32 s{sLdsA}, s{sW}, 12\ns_add_u32 s{sLdsA}, s{sLdsA}, 0x10000\ns_add_u32 s{sLdsW}, s{sLdsA}, 32768")
    a(f"s_and_b32 s{sStg}, s{sH}, 3\ns_lshl_b32 s{sStg}, s{sStg}, 1\ns_add_u32 s{sStg}, s{sStg}, s{sP}\ns_add_u32 s{sStg}, s{sStg}, 7")
    a(p1_adv())
    for i in range(8): a(p1_dma(i))
    a(p1_adv())
    stamp(a, 4)
    a(f"s_getreg_b32 s{sXcc}, hwreg(HW_REG_XCC_ID, 0, 4)\ns_lshl_b32 s{sXcc}, s{sXcc}, 4")
    p1_addr(a)
    att_ids(a)
    a(f"s_lshl_b32 s{sXn}, s{sRt0}, 14")
    a(f"s_lshl_b32 s{sJ}, s{sW}, 18\ns_lshl_b32 s{sT}, s{sH}, 8\ns_add_u32 s{sJ}, s{sJ}, s{sT}")
    a(f"s_lshl_b32 s{sNlds}, s{sW}, 13")
    a(f"s_lshr_b32 s{sC1}, s{sH}, 2\ns_add_u32 s{sC1}, s{sC1}, s{sP}\ns_and_b32 s{sC1}, s{sC1}, 7\ns_and_b32 s{sT}, s{sH}, 3\ns_lshl_b32 s{sT}, s{sT}, 3\ns_add_u32 s{sC1}, s{sC1}, s{sT}")
    a(f"s_cmp_lt_u32 s{sC1}, 22\ns_cselect_b32 s{sHasM}, 1, 0")
    a(f"v_lshlrev_b32 v{vPA}, 2, v{vLANE}")
    a(f"v_and_b32 v247, 7, v{vLANE}\ns_lshl_b32 s{sT}, s{sH}, 3\nv_add_u32 v247, s{sT}, v247")
    a(f"v_lshlrev_b32 v226, 7, v{vLANE}")
    a(f"v_lshrrev_b32 v{t+1}, 4, v{vLANE}\nv_lshlrev_b32 v{t+1}, 6, v{t+1}\nv_bfe_u32 v{t+2}, v{vLANE}, 1, 3\nv_add_u32 v{t+1}, v{t+1}, v{t+2}\nv_lshlrev_b32 v{t+1}, 13, v{t+1}")
    a(f"v_and_b32 v{t+2}, 1, v{vLANE}\nv_lshl_add_u32 v228, v{t+2}, 7, v{t+1}")
    a("s_mov_b32 s56, s7")
    a("s_waitcnt vmcnt(8)")
    stamp(a, 14)
    ln_compute_f(a)
    stamp(a, 15)
    for i in range(8): a(p1_dma(i))
    a(p1_adv())
    a("s_waitcnt vmcnt(9) lgkmcnt(0)\ns_barrier")
    ln_store_f(a)
    stamp(a, 1)
    a(f"s_cmp_ge_u32 s{sW}, 4\ns_cbranch_scc1 L_p1v")
    p1_main_f(a, False, "k")
    a("s_branch L_p1_done")
    a.label("L_p1v")
    p1_main_f(a, True, "v")
    a.label("L_p1_done")
    stamp(a, 2)

def x_load(rt, ks):
    r = rX(rt, ks)
    return (f"s_add_u32 s{sT}, s{sXn}, {rt*16384 + (ks//4)*4096}\n"
            f"buffer_load_dwordx4 v[{r}:{r+3}], v{vL16}, s[{SWS}:{SWS+3}], s{sT} offen offset:{(ks%4)*1024}{LD} ;@vm x{ks}")

def kv_store(j):
    u = uid()
    base = 65 if j & 2 else 64
    ins = f"buffer_store_dwordx4 v[{4*j}:{4*j+3}], v{vL16}, s[{SWS}:{SWS+3}], s{sT} offen offset:{(j&1)*1024}"
    return (f"s_add_u32 s{sT}, s{base}, {(j>>2)*8192}\ns_cbranch_vccz L_ks{u}\n{ins} ;@vm st\ns_branch L_kd{u}\nL_ks{u}:\n{ins}{ST}\nL_kd{u}:")

def att_scalars(a):
    att_ids(a)
    a(f"s_lshl_b32 s{sN}, s{sBlk}, 1\ns_lshr_b32 s{sT}, s{sRQ}, 1\ns_add_u32 s{sN}, s{sN}, s{sT}\ns_add_u32 s{sN}, s{sN}, 1")
    a(f"s_lshl_b32 s{sT}, s{sP}, 1\ns_sub_u32 s{sNW}, 32, s{sT}")
    a(f"s_lshl_b32 s92, s{sRQ}, 12")
    a(f"s_lshl_b32 s{sKs}, s{sH}, 19\ns_add_u32 s{sKs}, s{sKs}, s92\ns_add_u32 s{sVs}, s{sKs}, {VF}\ns_add_u32 s{sKs}, s{sKs}, {KF}")

def kv_dma(src, t, slot_expr):
    s = f"s_add_u32 m0, s92, {slot_expr}\ns_add_u32 s{sT}, s{src}, {t*16384}\n"
    for i in range(4):
        s += f"buffer_load_dwordx4 v{vL16}, s[{SWS}:{SWS+3}], s{sT} offen offset:{i*1024}{LD} lds\n"
    return s
def kv_first(tag):
    return (f"s_cmp_eq_u32 s{sG}, 0\ns_cbranch_scc1 L_kvf{tag}\n" + poll_issue() + "\ns_waitcnt vmcnt(0)\n" + poll_check(2) + "\n" +
            kv_dma(sKs, 0, 0) + kv_dma(sKs, 1, 16384) + kv_dma(sVs, 0, 32768) + f"L_kvf{tag}:")
def kv_second(tag):
    return (f"s_cmp_eq_u32 s{sG}, 0\ns_cbranch_scc1 L_kvs{tag}\ns_xor_b32 s92, s92, 0x10000\n" +
            kv_dma(sKs, 2, 0) + f"s_xor_b32 s92, s92, 0x10000\nL_kvs{tag}:")

def qproj_f(a):
    a(f"s_lshl_b32 s64, s{sH}, 19\ns_lshl_b32 s{sT}, s{sP}, 16\ns_add_u32 s64, s64, s{sT}\ns_and_b32 s{sT}, s{sW}, 1\ns_lshl_b32 s{sT}, s{sT}, 15\ns_add_u32 s64, s64, s{sT}")
    a(f"s_bfe_u32 s66, s{sW}, 0x10001\ns_lshl_b32 s67, s66, 12\ns_lshl_b32 s66, s66, 11\ns_add_u32 s66, s66, {KF}\ns_add_u32 s67, s67, {VF}")
    a(f"s_cmp_lt_u32 s{sW}, 4\ns_cselect_b32 s66, s66, s67\ns_cselect_b32 s65, 2, 1\ns_lshl_b32 s65, s65, 11\ns_add_u32 s64, s64, s66\ns_add_u32 s65, s65, s64")
    for j in range(16):
        for i in range(4): a(f"v_cvt_pk_bf16_f32 v{4*j+i}, v{8*j+2*i}, v{8*j+2*i+1}")
    lines = []
    for ks in range(4):
        for rt in range(2): lines.append(x_load(rt, ks))
    b = Asm()
    att_scalars(b)
    b(f"s_lshl_b32 s84, s{sHasM}, 16\ns_add_u32 s92, s92, s84\ns_mov_b32 s100, 0")
    w_read_addr(b, vW2, 8, 100, 100, 236)
    b(f"v_and_b32 v{vPA}, 7, v{vLANE}\nv_max_u32 v{vPA}, 1, v{vPA}\nv_add_u32 v{vPA}, s{sP}, v{vPA}\nv_and_b32 v{vPA}, 7, v{vPA}\ns_lshl_b32 s{sT}, s{sH}, 3\nv_add_u32 v{vPA}, s{sT}, v{vPA}")
    t = 236
    b(f"v_lshrrev_b32 v{t}, 3, v{vLANE}\nv_mul_u32_u24 v{t}, 2752, v{t}\nv_bfe_u32 v{t+1}, v{vLANE}, 1, 2\nv_bfe_u32 v{t+2}, v{vLANE}, 4, 1")
    b(f"v_xor_b32 v{t+1}, v{t+1}, v{t+2}\nv_lshlrev_b32 v{t+1}, 5, v{t+1}\nv_and_b32 v{t+2}, 1, v{vLANE}\nv_lshl_add_u32 v{t+1}, v{t+2}, 4, v{t+1}")
    b(f"v_add_u32 v240, v{t}, v{t+1}\nv_xor_b32 v{t+1}, 64, v{t+1}\nv_add_u32 v241, v{t}, v{t+1}")
    b(f"s_mul_i32 s88, s{sW}, {64*2752}\ns_lshl_b32 s{sT}, s{sC1}, 7\ns_add_u32 s88, s88, s{sT}")
    for r in range(ACC2, ACC2+64): b(f"v_mov_b32 v{r}, 0")
    b(f"s_cmp_lg_u32 s{sFast}, 0\ns_cselect_b64 vcc, -1, 0")
    lines += [l.strip() for l in b.lines]
    lines += stamp_txt(None, 24).split("\n")
    vq = []
    for j in range(8):
        if j < 4: vq += [x_load(0, 4+j), x_load(1, 4+j)]
        vq += [kv_store(2*j), kv_store(2*j+1), x_load(0, 8+j), x_load(1, 8+j)]
    S = Sched(lookahead=14, per_slot=2)
    n = 0
    w1 = "\n".join(f"s_add_u32 m0, s{sNlds}, {i*1024}\ns_add_u32 s{sT}, s88, {i*8*2752}\n"
                   f"buffer_load_dwordx4 v{240+(i&1)}, s[{SW1}:{SW1+3}], s{sT} offen lds" for i in range(8))
    for ks in range(16):
        if ks == 8:
            x = "\n".join(f"v_xor_b32 v{r}, 0x10000, v{r}" for r in range(vW2, vW2+8))
            sy = (stamp_txt(None, 25) + "s_waitcnt vmcnt(0)\n" + stamp_txt(None, 26) + "s_barrier\n" + stamp_txt(None, 27) + publish(2) + "\n" + x + "\n" +
                  f"s_cmp_eq_u32 s{sHasM}, 0\ns_cbranch_scc1 L_q_kv\n" + w1 + "\ns_branch L_q_md\nL_q_kv:\n" + kv_first("a") + "\nL_q_md:")
            S.add_sync(sy, drain=True, delay=3)
        for ct in range(8):
            wf = WR2 + (n % NWR2)*4; n += 1
            S.add_load((ks, ct), [f"ds_read_b64_tr_b16 v[{wf}:{wf+1}], v{vW2+ct} offset:{(ks%8)*8192}",
                                  f"ds_read_b64_tr_b16 v[{wf+2}:{wf+3}], v{vW2+ct} offset:{(ks%8)*8192+1024}"], wf)
            for rt in range(2):
                sl = S.add_slot(mfma(ACC2 + (rt*8 + ct)*4, wf, rX(rt, ks)), [(ks, ct)])
                if ct == 0 and rt == 0 and ks < 8: S.add_pre(sl, f"@vmwait x{ks}")
                if vq and sl % 5 in (1, 3): S.add_fill(sl, vq.pop(0))
    assert not vq
    sy = (f"s_cmp_eq_u32 s{sHasM}, 0\ns_cbranch_scc1 L_q_e1\ns_waitcnt vmcnt(0)\ns_barrier\n" + kv_first("b") + "\ns_branch L_q_e2\n"
          "L_q_e1:\ns_waitcnt vmcnt(8)\ns_barrier\n" + kv_second("a") + "\nL_q_e2:")
    S.add_sync(stamp_txt(None, 28) + sy + "\n" + stamp_txt(None, 29), drain=True, delay=3)
    S.ops[-1]['force_at'] = 256 - 6
    lines += S.build()[0]
    for l in resolve_vm(lines): a(l)
    a("s_mov_b32 s100, 0x3e0293ee")
    a("s_nop 7")
    for j in range(8):
        s, d = ACC2 + 8*j, ACC2 + 4*j
        for i in range(8): a(f"v_mul_f32 v{s+i}, s100, v{s+i}")
        for i in range(4): a(f"v_cvt_pk_bf16_f32 v{d+i}, v{s+2*i}, v{s+2*i+1}")

MACC, MCS, MONE = 160, 232, 236
def mlp1_f(a):
    a(f"s_cmp_eq_u32 s{sHasM}, 0\ns_cbranch_scc1 L_mlp1_done")
    t = 240
    a(f"v_lshrrev_b32 v{t}, 4, v{vLANE}\nv_bfe_u32 v{t+1}, v{vLANE}, 2, 2\nv_lshl_add_u32 v{t+2}, v{t}, 3, v{t+1}\nv_lshlrev_b32 v{t+2}, 7, v{t+2}")
    a(f"v_and_b32 v{t+3}, 3, v{vLANE}\nv_lshl_add_u32 v{t+2}, v{t+3}, 3, v{t+2}")
    a(f"v_and_b32 v{t}, 1, v{t}\nv_lshrrev_b32 v{t+1}, 1, v{t+1}\nv_lshl_or_b32 v{t}, v{t}, 1, v{t+1}")
    for ct in range(4):
        a(f"v_xor_b32 v{t+3}, {ct}, v{t}\nv_lshl_add_u32 v{vW2+ct}, v{t+3}, 5, v{t+2}")
    for r in list(range(MACC, MACC+32)) + list(range(MCS, MCS+4)): a(f"v_mov_b32 v{r}, 0")
    for r in range(MONE, MONE+4): a(f"v_mov_b32 v{r}, 0x3f803f80")
    S = Sched(lookahead=14, per_slot=2)
    n = 0
    for ks in range(16):
        for ct in range(4):
            wf = WR2 + (n % NWR2)*4; n += 1
            S.add_load((ks, ct), [f"ds_read_b64_tr_b16 v[{wf}:{wf+1}], v{vW2+ct} offset:{ks*4096}",
                                  f"ds_read_b64_tr_b16 v[{wf+2}:{wf+3}], v{vW2+ct} offset:{ks*4096+512}"], wf)
            u = uid()
            cs = f"s_cmp_eq_u32 s{sW}, {(ks>>3)*4+ct}\ns_cbranch_scc0 L_cs{u}\n" + mfma(MCS, wf, MONE) + f"\nL_cs{u}:\n"
            for rt in range(2):
                sl = S.add_slot((cs if rt == 1 else "") + mfma(MACC + (rt*4 + ct)*4, wf, rX(rt, ks)), [(ks, ct)])
                if ks == 1 and ct == 0:
                    r = rX(rt, 0)
                    S.add_fill(sl, f"v_and_b32 v{t}, 15, v{vLANE}\nv_lshlrev_b32 v{t}, 3, v{t}\ns_lshl_b32 s{sT}, s{sRt0}, 7\ns_add_u32 s{sT}, s{sT}, {STAT}\n"
                                   f"buffer_load_dwordx2 v[{r}:{r+1}], v{t}, s[{SWS}:{SWS+3}], s{sT} offen offset:{rt*128}{LD}")
                if ks == 2 and rt == 0:
                    r = rX(0, 1) + 2*ct
                    S.add_fill(sl, f"v_lshrrev_b32 v{t+1}, 4, v{vLANE}\nv_lshlrev_b32 v{t+1}, 3, v{t+1}\ns_lshl_b32 s{sT}, s{sC1}, 7\n"
                                   f"buffer_load_dwordx2 v[{r}:{r+1}], v{t+1}, s[{SB1}:{SB1+3}], s{sT} offen offset:{ct*32}")
    for l in S.build()[0]: a(l)
    a(f"v_lshrrev_b32 v{t}, 4, v{vLANE}\nv_lshlrev_b32 v{t}, 4, v{t}\ns_lshl_b32 s{sT}, s{sW}, 6\ns_add_u32 s{sT}, s{sT}, 131072\nv_add_u32 v{t+1}, s{sT}, v{t}\nv_add_u32 v{t}, 131072, v{t}")
    a("s_nop 3")
    a(f"ds_write_b128 v{t+1}, v[{MCS}:{MCS+3}]")
    a("s_waitcnt vmcnt(0) lgkmcnt(0)\ns_barrier")
    a(kv_second("b"))
    C = 96
    for i in range(8): a(f"ds_read_b128 v[{C+4*i}:{C+4*i+3}], v{t} offset:{i*64}")
    k = -2.0 * 0.7978845608028654 * 1.4426950408889634
    a(f"s_mov_b32 s100, {fb(k*0.044715)}\nv_mov_b32 v{t+2}, {fb(k)}")
    Bq = rX(0, 1); Bf = 80
    for ct in range(4):
        a(f"v_lshlrev_b32 v{Bf+4*ct}, 16, v{Bq+2*ct}\nv_and_b32 v{Bf+1+4*ct}, 0xffff0000, v{Bq+2*ct}")
        a(f"v_lshlrev_b32 v{Bf+2+4*ct}, 16, v{Bq+1+2*ct}\nv_and_b32 v{Bf+3+4*ct}, 0xffff0000, v{Bq+1+2*ct}")
    a("s_waitcnt lgkmcnt(0)")
    for i in range(16): a(f"v_add_f32 v{C+i}, v{C+i}, v{C+16+i}")
    for q in range(8):
        rt, ct = q >> 2, q & 3
        r0 = MACC + 4*q; T = 0 + (q & 1)*4; m2 = rX(rt, 0); r2 = m2 + 1
        for j in range(4): a(f"v_fma_f32 v{r0+j}, -v{m2}, v{C+4*ct+j}, v{r0+j}")
        for j in range(4): a(f"v_fma_f32 v{r0+j}, v{r0+j}, v{r2}, v{Bf+4*ct+j}")
        for j in range(4): a(f"v_mul_f32 v{T+j}, v{r0+j}, v{r0+j}")
        for j in range(4): a(f"v_fma_f32 v{T+j}, v{T+j}, s100, v{t+2}")
        for j in range(4): a(f"v_mul_f32 v{T+j}, v{T+j}, v{r0+j}")
        for j in range(4): a(f"v_exp_f32 v{T+j}, v{T+j}")
        for j in range(4): a(f"v_add_f32 v{T+j}, 1.0, v{T+j}")
        for j in range(4): a(f"v_rcp_f32 v{T+j}, v{T+j}")
        for j in range(4): a(f"v_mul_f32 v{r0+j}, v{r0+j}, v{T+j}")
    a(f"s_mul_i32 s100, s{sRt0}, {AFS}\ns_lshl_b32 s{sT}, s{sC1}, 11\ns_add_u32 s100, s100, s{sT}\ns_add_u32 s100, s100, {AF + 128*1024}")
    a(f"s_add_u32 s101, s100, {AFS}")
    pack_store(a, MACC, MACC+4, 192, SWS, 100, 0, ST)
    pack_store(a, MACC+16, MACC+20, 196, SWS, 101, 0, ST)
    a(f"s_cmp_ge_u32 s{sC1}, 21\ns_cbranch_scc1 L_mlp1_done")
    pack_store(a, MACC+8, MACC+12, 200, SWS, 100, 1024, ST)
    pack_store(a, MACC+24, MACC+28, 204, SWS, 101, 1024, ST)
    a.label("L_mlp1_done")

def fused(a):
    phase1_f(a)
    qproj_f(a)
    stamp(a, 5)
    mlp1_f(a)
    stamp(a, 6)
    gen2.attention(a, ST, LD, fused=True, hook0=publish(3))
    a("s_waitcnt vmcnt(0)\ns_barrier")
    a(publish(4))
    stamp(a, 10)
    gen3.phase3(a, LD, fused=dict(poll_issue=poll_issue, poll_check=poll_check, vPA=vPA, v2=True))

def build1(fn):
    head = open("cdna_kernels/" + NAME + ".s.ref").read().split("; Override launch")[0]
    name = NAME + "_kernel"
    out = head + "; @launch grid=(256,1,1) block=(512,1,1) lds=163840\n"
    out += '.amdgcn_target "amdgcn-amd-amdhsa--gfx950"\n.text\n'
    a = Asm()
    kernel_header(a, name)
    setup(a, "L_end")
    fn(a)
    a.label("L_end")
    a("s_endpgm")
    t = a.text()
    for p in lint(t): print("LINT", p, file=sys.stderr)
    out += t + '.section .rodata,"a"\n.p2align 6\n' + descriptor(name)
    return out

if __name__ == "__main__":
    open(sys.argv[1], "w").write(build1(fused))
```

```python
import re

class Asm:
    def __init__(self):
        self.lines = []
    def __call__(self, s):
        for l in s.split("\n"):
            l = l.strip()
            if l:
                self.lines.append("    " + l)
    def label(self, l):
        self.lines.append(l + ":")
    def raw(self, s):
        self.lines.append(s)
    def comment(self, s):
        self.lines.append("    ; " + s)
    def text(self):
        return "\n".join(self.lines) + "\n"

def vr(b, n=4):
    return f"v[{b}:{b+n-1}]" if n > 1 else f"v{b}"
def sr(b, n=4):
    return f"s[{b}:{b+n-1}]" if n > 1 else f"s{b}"

def mfma(d, a, b, c=None):
    cs = vr(d) if c is None else (c if isinstance(c, str) else vr(c))
    return f"v_mfma_f32_16x16x32_bf16 {vr(d)}, {vr(a)}, {vr(b)}, {cs}"

class Sched:
    def __init__(self, lookahead=10, per_slot=1, wait_group=1):
        self.slots = []
        self.ops = []
        self.fill = {}
        self.pre = {}
        self.LA = lookahead
        self.per_slot = per_slot
        self.WG = wait_group
    def add_slot(self, text, needs=()):
        self.slots.append((text, list(needs)))
        return len(self.slots) - 1
    def add_load(self, fid, instrs, regs):
        self.ops.append(dict(kind='ld', id=fid, instrs=list(instrs), regs=regs))
    def add_sync(self, text, drain=True, delay=0):
        self.ops.append(dict(kind='sync', text=text, drain=drain, delay=delay))
    def add_fill(self, slot, text):
        self.fill.setdefault(slot, []).append(text)
    def add_pre(self, slot, text):
        self.pre.setdefault(slot, []).append(text)
    def build(self, cuts=()):
        first_use, last_use = {}, {}
        for i, (_, needs) in enumerate(self.slots):
            for f in needs:
                first_use.setdefault(f, i)
                last_use[f] = i
        occ = {}
        nslots = len(self.slots)
        for op in self.ops:
            if op['kind'] == 'ld':
                prev = occ.get(op['regs'])
                op['earliest'] = 0 if prev is None else last_use.get(prev, -1) + 1
                occ[op['regs']] = op['id']
                op['need'] = first_use.get(op['id'], nslots + 10**6)
        nxt = nslots + 10**6
        for op in reversed(self.ops):
            if op['kind'] == 'ld':
                nxt = op['need']
            else:
                op['need'] = nxt
                op['earliest'] = 0
                if 'force_at' in op: op['need'] = op['force_at'] + self.LA
        segs = [[]]
        out = []
        qi = 0
        sub = 0
        last_issue_pos = [-10**6]
        def emit(t):
            segs[-1].append(t)
        def issue_one(pos):
            nonlocal qi, sub
            op = self.ops[qi]
            if op['kind'] == 'sync':
                if op['drain'] and out:
                    emit("s_waitcnt lgkmcnt(0)")
                    out.clear()
                emit(op['text'])
                qi += 1; sub = 0
                return
            emit(op['instrs'][sub]); out.append(op['id'])
            last_issue_pos[0] = pos
            sub += 1
            if sub == len(op['instrs']):
                qi += 1; sub = 0
        def can_issue(pos):
            if qi >= len(self.ops): return False
            op = self.ops[qi]
            if op['earliest'] > pos: return False
            if op['need'] - self.LA > pos: return False
            if op['kind'] == 'sync' and pos < last_issue_pos[0] + op['delay']: return False
            return True
        while can_issue(0):
            issue_one(0)
        for i, (text, needs) in enumerate(self.slots):
            if i in cuts:
                segs.append([])
            while qi < len(self.ops) and self.ops[qi]['need'] <= i:
                assert self.ops[qi]['earliest'] <= i, "ring too small"
                issue_one(i)
            for t in self.pre.get(i, []):
                emit(t)
            idx = max([k for k, tag in enumerate(out) if tag in needs], default=-1)
            if idx >= 0 and self.WG > 1:
                more = set()
                for j in range(i, min(nslots, (i // self.WG + 1) * self.WG)):
                    more |= set(self.slots[j][1])
                idx = max(k for k, tag in enumerate(out) if tag in more)
            if idx >= 0:
                n = len(out) - 1 - idx
                emit(f"s_waitcnt lgkmcnt({min(n, 15)})")
                if n > 15: n = 15
                del out[:len(out) - n]
            emit(text)
            k = 0
            while k < self.per_slot and can_issue(i + 1):
                issue_one(i + 1); k += 1
            for t in self.fill.get(i, []):
                emit(t)
        while qi < len(self.ops):
            issue_one(nslots)
        return segs

_reg = re.compile(r"\b([vs])(\d+)\b|\b([vs])\[(\d+):(\d+)\]|\b(vcc|m0|exec)\b")
def _regs(tok):
    out = []
    for m in _reg.finditer(tok):
        if m.group(1): out.append((m.group(1), int(m.group(2))))
        elif m.group(3): out += [(m.group(3), r) for r in range(int(m.group(4)), int(m.group(5)) + 1)]
        else: out.append((m.group(6), 0))
    return out
TRANS = ("v_exp_", "v_log_", "v_rcp_", "v_rsq_", "v_sqrt_", "v_sin_", "v_cos_")
def lint(text):
    probs = []
    hist = []
    pos = 0
    for ln, line in enumerate(text.split("\n"), 1):
        s = line.split(";")[0].strip()
        if not s or s.startswith(".") : continue
        if s.endswith(":"):
            continue
        parts = s.split(None, 1)
        op = parts[0]; args = parts[1] if len(parts) > 1 else ""
        ops_ = [a.strip() for a in args.split(",")]
        if op == "s_nop":
            pos += int(args, 0) + 1; continue
        if op in ("s_endpgm", "s_branch", "s_setpc_b64"):
            hist = []; pos += 1; continue
        w, r = [], []
        kind = 's'
        if op.startswith("v_mfma"):
            kind = 'mfma'; w = _regs(ops_[0]); r = _regs(",".join(ops_[1:]))
            rab = _regs(ops_[1]) + _regs(ops_[2]); rc = _regs(ops_[3])
        elif op.startswith("v_cmp"):
            kind = 'valu'; w = _regs(ops_[0]); r = _regs(",".join(ops_[1:]))
        elif op.startswith("v_permlane"):
            kind = 'perm'; w = _regs(args); r = _regs(args)
        elif op.startswith("v_readlane") or op.startswith("v_readfirstlane"):
            kind = 'rdl'; w = _regs(ops_[0]); r = _regs(",".join(ops_[1:]))
        elif op.startswith("v_"):
            kind = 'trans' if op.startswith(TRANS) else 'valu'
            w = _regs(ops_[0]); r = _regs(",".join(ops_[1:]))
            if op.startswith("v_fmac") : r += w
            if op.startswith("v_cndmask") and len(ops_) == 3: r.append(('vcc', 0))
            if "_co_" in op: w += _regs(ops_[1])
            if "dpp" in op: kind = 'dpp'
        elif op.startswith("ds_read"):
            kind = 'ds'; w = _regs(ops_[0]); r = _regs(",".join(ops_[1:]))
        elif op.startswith("ds_"):
            kind = 'ds'; r = _regs(args)
        elif op.startswith("buffer_load"):
            kind = 'vmem'
            if " lds" in s: r = _regs(args) + [('m0', 0)]; kind = 'dma'
            else: w = _regs(ops_[0]); r = _regs(",".join(ops_[1:]))
        elif op.startswith("buffer_store"):
            kind = 'store4' if "x4" in op or "x3" in op else 'vmem'; r = _regs(args); sdata = _regs(ops_[0])
        elif op.startswith("s_"):
            kind = 's'
            if ops_ and ops_[0] and not op.startswith(("s_cmp", "s_cbranch", "s_waitcnt", "s_barrier", "s_sleep", "s_setprio", "s_bitcmp")):
                w = _regs(ops_[0])
            r = _regs(",".join(ops_[1:]))
        isvalu = kind in ('valu', 'trans', 'perm', 'rdl', 'dpp')
        for (p0, k0, w0, r0, l0, x0) in hist:
            d = pos - p0 - 1
            def need(n, why):
                if d < n: probs.append(f"line {ln}: '{s}' needs {n} ws after line {l0} ({why}), has {d}")
            sw = set(w0)
            k0valu = k0 in ('valu', 'trans', 'perm', 'rdl', 'dpp')
            if k0valu and kind == 'mfma' and sw & set(r): need(2, "valu->mfma")
            if k0 == 'mfma':
                if kind == 'mfma':
                    if sw & set(rab): need(8, "mfmaD->mfmaAB")
                    if sw & set(rc) and set(rc) != sw: need(6, "mfmaD->partial C")
                elif kind != 's' and (sw & set(r) or sw & set(w)): need(8, "mfmaD->use")
                if isvalu and set(x0) & set(w) and not (sw & set(w)): need(3, "mfma C WAR")
            if k0 == 'trans' and isvalu and kind != 'trans' and sw & set(r): need(1, "trans")
            if k0 == 'trans' and kind == 'mfma' and sw & set(r): need(2, "trans->mfma")
            if k0valu and kind in ('perm', 'dpp') and sw & set(r): need(2, "valu->perm/dpp")
            if k0valu and kind == 'rdl' and {x for x in sw if x[0] == 'v'} & set(r): need(1, "valu->readlane")
            sg = {x for x in sw if x[0] in ('s', 'vcc')}
            if k0valu and isvalu and sg & set(r): need(2, "valu sgpr->valu")
            if k0valu and kind in ('vmem', 'dma', 'store4') and sg & set(r): need(5, "valu sgpr->vmem")
            if k0 == 's' and kind == 'dma' and ('m0', 0) in sw: need(1, "m0->dma")
            if k0 == 'store4' and isvalu and set(x0) & set(w): need(2, "store data WAR")
            if k0 == 'store4' and kind in ('ds', 'vmem', 'mfma') and set(x0) & set(w): need(1, "store data WAR")
        extra = rc if kind == 'mfma' else (sdata if kind == 'store4' else [])
        hist.append((pos, kind, w, r, ln, extra))
        pos += 1
        hist = [h for h in hist if pos - h[0] < 14]
    return probs
```

```python
from gen2 import *
vL2 = 248
def rL(b, qt): return (vL if b == 0 else 238) + qt

def dma_block(ld):
    o = []
    for (add, src, voff) in ((4, sKs, 0), (2, sVs, 32768)):
        pre = (f"s_add_u32 s{sT}, s{sIt}, {add}\ns_and_b32 s100, s{sT}, 1\ns_lshl_b32 s100, s100, 14\ns_and_b32 s101, s{sT}, 2\ns_lshl_b32 s101, s101, 15\ns_add_u32 s100, s100, s101\n"
               + (f"s_add_u32 s100, s100, {voff}\n" if voff else "") +
               f"s_xor_b32 m0, s100, s92\ns_lshl_b32 s101, s{sT}, 14\ns_add_u32 s101, s101, s{src}\ns_cmp_lt_i32 s{sT}, s{sNW}\ns_cselect_b32 s101, s101, 0x40000000\n")
        for i in range(4):
            o.append((pre if i == 0 else "") + f"buffer_load_dwordx4 v{vL16}, s[{SWS}:{SWS+3}], s101 offen offset:{i*1024}{ld} lds")
    return o

_u2 = [0]
def sync_any(ld):
    _u2[0] += 1; u = _u2[0]
    return (f"s_cmp_eq_u32 s{sG}, 0\ns_cbranch_scc1 L_sa{u}\ns_waitcnt vmcnt(8)\ns_barrier\n" + "\n".join(dma_block(ld)) +
            f"\ns_branch L_sb{u}\nL_sa{u}:\ns_barrier\nL_sb{u}:")

def exact2(a, b):
    a.label(f"L_exact{b}")
    a("s_nop 7")
    a(f"s_cmp_eq_u32 s{sMask}, 0\ns_cbranch_scc1 L_exact_nm{b}")
    els = [(kt, qt, r) for kt in range(4) for qt in range(2) for r in range(4)]
    prs = [64, 66, 68, 70]
    for i in range(len(els) + 3):
        if i < len(els):
            kt, qt, r = els[i]
            a(f"v_cmp_ge_i32 s[{prs[i%4]}:{prs[i%4]+1}], v{vDm}, {16*(kt-qt)+r}")
        if i >= 3:
            kt, qt, r = els[i-3]; s = rS(b, kt, qt) + r
            if i >= len(els): a("s_nop 0")
            a(f"v_cndmask_b32 v{s}, v{vNEG}, v{s}, s[{prs[(i-3)%4]}:{prs[(i-3)%4]+1}]")
    a.label(f"L_exact_nm{b}")
    D, Fc, U = vT, vT+2, vT+4
    for qt in range(2):
        regs = [rS(b, kt, qt) + r for kt in range(4) for r in range(4)]
        a(f"v_max3_f32 v{D+qt}, v{regs[0]}, v{regs[1]}, v{regs[2]}")
        for i in range(3, 15, 2): a(f"v_max3_f32 v{D+qt}, v{D+qt}, v{regs[i]}, v{regs[i+1]}")
        a(f"v_max_f32 v{D+qt}, v{D+qt}, v{regs[15]}")
    for sw in ("v_permlane16_swap_b32", "v_permlane32_swap_b32"):
        a(f"v_mov_b32 v{U}, v{D}\nv_mov_b32 v{U+1}, v{D+1}\ns_nop 1")
        a(f"{sw} v{D}, v{U}\n{sw} v{D+1}, v{U+1}")
        a(f"v_max_f32 v{D}, v{D}, v{U}\nv_max_f32 v{D+1}, v{D+1}, v{U+1}")
    for qt in range(2):
        a(f"v_max_f32 v{D+qt}, s{sFloor}, v{D+qt}")
        a(f"v_max_f32 v{Fc+qt}, 0, v{D+qt}")
        a(f"v_exp_f32 v{Fc+qt}, -v{Fc+qt}")
    for (s0, s1, dp, qt, first) in sm_pairs(b):
        a(f"v_sub_f32 v{U}, v{s0}, v{D+qt}\nv_sub_f32 v{U+1}, v{s1}, v{D+qt}")
        a(f"v_exp_f32 v{U}, v{U}\nv_exp_f32 v{U+1}, v{U+1}\ns_nop 0")
        if first: a(f"v_add_f32 v{vTS+qt}, v{U}, v{U+1}")
        else: a(f"v_add_f32 v{vTS+qt}, v{vTS+qt}, v{U}\nv_add_f32 v{vTS+qt}, v{vTS+qt}, v{U+1}")
        a(f"v_cvt_pk_bf16_f32 v{dp}, v{U}, v{U+1}")
    for qt in range(2):
        a(f"v_fma_f32 v{rL(b^1,qt)}, v{rL(b,qt)}, v{Fc+qt}, v{vTS+qt}")
    a(f"s_cmp_lg_u32 s{sFloor}, 0\ns_cbranch_scc1 L_exact_no{b}")
    a(f"v_max_f32 v{U}, v{D}, v{D+1}\nv_cmp_lt_f32 vcc, 0, v{U}\ns_cbranch_vccz L_exact_no{b}")
    for dt in range(8):
        for qt in range(2):
            for r in range(4): a(f"v_mul_f32 v{rO(dt,qt)+r}, v{rO(dt,qt)+r}, v{Fc+qt}")
    a.label(f"L_exact_no{b}")
    a(f"s_cmp_lg_u32 s{sMask}, 0\ns_cbranch_scc1 L_exact_ns{b}")
    for kt in range(4):
        for qt in range(2):
            for r in range(4): a(f"v_sub_f32 v{rS(b^1,kt,qt)+r}, v{rS(b^1,kt,qt)+r}, v{D+qt}")
    for qt in range(2):
        for r in range(4): a(f"v_sub_f32 v{vCm+4*qt+r}, v{vCm+4*qt+r}, v{D+qt}")
    a.label(f"L_exact_ns{b}")
    a(f"s_mov_b32 s{sFloor}, 0")
    a(f"s_nop 1\ns_setpc_b64 s[{sRet}:{sRet+1}]")

def emit_blk2(a, fn, tile):
    S = Sched(lookahead=14, per_slot=1, wait_group=4)
    fn(S, tile, [0])
    for l in S.build()[0]: a(l)

def attention2(a, st, ld, hook0=None, idle_hook=None):
    for r in list(range(vO, vO+64)) + list(range(vCm, vCm+8)) + [rL(0,0), rL(0,1)]: a(f"v_mov_b32 v{r}, 0")
    a(f"s_xor_b32 s{sT}, s84, 0x10000\nv_xor_b32 v{vK}, s{sT}, v{vL16}\nv_xor_b32 v{vV}, s{sT}, v{vL16}")
    a(f"v_mov_b32 v{vNEG}, 0xf149f2ca")
    a(f"s_and_b32 s{sT}, s{sRQ}, 1\ns_lshl_b32 s{sT}, s{sT}, 5")
    a(f"v_and_b32 v{vDm}, 15, v{vLANE}\nv_add_u32 v{vDm}, s{sT}, v{vDm}\nv_lshrrev_b32 v{vT}, 4, v{vLANE}\nv_lshlrev_b32 v{vT}, 2, v{vT}\nv_sub_u32 v{vDm}, v{vDm}, v{vT}")
    a(f"s_mov_b32 s{sThr}, 0x53800000\ns_mov_b32 s{sFloor}, 0xff7fffff\ns_mov_b32 s{sMask}, 0\ns_mov_b32 s{sIt}, -1")
    stamp(a, 7)
    emit_blk2(a, add_qk, 0)
    a(sync_any(ld))
    a(f"s_mov_b32 s{sIt}, 0")
    a(f"s_cmp_eq_u32 s{sN}, 1\ns_cbranch_scc1 L_att_n1")
    emit_blk2(a, add_qk, 1)
    a("s_branch L_att_i0")
    a.label("L_att_n1")
    a(f"s_mov_b32 s{sMask}, 1")
    a.label("L_att_i0")
    if hook0: a(f"s_cmp_lg_u32 s{sG}, 0\ns_cbranch_scc1 L_att_h0\ns_waitcnt vmcnt(0)\nL_att_h0:")
    a(sync_any(ld))
    if hook0: a(hook0)
    a(f"s_call_b64 s[{sRet}:{sRet+1}], L_exact0")
    a(f"s_mov_b32 s{sIt}, 1")
    a(f"s_cmp_eq_u32 s{sN}, 1\ns_cbranch_scc1 L_att_last0")
    a(f"s_cmp_eq_u32 s{sN}, 2\ns_cbranch_scc1 L_att_tail1")
    slow = []
    def steady_loop(g):
        S = Sched(lookahead=14, per_slot=1, wait_group=8)
        cnt = [0]
        its = list(range(1, 8))
        for it in its:
            base = len(S.slots); b = it & 1
            add_qk(S, it+1, cnt, " ;@k")
            add_pv(S, it-1, cnt)
            if g == 0: S.add_pre(base + 32, "s_barrier")
            else:
                S.add_pre(base + 32, "s_waitcnt vmcnt(8)\ns_barrier")
                for i, o in enumerate(dma_block(ld)): S.add_fill(base + 32 + i, o)
            pos = [int(round(i * 3.75)) for i in range(17)]
            for i, (s0, s1, dp, qt, first) in enumerate(sm_pairs(b)):
                t0 = vT + (i & 1)*2; p = base + pos[i]; w = pos[i+1] - pos[i]
                S.add_fill(p, f"v_exp_f32 v{t0}, v{s0}")
                S.add_fill(p + 1, f"v_exp_f32 v{t0+1}, v{s1}")
                if first: S.add_fill(p + 2, f"v_add_f32 v{vTS+qt}, v{t0}, v{t0+1}")
                else: S.add_fill(p + 2, f"v_add_f32 v{vTS+qt}, v{vTS+qt}, v{t0}\nv_add_f32 v{vTS+qt}, v{vTS+qt}, v{t0+1}")
                S.add_fill(p + w - 1, f"v_cvt_pk_bf16_f32 v{dp}, v{t0}, v{t0+1}")
            S.add_fill(base + 60, f"v_add_f32 v{vT+4}, v{vTS}, v{vTS+1}\nv_add_f32 v{rL(b^1,0)}, v{rL(b,0)}, v{vTS}")
            S.add_fill(base + 61, f"v_cmp_nge_f32 vcc, s{sThr}, v{vT+4}\nv_add_f32 v{rL(b^1,1)}, v{rL(b,1)}, v{vTS+1}")
            S.add_fill(base + 62, f"s_add_u32 s{sIt}, s{sIt}, 1\ns_add_u32 s{sT}, s{sIt}, 2\ns_cmp_gt_u32 s{sT}, s{sN}")
        segs = S.build(cuts=[64*i for i in range(len(its))])
        body1, body0 = segs[3], segs[4]
        assert body1 == segs[5] and body0 == segs[6], "attention not periodic"
        si = [i for i, l in enumerate(body0) if "s_barrier" in l][0]
        for l in body0[si:]:
            if ";@k" in l: a(l)
        a.raw(".p2align 6")
        a.label(f"L_att_loop{g}")
        for body, b in ((body1, 1), (body0, 0)):
            for l in body: a(l)
            a(f"s_cbranch_vccnz L_att_sl{g}{b}")
            a.label(f"L_att_bk{g}{b}")
            a("s_cbranch_scc1 L_att_tail0" if b == 1 else f"s_cbranch_scc0 L_att_loop{g}")
            slow.append(f"L_att_sl{g}{b}:\ns_call_b64 s[{sRet}:{sRet+1}], L_exact{b}\ns_add_u32 s{sT}, s{sIt}, 2\ns_cmp_gt_u32 s{sT}, s{sN}\ns_branch L_att_bk{g}{b}")
        a("s_branch L_att_tail1")
    a(f"s_cmp_lg_u32 s{sG}, 0\ns_cbranch_scc1 L_att_g1")
    steady_loop(0)
    a.label("L_att_g1")
    a("s_setprio 1")
    steady_loop(1)
    for t in slow: a(t)
    for b in (1, 0):
        a.label(f"L_att_tail{b}")
        a("s_waitcnt lgkmcnt(0)")
        a(sync_any(ld))
        emit_blk2(a, add_pv, b ^ 1)
        a(f"s_mov_b32 s{sMask}, 1")
        a(f"s_call_b64 s[{sRet}:{sRet+1}], L_exact{b}")
        a(f"s_add_u32 s{sIt}, s{sIt}, 1")
        a.label(f"L_att_last{b}")
        a(f"s_cmp_ge_u32 s{sIt}, s{sNW}\ns_cbranch_scc1 L_att_ls{b}")
        a(sync_any(ld))
        a.label(f"L_att_ls{b}")
        emit_blk2(a, add_pv, b)
        if b == 0: a(f"v_mov_b32 v{rL(0,0)}, v{rL(1,0)}\nv_mov_b32 v{rL(0,1)}, v{rL(1,1)}")
        a("s_branch L_att_epi")
    exact2(a, 0); exact2(a, 1)
    a.label("L_att_epi")
    stamp(a, 8)
    U = vT
    for sw in ("v_permlane16_swap_b32", "v_permlane32_swap_b32"):
        a(f"v_mov_b32 v{U}, v{vL}\nv_mov_b32 v{U+1}, v{vL+1}\ns_nop 1")
        a(f"{sw} v{vL}, v{U}\n{sw} v{vL+1}, v{U+1}")
        a(f"v_add_f32 v{vL}, v{vL}, v{U}\nv_add_f32 v{vL+1}, v{vL+1}, v{U+1}")
    a(f"v_rcp_f32 v{vL}, v{vL}\nv_rcp_f32 v{vL+1}, v{vL+1}")
    a(f"s_mul_i32 s100, s{sRt0}, {AFS}\ns_lshl_b32 s{sT}, s{sH}, 12\ns_add_u32 s100, s100, s{sT}\ns_add_u32 s100, s100, {AF}\ns_add_u32 s101, s100, {AFS}")
    n = 0
    for qt in range(2):
        for s in range(4):
            for d in (2*s, 2*s+1):
                for r in range(4): a(f"v_mul_f32 v{rO(d,qt)+r}, v{rO(d,qt)+r}, v{vL+qt}")
            pack_store(a, rO(2*s, qt), rO(2*s+1, qt), vF + (n % 4)*4, SWS, 100 + qt, s*1024, st); n += 1
    stamp(a, 9)
    a("s_mov_b32 s79, 0")
    a.label("L_att_idle")
    if idle_hook: a(idle_hook)
    a(f"s_add_u32 s{sIt}, s{sIt}, 1")
    a(f"s_cmp_ge_u32 s{sIt}, s{sNW}\ns_cbranch_scc1 L_att_done")
    a(sync_any(ld))
    a("s_branch L_att_idle")
    a.label("L_att_done")
    a("s_setprio 0")
```

```python
import gen, gen2, gen3
from gen3 import *
import struct
def fb(x): return "0x%08x" % struct.unpack("<I", struct.pack("<f", x))[0]

ST, LD = " sc1", " sc1"
STAT = YF
vPA, vPV = 250, 249
sFast, sXcc, sHasM, sC1, sXn, sJ, sSpin, sNlds, sStg = 78, 77, 71, 86, 87, 89, 90, 70, 91
sAb, sWb = 68, 69

wq_dma_override = None
p1_extra = None
def rX(rt, ks): return (((ks + 8) % 16) * 2 + rt) * 4

_u = [0]
def uid():
    _u[0] += 1; return _u[0]
FLG = 3*MB
def publish(val):
    u = uid()
    if val == 1:
        st = f"v_mov_b32 v251, s{sF}\n", f"buffer_store_byte v248, v251, s[{SDBG}:{SDBG+3}], 0 offen sc1\n"
    else:
        st = f"s_lshl_b32 s{sT}, s{sF}, 7\ns_add_u32 s{sT}, s{sT}, {FLG}\nv_mov_b32 v251, s{sT}\n", f"buffer_store_dword v248, v251, s[{SWS}:{SWS+3}], 0 offen sc1\n"
    return (f"s_cmp_lg_u32 s{sW}, 0\ns_cbranch_scc1 L_pub{u}\n"
            f"v_mov_b32 v248, {val}\n" + st[0] +
            f"s_mov_b64 s[72:73], exec\ns_mov_b64 exec, 1\n" + st[1] +
            f"s_mov_b64 exec, s[72:73]\nL_pub{u}:")
def flag_addr():
    return f"v_lshlrev_b32 v{vPA}, 7, v{vPA}\nv_add_u32 v{vPA}, {FLG}, v{vPA}"
def poll_issue():
    return f"buffer_load_dword v{vPV}, v{vPA}, s[{SWS}:{SWS+3}], 0 offen sc1"
def poll_check(thr):
    u = uid()
    return (f"s_mov_b32 s{sSpin}, 0\nL_pl{u}:\nv_cmp_gt_u32 vcc, {thr}, v{vPV}\ns_cbranch_vccz L_pd{u}\n"
            f"s_add_u32 s{sSpin}, s{sSpin}, 1\ns_cmp_gt_u32 s{sSpin}, 0x40000\ns_cbranch_scc1 L_pd{u}\n"
            f"s_sleep 4\n{poll_issue()}\ns_waitcnt vmcnt(0)\ns_branch L_pl{u}\nL_pd{u}:")
def poll_one(thr, wave=0):
    u = uid()
    return (f"s_cmp_lg_u32 s{sW}, {wave}\ns_cbranch_scc1 L_po{u}\n" + poll_issue() + "\ns_waitcnt vmcnt(0)\n" + poll_check(thr) + f"\nL_po{u}:")
def poll2_issue():
    return f"buffer_load_dword v{vPV}, v{vPA}, s[{SDBG}:{SDBG+3}], 0 offen sc1"
def poll2_check(tag):
    u = tag
    return (f"s_mov_b32 s{sSpin}, 0\nL_pl{u}:\nv_cmp_ne_u32 vcc, 0x01010101, v{vPV}\ns_cbranch_vccz L_pd{u}\n"
            f"s_add_u32 s{sSpin}, s{sSpin}, 1\ns_cmp_gt_u32 s{sSpin}, 0x40000\ns_cbranch_scc1 L_pd{u}\n"
            f"s_sleep 8\n{poll2_issue()}\ns_waitcnt vmcnt(0)\ns_branch L_pl{u}\nL_pd{u}:")

def stamp_txt(idx_expr_sgpr=None, idx=0, force=False):
    if PROF != (5 if force else 4): return ""
    t = "s_memrealtime s[72:73]\ns_memtime s[74:75]\n"
    t += f"s_lshl_b32 s76, s2, 3\ns_add_u32 s76, s76, s{sW}\ns_lshl_b32 s76, s76, 8\ns_add_u32 s76, s76, {STAMP + idx*8}\n"
    if idx_expr_sgpr is not None:
        t += f"s_lshl_b32 s79, s{idx_expr_sgpr}, 3\ns_sub_u32 s76, s76, s79\n"
    t += "s_waitcnt lgkmcnt(0)\nv_mov_b32 v252, s72\nv_mov_b32 v253, s74\nv_mov_b32 v251, 0\n"
    t += f"buffer_store_dwordx2 v[252:253], v251, s[{SWS}:{SWS+3}], s76 offen\n"
    return t

def ln_stats(a, x, t):
    m, s, u, r = t, t+1, t+2, t+3
    d = t + 4
    a(f"v_add_f32 v{m}, v{x}, v{x+1}\nv_add_f32 v{s}, v{x+2}, v{x+3}\nv_add_f32 v{u}, v{x+4}, v{x+5}\nv_add_f32 v{r}, v{x+6}, v{x+7}")
    a(f"v_add_f32 v{m}, v{m}, v{s}\nv_add_f32 v{u}, v{u}, v{r}\nv_add_f32 v{m}, v{m}, v{u}")
    allreduce_add(a, m, u)
    a(f"v_mul_f32 v{m}, 0x3b000000, v{m}")
    for i in range(8): a(f"v_sub_f32 v{d+i}, v{x+i}, v{m}")
    a(f"v_mul_f32 v{s}, v{d}, v{d}\nv_mul_f32 v{r}, v{d+1}, v{d+1}")
    for i in range(2, 8, 2):
        a(f"v_fmac_f32 v{s}, v{d+i}, v{d+i}\nv_fmac_f32 v{r}, v{d+i+1}, v{d+i+1}")
    a(f"v_add_f32 v{s}, v{s}, v{r}")
    allreduce_add(a, s, u)
    a(f"v_mul_f32 v{s}, 0x3b000000, v{s}")
    rbf(a, m); rbf(a, s)
    a(f"v_add_f32 v{s}, 0x3727c5ac, v{s}")
    rbf(a, s)
    a(f"v_sqrt_f32 v{s}, v{s}\ns_nop 0")
    rbf(a, s)
    a(f"v_rcp_f32 v{r}, v{s}")

def ln_compute_f(a):
    x, t, pk = 204, 212, 200
    m, s, u, r, d = t, t+1, t+2, t+3, t+4
    a(f"s_mul_i32 s57, s{sW}, 1040\ns_add_u32 s57, s57, 131072\nv_add_u32 v230, s57, v{vL16}")
    unpack8(a, 200, x)
    ln_stats(a, x, t)
    for i in range(8): a(f"v_sub_f32 v{d+i}, v{x+i}, v{m}")
    for i in range(4): a(f"v_cvt_pk_bf16_f32 v{pk+i}, v{d+2*i}, v{d+2*i+1}")
    unpack8(a, pk, d)
    for i in range(8):
        a(f"v_mul_f32 v{x+i}, v{d+i}, v{r}")
        a(f"v_fma_f32 v{d+i}, -v{x+i}, v{s}, v{d+i}")
        a(f"v_fmac_f32 v{x+i}, v{d+i}, v{r}")
    for i in range(4): a(f"v_cvt_pk_bf16_f32 v{pk+i}, v{x+2*i}, v{x+2*i+1}")
    a("ds_write_b128 v230, v[200:203]")
    unpack8(a, pk, x)
    ln_stats(a, x, t)
    a(f"v_mov_b32 v232, v{m}\nv_mov_b32 v234, 0\nv_mov_b32 v233, v{r}")
    a(f"s_lshl_b32 s57, s56, 3\ns_add_u32 s57, s57, {STAT}")
    a("s_mov_b64 s[72:73], exec\ns_mov_b64 exec, 1")
    a(f"buffer_store_dwordx2 v[232:233], v234, s[{SWS}:{SWS+3}], s57 offen{ST}")
    a("s_mov_b64 exec, s[72:73]")

def ln_store_f(a):
    t = 204
    a(f"v_and_b32 v{t}, 7, v{vLANE}\nv_mul_u32_u24 v{t+1}, 1040, v{t}\nv_lshrrev_b32 v{t+2}, 3, v{vLANE}\nv_lshl_add_u32 v{t+1}, v{t+2}, 4, v{t+1}")
    a(f"s_lshl_b32 s57, s{sW}, 7\ns_add_u32 s57, s57, 131072\nv_add_u32 v{t+1}, s57, v{t+1}")
    a(f"ds_read_b128 v[200:203], v{t+1}")
    a(f"v_lshlrev_b32 v{t+2}, 8, v{t+2}\nv_lshl_add_u32 v{t+2}, v{t}, 4, v{t+2}")
    a(f"s_lshr_b32 s57, s{sF}, 1\ns_lshl_b32 s57, s57, 14\ns_lshl_b32 s58, s{sW}, 11\ns_add_u32 s57, s57, s58\ns_and_b32 s58, s{sF}, 1\ns_lshl_b32 s58, s58, 7\ns_add_u32 s57, s57, s58")
    a("s_waitcnt lgkmcnt(0)")
    a(f"buffer_store_dwordx4 v[200:203], v{t+2}, s[{SWS}:{SWS+3}], s57 offen{ST}")

def accP1(isV, kt, dt):
    return (((kt >> 1)*4 + dt)*2 + (kt & 1))*4 if isV else (kt*4 + dt)*4

def p1_adv():
    return (f"s_add_u32 s{sStg}, s{sStg}, 1\ns_and_b32 s{sStg}, s{sStg}, 7\ns_lshl_b32 s{sT}, s{sStg}, 7\ns_add_u32 s{sAoff}, s{sAb}, s{sT}\n"
            f"s_lshl_b32 s{sT}, s{sStg}, 19\ns_add_u32 s{sWoff}, s{sWb}, s{sT}\n"
            f"s_xor_b32 s{sLdsA}, s{sLdsA}, 0x10000\ns_xor_b32 s{sLdsW}, s{sLdsW}, 0x10000")

def wq_dma(i, half):
    return (f"s_add_u32 m0, s{sNlds}, {half*65536 + i*1024}\ns_add_u32 s{sT}, s{sJ}, {(half*256 + i*4)*8192}\n"
            f"buffer_load_dwordx4 v{vDW+((i>>1)&1)}, s[{SWQ}:{SWQ+3}], s{sT} offen lds")

def touches(tag):
    t = f"s_and_b32 s56, s{sCnt}, 3\ns_cmp_lg_u32 s56, s{sW}\ns_cbranch_scc1 L_t1{tag}\ns_cmp_lt_u32 s{sCnt}, 2\ns_cbranch_scc1 L_t1{tag}\n"
    t += f"s_lshl_b32 s57, s{sP}, 2\ns_and_b32 s58, s{sH}, 3\ns_add_u32 s57, s57, s58\ns_lshl_b32 s57, s57, 16\ns_sub_u32 s58, 9, s{sCnt}\ns_lshl_b32 s58, s58, 7\ns_add_u32 s57, s57, s58\n"
    t += f"buffer_load_dword v229, v227, s[{SCKV}:{SCKV+3}], s57 offen\n"
    t += f"L_t1{tag}:\ns_add_u32 s56, s56, 4\ns_cmp_lg_u32 s56, s{sW}\ns_cbranch_scc1 L_t3{tag}\ns_cmp_lt_u32 s{sCnt}, 4\ns_cbranch_scc1 L_t3{tag}\n"
    t += f"s_cmp_eq_u32 s{sCnt}, 4\ns_cbranch_scc1 L_t2{tag}\n"
    t += f"s_and_b32 s57, s{sCnt}, 1\ns_lshl_b32 s57, s57, 21\ns_lshl_b32 s58, s{sP}, 16\ns_add_u32 s57, s57, s58\ns_lshl_b32 s58, s{sH}, 8\ns_add_u32 s57, s57, s58\n"
    t += f"buffer_load_dword v229, v228, s[{SWQ}:{SWQ+3}], s57 offen\ns_branch L_t3{tag}\n"
    t += f"L_t2{tag}:\ns_lshl_b32 s57, s2, 13\nbuffer_load_dword v229, v226, s[{SW1}:{SW1+3}], s57 offen\n"
    t += f"L_t3{tag}:\ns_lshr_b32 s56, s{sW}, 2\ns_add_u32 s56, s56, 2\ns_cmp_lg_u32 s56, s{sCnt}\ns_cbranch_scc1 L_t9{tag}\n"
    t += f"s_lshr_b32 s56, s2, 3\ns_lshl_b32 s56, s56, 16\ns_lshl_b32 s57, s{sW}, 13\ns_add_u32 s56, s56, s57\n"
    t += f"buffer_load_dword v229, v226, s[{SWS}:{SWS+3}], s56 offen sc1\n"
    t += f"L_t9{tag}:"
    return t

def p1_main_f(a, isV, tag):
    S = Sched(lookahead=24, per_slot=1)
    for st in range(8):
        for ks in range(2):
            for kt in range(8):
                for dt in range(4):
                    acc = accP1(isV, kt, dt)
                    wf = P1_W + ((st*2+ks) & 1) * 16 + dt * 4
                    af = P1_A + ((st*16 + ks*8 + kt) % P1_NA) * 4
                    S.add_slot(mfma(acc, af, wf) if isV else mfma(acc, wf, af), [('W', st, ks, dt), ('A', st, ks, kt)])
    x = "\n".join(f"v_xor_b32 v{r}, 0x10000, v{r}" for r in list(range(vAr, vAr+2)) + list(range(vWr, vWr+4)))
    pub1 = publish(1)
    for st in range(9):
        dmas = []
        if st > 0:
            sy = "s_waitcnt vmcnt(0)\n"
            if st < 7:
                if not isV: sy += f"s_lshl_b32 s{sT}, s{sW}, 4\ns_add_u32 s{sT}, s{sT}, s{sCnt}\ns_cmp_eq_u32 s{sT}, 3\ns_cbranch_scc0 L_p1a_{tag}\n" + poll2_check(tag) + f"\nL_p1a_{tag}:\n"
            sy += "s_barrier\n"
            sy += stamp_txt(sCnt, 22) if st < 7 else stamp_txt(None, 15 + st)
            if st < 7:
                dmas = [p1_dma(i) for i in range(8)]
                dmas[7] += ("\n" + p1_adv() +
                            f"\ns_cmp_eq_u32 s{sCnt}, 6\ns_cbranch_scc0 L_p1b_{tag}\n" + pub1 + f"\nL_p1b_{tag}:\n"
                            f"s_lshl_b32 s{sT}, s{sW}, 4\ns_add_u32 s{sT}, s{sT}, s{sCnt}\ns_cmp_eq_u32 s{sT}, 4\ns_cbranch_scc0 L_p1c_{tag}\n" + poll2_issue() + f"\nL_p1c_{tag}:\n"
                            + touches(tag))
            else:
                dmas = [wq_dma(i, st - 7) for i in range(8)] if wq_dma_override is None else [wq_dma_override(i, st - 7) for i in range(6)]
            if isV or st == 8:
                sy += "\n".join(dmas) + "\n"; dmas = []
            S.add_sync(sy + (x if st < 8 else ""), drain=True, delay=3)
        if st == 8: break
        for ks in range(2):
            order = [('W', 0), ('W', 1), ('A', 0), ('W', 2), ('W', 3)] + [('A', k) for k in range(1, 8)]
            for (kind, i) in order:
                if kind == 'W':
                    wf = P1_W + ((st*2+ks) & 1) * 16 + i * 4
                    S.add_load(('W', st, ks, i),
                               [f"ds_read_b64_tr_b16 v[{wf}:{wf+1}], v{vWr+i} offset:{ks*8192}",
                                f"ds_read_b64_tr_b16 v[{wf+2}:{wf+3}], v{vWr+i} offset:{ks*8192+1024}"], wf)
                else:
                    af = P1_A + ((st*16 + ks*8 + i) % P1_NA) * 4
                    S.add_load(('A', st, ks, i), [f"ds_read_b128 v[{af}:{af+3}], v{vAr+ks} offset:{i*2048}"], af)
                if dmas and ks == 0:
                    S.add_sync(dmas.pop(0), drain=False)
                    if kind == 'W' and dmas: S.add_sync(dmas.pop(0), drain=False)
    S.ops[-1]['force_at'] = 64*7 + 44
    segs = S.build(cuts=[64*s for s in range(8)])
    body = segs[2]
    for k in range(3, 7):
        assert body == segs[k], "p1 not periodic"
    bi = [i for i, l in enumerate(body) if "s_barrier" in l][0]
    for l in body[bi+1:]:
        if l.startswith("ds_read"): a(l)
    a(f"s_mov_b32 s{sCnt}, 6")
    a.label(f"L_p1_{tag}")
    for l in body: a(l)
    a(f"s_sub_u32 s{sCnt}, s{sCnt}, 1\ns_cmp_lg_u32 s{sCnt}, 0\ns_cbranch_scc1 L_p1_{tag}")
    for l in segs[7] + segs[8]: a(l)

def phase1_f(a):
    stamp(a, 0)
    ln_issue(a)
    a("s_mov_b32 s7, s56")
    t = 236
    a(f"v_lshrrev_b32 v{t}, 3, v{vLANE}\nv_lshlrev_b32 v{t}, 10, v{t}")
    a(f"v_and_b32 v{t+1}, 7, v{vLANE}\nv_lshrrev_b32 v{t+2}, 4, v{vLANE}\nv_xor_b32 v{t+1}, v{t+1}, v{t+2}\nv_lshlrev_b32 v{t+1}, 4, v{t+1}")
    a(f"v_add_u32 v{vDA}, v{t}, v{t+1}\nv_xor_b32 v{t+1}, 64, v{t+1}\nv_add_u32 v{vDA+1}, v{t}, v{t+1}")
    w_dma_voff(a, vDW, 8192, t)
    a(f"s_lshl_b32 s{sAb}, s{sP}, 8\ns_lshl_b32 s{sT}, s{sW}, 5\ns_add_u32 s{sAb}, s{sAb}, s{sT}\ns_lshl_b32 s{sAb}, s{sAb}, 10")
    a(f"s_and_b32 s{sT}, s{sW}, 3\ns_lshl_b32 s{sWb}, s{sT}, 17\ns_lshl_b32 s{sT}, s{sH}, 8\ns_add_u32 s{sWb}, s{sWb}, s{sT}")
    a(f"s_lshl_b32 s{sLdsA}, s{sW}, 12\ns_add_u32 s{sLdsA}, s{sLdsA}, 0x10000\ns_add_u32 s{sLdsW}, s{sLdsA}, 32768")
    a(f"s_mov_b32 s{sStg}, 7")
    a(p1_adv())
    for i in range(8): a(p1_dma(i))
    a(p1_adv())
    stamp(a, 4)
    p1_addr(a)
    att_ids(a)
    a(f"s_lshl_b32 s{sXn}, s{sRt0}, 14")
    a(f"s_lshl_b32 s{sJ}, s{sW}, 18\ns_lshl_b32 s{sT}, s{sH}, 8\ns_add_u32 s{sJ}, s{sJ}, s{sT}")
    a(f"s_lshl_b32 s{sNlds}, s{sW}, 13")
    a(f"s_lshr_b32 s{sC1}, s{sH}, 2\ns_add_u32 s{sC1}, s{sC1}, s{sP}\ns_and_b32 s{sC1}, s{sC1}, 7\ns_and_b32 s{sT}, s{sH}, 3\ns_lshl_b32 s{sT}, s{sT}, 3\ns_add_u32 s{sC1}, s{sC1}, s{sT}")
    a(f"s_cmp_lt_u32 s{sC1}, 22\ns_cselect_b32 s{sHasM}, 1, 0")
    if p1_extra: p1_extra(a)
    a(f"v_lshlrev_b32 v{vPA}, 2, v{vLANE}")
    a(f"v_lshlrev_b32 v226, 7, v{vLANE}\nv_lshlrev_b32 v227, 10, v{vLANE}")
    a(f"v_lshrrev_b32 v{t+1}, 4, v{vLANE}\nv_lshlrev_b32 v{t+1}, 6, v{t+1}\nv_bfe_u32 v{t+2}, v{vLANE}, 1, 3\nv_add_u32 v{t+1}, v{t+1}, v{t+2}\nv_lshlrev_b32 v{t+1}, 13, v{t+1}")
    a(f"v_and_b32 v{t+2}, 1, v{vLANE}\nv_lshl_add_u32 v228, v{t+2}, 7, v{t+1}")
    a("s_mov_b32 s56, s7")
    a("s_waitcnt vmcnt(8)")
    stamp(a, 14)
    ln_compute_f(a)
    stamp(a, 15)
    for i in range(8): a(p1_dma(i))
    a(p1_adv())
    a("s_waitcnt vmcnt(9) lgkmcnt(0)\ns_barrier")
    ln_store_f(a)
    a(publish(0))
    a(f"s_bitcmp1_b32 s{sW}, 1\ns_cbranch_scc0 L_tw")
    a(f"s_and_b32 s57, s{sW}, 1\ns_lshl_b32 s57, s57, 21\ns_lshl_b32 s58, s{sP}, 16\ns_add_u32 s57, s57, s58\ns_lshl_b32 s58, s{sH}, 8\ns_add_u32 s57, s57, s58")
    a(f"buffer_load_dword v229, v228, s[{SWKV}:{SWKV+3}], s57 offen")
    a.label("L_tw")
    a(f"s_cmp_lg_u32 s{sW}, 0\ns_cbranch_scc1 L_tw2")
    a(f"s_lshl_b32 s57, s{sP}, 2\ns_and_b32 s58, s{sH}, 3\ns_add_u32 s57, s57, s58\ns_lshl_b32 s57, s57, 16\ns_add_u32 s57, s57, 256")
    a(f"buffer_load_dword v229, v227, s[{SCKV}:{SCKV+3}], s57 offen")
    a.label("L_tw2")
    stamp(a, 1)
    a(f"s_cmp_ge_u32 s{sW}, 4\ns_cbranch_scc1 L_p1v")
    p1_main_f(a, False, "k")
    a("s_branch L_p1_done")
    a.label("L_p1v")
    p1_main_f(a, True, "v")
    a.label("L_p1_done")
    stamp(a, 2)

def x_load(rt, ks):
    r = rX(rt, ks)
    return (f"s_add_u32 s{sT}, s{sXn}, {rt*16384 + (ks//4)*4096}\n"
            f"buffer_load_dwordx4 v[{r}:{r+3}], v{vL16}, s[{SWS}:{SWS+3}], s{sT} offen offset:{(ks%4)*1024}{LD} ;@vm x{ks}")

def kv_store(j):
    base = 65 if j & 2 else 64
    return (f"s_add_u32 s{sT}, s{base}, {(j>>2)*8192}\n"
            f"buffer_store_dwordx4 v[{4*j}:{4*j+3}], v{vL16}, s[{SWS}:{SWS+3}], s{sT} offen offset:{(j&1)*1024}{ST} ;@vm st")

def att_scalars(a):
    att_ids(a)
    a(f"s_lshl_b32 s{sN}, s{sBlk}, 1\ns_lshr_b32 s{sT}, s{sRQ}, 1\ns_add_u32 s{sN}, s{sN}, s{sT}\ns_add_u32 s{sN}, s{sN}, 1")
    a(f"s_lshl_b32 s{sT}, s{sP}, 1\ns_sub_u32 s{sNW}, 32, s{sT}")
    a(f"s_lshl_b32 s92, s{sRQ}, 12")
    a(f"s_lshl_b32 s{sKs}, s{sH}, 19\ns_add_u32 s{sKs}, s{sKs}, s92\ns_add_u32 s{sVs}, s{sKs}, {VF}\ns_add_u32 s{sKs}, s{sKs}, {KF}")

def kv_dma(src, t, slot_expr):
    s = f"s_add_u32 m0, s92, {slot_expr}\ns_add_u32 s{sT}, s{src}, {t*16384}\n"
    for i in range(4):
        s += f"buffer_load_dwordx4 v{vL16}, s[{SWS}:{SWS+3}], s{sT} offen offset:{i*1024}{LD} lds\n"
    return s
def kv_first(tag):
    return (f"s_cmp_eq_u32 s{sG}, 0\ns_cbranch_scc1 L_kvf{tag}\n" +
            kv_dma(sKs, 0, 0) + kv_dma(sKs, 1, 16384) + kv_dma(sVs, 0, 32768) + f"L_kvf{tag}:")
def kv_second(tag):
    return (f"s_cmp_eq_u32 s{sG}, 0\ns_cbranch_scc1 L_kvs{tag}\ns_xor_b32 s92, s92, 0x10000\n" +
            kv_dma(sKs, 2, 0) + f"s_xor_b32 s92, s92, 0x10000\nL_kvs{tag}:")

def qproj_f(a):
    a(f"s_lshl_b32 s64, s{sH}, 19\ns_lshl_b32 s{sT}, s{sP}, 16\ns_add_u32 s64, s64, s{sT}\ns_and_b32 s{sT}, s{sW}, 1\ns_lshl_b32 s{sT}, s{sT}, 15\ns_add_u32 s64, s64, s{sT}")
    a(f"s_bfe_u32 s66, s{sW}, 0x10001\ns_lshl_b32 s67, s66, 12\ns_lshl_b32 s66, s66, 11\ns_add_u32 s66, s66, {KF}\ns_add_u32 s67, s67, {VF}")
    a(f"s_cmp_lt_u32 s{sW}, 4\ns_cselect_b32 s66, s66, s67\ns_cselect_b32 s65, 2, 1\ns_lshl_b32 s65, s65, 11\ns_add_u32 s64, s64, s66\ns_add_u32 s65, s65, s64")
    for j in range(16):
        for i in range(4): a(f"v_cvt_pk_bf16_f32 v{4*j+i}, v{8*j+2*i}, v{8*j+2*i+1}")
    lines = []
    for ks in range(4):
        for rt in range(2): lines.append(x_load(rt, ks))
    b = Asm()
    att_scalars(b)
    b(f"s_lshl_b32 s84, s{sHasM}, 16\ns_add_u32 s92, s92, s84\ns_mov_b32 s100, 0")
    w_read_addr(b, vW2, 8, 100, 100, 236)
    b(f"v_and_b32 v{vPA}, 7, v{vLANE}\nv_max_u32 v{vPA}, 1, v{vPA}\nv_add_u32 v{vPA}, s{sP}, v{vPA}\nv_and_b32 v{vPA}, 7, v{vPA}\ns_lshl_b32 s{sT}, s{sH}, 3\nv_add_u32 v{vPA}, s{sT}, v{vPA}")
    t = 236
    b(f"v_lshrrev_b32 v{t}, 3, v{vLANE}\nv_mul_u32_u24 v{t}, 2752, v{t}\nv_bfe_u32 v{t+1}, v{vLANE}, 1, 2\nv_bfe_u32 v{t+2}, v{vLANE}, 4, 1")
    b(f"v_xor_b32 v{t+1}, v{t+1}, v{t+2}\nv_lshlrev_b32 v{t+1}, 5, v{t+1}\nv_and_b32 v{t+2}, 1, v{vLANE}\nv_lshl_add_u32 v{t+1}, v{t+2}, 4, v{t+1}")
    b(f"v_add_u32 v240, v{t}, v{t+1}\nv_xor_b32 v{t+1}, 64, v{t+1}\nv_add_u32 v241, v{t}, v{t+1}")
    b(f"s_mul_i32 s88, s{sW}, {64*2752}\ns_lshl_b32 s{sT}, s{sC1}, 7\ns_add_u32 s88, s88, s{sT}\ns_cmp_lg_u32 s{sHasM}, 0\ns_cselect_b32 s88, s88, 0x40000000")
    b(f"s_cmp_lg_u32 s{sFast}, 0\ns_cselect_b64 vcc, -1, 0")
    lines += [l.strip() for l in b.lines]
    lines += stamp_txt(None, 24).split("\n")
    fills = {}
    for ks in range(12):
        fills.setdefault(16*ks + 9, []).append(x_load(0, 4+ks)); fills.setdefault(16*ks + 13, []).append(x_load(1, 4+ks))
    for i in range(16):
        fills.setdefault(int(i*11.3) + 1, []).append(kv_store(i))
    for j in range(8): assert int((2*j+1)*11.3) + 1 + 2 <= 16*(4+j) + 9
    for i in range(8):
        u = uid()
        fills.setdefault(16*12 + 1 + 4*i, []).append(
            f"s_add_u32 m0, s{sNlds}, {i*1024}\ns_add_u32 s{sT}, s88, {i*8*2752}\n"
            f"buffer_load_dwordx4 v{240+(i&1)}, s[{SW1}:{SW1+3}], s{sT} offen lds ;@vm w1")
    S = Sched(lookahead=14, per_slot=2)
    n = 0
    for ks in range(16):
        if ks == 8:
            x = "\n".join(f"v_xor_b32 v{r}, 0x10000, v{r}" for r in range(vW2, vW2+8))
            S.add_sync(stamp_txt(None, 25) + "s_barrier\n" + stamp_txt(None, 27) + x, drain=True, delay=3)
        for ct in range(8):
            wf = WR2 + (n % NWR2)*4; n += 1
            S.add_load((ks, ct), [f"ds_read_b64_tr_b16 v[{wf}:{wf+1}], v{vW2+ct} offset:{(ks%8)*8192}",
                                  f"ds_read_b64_tr_b16 v[{wf+2}:{wf+3}], v{vW2+ct} offset:{(ks%8)*8192+1024}"], wf)
            for rt in range(2):
                sl = S.add_slot(mfma(ACC2 + (rt*8 + ct)*4, wf, rX(rt, ks), "0" if ks == 0 else None), [(ks, ct)])
                if ct == 0 and rt == 0: S.add_pre(sl, f"@vmwait x{ks}")
                for f in fills.get(sl, []): S.add_fill(sl, f)
    sy = "s_waitcnt vmcnt(0)\ns_barrier\n" + publish(2)
    S.add_sync(stamp_txt(None, 28) + sy + "\n" + stamp_txt(None, 29), drain=True, delay=3)
    S.ops[-1]['force_at'] = 256 - 4
    lines += S.build()[0]
    for l in resolve_vm(lines): a(l)
    a("s_mov_b32 s100, 0x3e0293ee")
    a("s_nop 7")
    for j in range(8):
        s, d = ACC2 + 8*j, ACC2 + 4*j
        for i in range(8): a(f"v_mul_f32 v{s+i}, s100, v{s+i}")
        for i in range(4): a(f"v_cvt_pk_bf16_f32 v{d+i}, v{s+2*i}, v{s+2*i+1}")

MACC, MCS, MONE = 160, 232, 236
def mlp1_f(a):
    a(f"s_cmp_lg_u32 s{sHasM}, 0\ns_cbranch_scc1 L_mlp1_go")
    a(poll_one(2) + "\ns_barrier\n" + kv_first("a") + "\n" + kv_second("a") + "\ns_waitcnt vmcnt(12)\ns_barrier\ns_branch L_mlp1_done\nL_mlp1_go:")
    t = 240
    a(f"v_lshrrev_b32 v{t}, 4, v{vLANE}\nv_bfe_u32 v{t+1}, v{vLANE}, 2, 2\nv_lshl_add_u32 v{t+2}, v{t}, 3, v{t+1}\nv_lshlrev_b32 v{t+2}, 7, v{t+2}")
    a(f"v_and_b32 v{t+3}, 3, v{vLANE}\nv_lshl_add_u32 v{t+2}, v{t+3}, 3, v{t+2}")
    a(f"v_and_b32 v{t}, 1, v{t}\nv_lshrrev_b32 v{t+1}, 1, v{t+1}\nv_lshl_or_b32 v{t}, v{t}, 1, v{t+1}")
    for ct in range(4):
        a(f"v_xor_b32 v{t+3}, {ct}, v{t}\nv_lshl_add_u32 v{vW2+ct}, v{t+3}, 5, v{t+2}")
    for r in range(MCS, MCS+4): a(f"v_mov_b32 v{r}, 0")
    for r in range(MONE, MONE+4): a(f"v_mov_b32 v{r}, 0x3f803f80")
    S = Sched(lookahead=14, per_slot=2)
    n = 0
    for ks in range(16):
        for ct in range(4):
            wf = WR2 + (n % NWR2)*4; n += 1
            S.add_load((ks, ct), [f"ds_read_b64_tr_b16 v[{wf}:{wf+1}], v{vW2+ct} offset:{ks*4096}",
                                  f"ds_read_b64_tr_b16 v[{wf+2}:{wf+3}], v{vW2+ct} offset:{ks*4096+512}"], wf)
            u = uid()
            cs = f"s_cmp_eq_u32 s{sW}, {(ks>>3)*4+ct}\ns_cbranch_scc0 L_cs{u}\n" + mfma(MCS, wf, MONE) + f"\nL_cs{u}:\n"
            for rt in range(2):
                sl = S.add_slot((cs if rt == 1 else "") + mfma(MACC + (rt*4 + ct)*4, wf, rX(rt, ks), "0" if ks == 0 else None), [(ks, ct)])
                if ks == 5 and ct == 0 and rt == 0: S.add_fill(sl, poll_issue())
                if ks == 9 and ct == 0 and rt == 0:
                    S.add_pre(sl, f"s_cmp_lg_u32 s{sW}, 0\ns_cbranch_scc1 L_m_np\ns_waitcnt vmcnt(0)\n" + poll_check(2) + "\nL_m_np:\ns_barrier\n" + kv_first("b"))
                if ks == 1 and ct == 0:
                    r = rX(rt, 0)
                    S.add_fill(sl, f"v_and_b32 v{t}, 15, v{vLANE}\nv_lshlrev_b32 v{t}, 3, v{t}\ns_lshl_b32 s{sT}, s{sRt0}, 7\ns_add_u32 s{sT}, s{sT}, {STAT}\n"
                                   f"buffer_load_dwordx2 v[{r}:{r+1}], v{t}, s[{SWS}:{SWS+3}], s{sT} offen offset:{rt*128}{LD}")
                if ks == 2 and rt == 0:
                    r = rX(0, 1) + 2*ct
                    S.add_fill(sl, f"v_lshrrev_b32 v{t+1}, 4, v{vLANE}\nv_lshlrev_b32 v{t+1}, 3, v{t+1}\ns_lshl_b32 s{sT}, s{sC1}, 7\n"
                                   f"buffer_load_dwordx2 v[{r}:{r+1}], v{t+1}, s[{SB1}:{SB1+3}], s{sT} offen offset:{ct*32}")
    for l in S.build()[0]: a(l)
    a(f"v_lshrrev_b32 v{t}, 4, v{vLANE}\nv_lshlrev_b32 v{t}, 4, v{t}\ns_lshl_b32 s{sT}, s{sW}, 6\ns_add_u32 s{sT}, s{sT}, 131072\nv_add_u32 v{t+1}, s{sT}, v{t}\nv_add_u32 v{t}, 131072, v{t}")
    a("s_nop 3")
    a(f"ds_write_b128 v{t+1}, v[{MCS}:{MCS+3}]")
    a(f"s_cmp_eq_u32 s{sG}, 0\ns_cbranch_scc1 L_m_w0\ns_waitcnt vmcnt(8)\ns_branch L_m_w1\nL_m_w0:\ns_waitcnt vmcnt(0)\nL_m_w1:")
    a("s_waitcnt lgkmcnt(0)\ns_barrier")
    a(kv_second("b"))
    C = 96
    for i in range(8): a(f"ds_read_b128 v[{C+4*i}:{C+4*i+3}], v{t} offset:{i*64}")
    k = -2.0 * 0.7978845608028654 * 1.4426950408889634
    a(f"s_mov_b32 s100, {fb(k*0.044715)}\nv_mov_b32 v{t+2}, {fb(k)}")
    Bq = rX(0, 1); Bf = 80
    for ct in range(4):
        a(f"v_lshlrev_b32 v{Bf+4*ct}, 16, v{Bq+2*ct}\nv_and_b32 v{Bf+1+4*ct}, 0xffff0000, v{Bq+2*ct}")
        a(f"v_lshlrev_b32 v{Bf+2+4*ct}, 16, v{Bq+1+2*ct}\nv_and_b32 v{Bf+3+4*ct}, 0xffff0000, v{Bq+1+2*ct}")
    a("s_waitcnt lgkmcnt(0)")
    for i in range(16): a(f"v_add_f32 v{C+i}, v{C+i}, v{C+16+i}")
    for q in range(8):
        rt, ct = q >> 2, q & 3
        r0 = MACC + 4*q; T = 0 + (q & 1)*4; m2 = rX(rt, 0); r2 = m2 + 1
        for j in range(4): a(f"v_fma_f32 v{r0+j}, -v{m2}, v{C+4*ct+j}, v{r0+j}")
        for j in range(4): a(f"v_fma_f32 v{r0+j}, v{r0+j}, v{r2}, v{Bf+4*ct+j}")
        for j in range(4): a(f"v_mul_f32 v{T+j}, v{r0+j}, v{r0+j}")
        for j in range(4): a(f"v_fma_f32 v{T+j}, v{T+j}, s100, v{t+2}")
        for j in range(4): a(f"v_mul_f32 v{T+j}, v{T+j}, v{r0+j}")
        for j in range(4): a(f"v_exp_f32 v{T+j}, v{T+j}")
        for j in range(4): a(f"v_add_f32 v{T+j}, 1.0, v{T+j}")
        for j in range(4): a(f"v_rcp_f32 v{T+j}, v{T+j}")
        for j in range(4): a(f"v_mul_f32 v{r0+j}, v{r0+j}, v{T+j}")
    a(f"s_mul_i32 s100, s{sRt0}, {AFS}\ns_lshl_b32 s{sT}, s{sC1}, 11\ns_add_u32 s100, s100, s{sT}\ns_add_u32 s100, s100, {AF + 128*1024}")
    a(f"s_add_u32 s101, s100, {AFS}")
    pack_store(a, MACC, MACC+4, 192, SWS, 100, 0, ST)
    pack_store(a, MACC+16, MACC+20, 196, SWS, 101, 0, ST)
    a(f"s_cmp_ge_u32 s{sC1}, 21\ns_cbranch_scc1 L_mlp1_done")
    pack_store(a, MACC+8, MACC+12, 200, SWS, 100, 1024, ST)
    pack_store(a, MACC+24, MACC+28, 204, SWS, 101, 1024, ST)
    a.label("L_mlp1_done")

def late_touch():
    t = f"s_cmp_eq_u32 s{sG}, 0\ns_cbranch_scc1 L_lt9\ns_cmp_lg_u32 s79, 0\ns_cbranch_scc1 L_lt9\ns_add_u32 s{sT}, s{sIt}, 6\ns_cmp_lt_u32 s{sT}, s{sNW}\ns_cbranch_scc1 L_lt9\n"
    t += f"s_mov_b32 s79, 1\nv_lshlrev_b32 v0, 7, v{vLANE}\n"
    t += f"s_and_b32 s64, s2, 3\ns_lshr_b32 s65, s2, 3\ns_lshl_b32 s66, s64, 20\ns_lshl_b32 s67, s65, 15\ns_add_u32 s66, s66, s67\ns_lshl_b32 s67, s{sRQ}, 13\ns_add_u32 s66, s66, s67\n"
    t += f"buffer_load_dword v1, v0, s[{SWO}:{SWO+3}], s66 offen\n"
    t += f"s_cmp_ge_u32 s{sRQ}, 2\ns_cbranch_scc1 L_lt9\n"
    t += f"s_mul_i32 s66, s64, {11*32768}\ns_lshl_b32 s67, s65, 1\ns_add_u32 s67, s67, s{sRQ}\ns_cmp_ge_u32 s67, 44\ns_cbranch_scc1 L_lt9\ns_lshl_b32 s67, s67, 13\ns_add_u32 s66, s66, s67\n"
    t += f"buffer_load_dword v2, v0, s[{SW2}:{SW2+3}], s66 offen\n"
    t += "L_lt9:"
    return t

def fused(a):
    phase1_f(a)
    qproj_f(a)
    stamp(a, 5)
    mlp1_f(a)
    stamp(a, 6)
    import phc
    phc.prefill(a)
    import att2
    att2.attention2(a, ST, LD, hook0=publish(3), idle_hook=late_touch())
    a("s_waitcnt vmcnt(0)\ns_barrier")
    a(publish(4))
    stamp(a, 10)
    import phc
    phc.phase_c(a, dict(publish=publish, poll_one=poll_one, vPA=vPA, stamp_txt=lambda x, i: stamp_txt(x, i, True)))

def build1(fn):
    head = open("cdna_kernels/" + NAME + ".s.ref").read().split("; Override launch")[0]
    name = NAME + "_kernel"
    out = head + "; @launch grid=(256,1,1) block=(512,1,1) lds=163840\n"
    out += '.amdgcn_target "amdgcn-amd-amdhsa--gfx950"\n.text\n'
    a = Asm()
    kernel_header(a, name)
    setup(a, "L_end")
    fn(a)
    a.label("L_end")
    a("s_endpgm")
    t = a.text()
    for p in lint(t): print("LINT", p, file=sys.stderr)
    out += t + '.section .rodata,"a"\n.p2align 6\n' + descriptor(name)
    return out

if __name__ == "__main__":
    open(sys.argv[1], "w").write(build1(fused))
```

```python
from gen3 import *
EX = 64*MB
def prefill(a):
    a(f"s_and_b32 s64, s2, 3\ns_bfe_u32 s65, s2, 0x10002\ns_lshl_b32 s65, s65, 3\ns_bfe_u32 s{sT}, s2, 0x30003\ns_add_u32 s65, s65, s{sT}\ns_lshr_b32 s66, s2, 6")
    a(f"s_lshl_b32 s65, s65, 2\ns_add_u32 s65, s65, s66\ns_lshl_b32 s65, s65, 18\ns_add_u32 s65, s65, {EX}")
    a(f"s_lshl_b32 s66, s64, 14\ns_add_u32 s65, s65, s66\ns_lshl_b32 s66, s{sW}, 11\ns_add_u32 s65, s65, s66")
    for r in range(208, 212): a(f"v_mov_b32 v{r}, -1")
    for i in range(1, 4):
        a(f"s_add_u32 s{sT}, s64, {i}\ns_and_b32 s{sT}, s{sT}, 3\ns_lshl_b32 s{sT}, s{sT}, 16\ns_add_u32 s{sT}, s{sT}, s65")
        a(f"buffer_store_dwordx4 v[208:211], v{vL16}, s[{SWS}:{SWS+3}], s{sT} offen sc1")
        a(f"buffer_store_dwordx4 v[208:211], v{vL16}, s[{SWS}:{SWS+3}], s{sT} offen offset:1024 sc1")

def phase_c(a, F):
    LD, ST = " sc1", " sc1"
    publish, poll_one, vPA = F['publish'], F['poll_one'], F['vPA']
    sSig, sRb, sCb, sAs, sWs, sSlot, sLw, sIdx, sRd = 56, 57, 58, 59, 60, 61, 62, 63, 96
    ACC, FA, NA, FW, NW = 0, 32, 8, 64, 4
    vA0, vWb, vAa, vWa, vDq = 224, 225, 228, 229, 232
    t = 236
    stamp(a, 11)
    a(f"s_and_b32 s{sSig}, s2, 3\ns_bfe_u32 s{sRb}, s2, 0x10002\ns_lshl_b32 s{sRb}, s{sRb}, 3\ns_bfe_u32 s{sT}, s2, 0x30003\ns_add_u32 s{sRb}, s{sRb}, s{sT}\ns_lshr_b32 s{sCb}, s2, 6")
    a(f"s_sub_u32 s100, 15, s{sRb}\ns_min_u32 s100, s100, s{sRb}")
    a(f"v_and_b32 v{t}, 31, v{vLANE}\nv_lshl_add_u32 v{vPA}, v{t}, 3, s100")
    a(f"s_and_b32 s101, s2, 4\ns_lshl_b32 s101, s101, 5\ns_bfe_u32 s{sT}, s2, 0x20003\ns_lshl_b32 s{sT}, s{sT}, 3\ns_add_u32 s101, s101, s{sT}\ns_lshr_b32 s{sT}, s2, 5\ns_add_u32 s101, s101, s{sT}")
    a(f"v_and_b32 v{t}, 3, v{vLANE}\nv_lshl_add_u32 v{t}, v{t}, 5, s101\nv_cmp_gt_u32 vcc, 32, v{vLANE}\ns_nop 1\nv_cndmask_b32 v{vPA}, v{t}, v{vPA}, vcc\n" + F['flag_addr']())
    a(poll_one(3))
    w_dma_voff(a, vDq, 1024, t)
    a(f"s_and_b32 s{sT}, s{sW}, 1\ns_lshl_b32 s{sT}, s{sT}, 13\nv_add_u32 v{vA0}, s{sT}, v{vL16}")
    a(f"v_lshrrev_b32 v{t}, 2, v{vLANE}\nv_lshlrev_b32 v{t+1}, 8, v{t}\nv_and_b32 v{t+2}, 3, v{vLANE}\nv_lshl_add_u32 v{t+1}, v{t+2}, 3, v{t+1}\nv_add_u32 v{t+1}, 16384, v{t+1}")
    a(f"v_and_b32 v{t}, 7, v{t}\ns_and_b32 s{sT}, s{sW}, 6")
    a(f"v_xor_b32 v{t+2}, s{sT}, v{t}\nv_lshl_add_u32 v{vWb}, v{t+2}, 5, v{t+1}\nv_xor_b32 v{vWb+1}, 32, v{vWb}")
    a(f"s_lshl_b32 s97, s{sRb}, 3\ns_add_u32 s97, s97, s{sW}\ns_mul_i32 s97, s97, {AFS}\ns_add_u32 s97, s97, {AF}")
    a(f"s_lshl_b32 s98, s{sW}, 13\ns_lshl_b32 s{sT}, s{sCb}, 8\ns_add_u32 s98, s98, s{sT}")
    a(f"s_lshl_b32 s{sLw}, s{sW}, 11")
    a(f"s_mul_i32 s99, s{sSig}, 11")
    NST = 22
    def dma(st):
        sl = (st % 5) * 32768
        o = []
        if st < 6:
            pre = (f"s_add_u32 s{sIdx}, s99, {2*st}\ns_lshl_b32 s{sAs}, s{sIdx}, 10\ns_add_u32 s{sAs}, s{sAs}, s97\ns_add_u32 s{sAs}, s{sAs}, {128*1024}\n"
                   f"s_lshl_b32 s{sWs}, s{sIdx}, 15\ns_add_u32 s{sWs}, s{sWs}, s98\n")
            srdw = SW2
        else:
            pre = (f"s_lshl_b32 s{sIdx}, s{sCb}, 3\ns_add_u32 s{sIdx}, s{sIdx}, {2*(st-6)}\ns_and_b32 s{sIdx}, s{sIdx}, 31\ns_lshl_b32 s{sAs}, s{sSig}, 5\ns_add_u32 s{sIdx}, s{sIdx}, s{sAs}\ns_lshl_b32 s{sAs}, s{sIdx}, 10\ns_add_u32 s{sAs}, s{sAs}, s97\n"
                   f"s_lshl_b32 s{sWs}, s{sIdx}, 15\ns_add_u32 s{sWs}, s{sWs}, s98\n")
            srdw = SWO
        o.append(pre + f"s_add_u32 m0, s{sLw}, {sl + 16384}\ns_add_u32 s{sT}, s{sWs}, {4096 - 1024}\n"
                 f"buffer_load_dwordx4 v{vDq}, s[{srdw}:{srdw+3}], s{sWs} offen lds")
        o.append(f"buffer_load_dwordx4 v{vDq+1}, s[{srdw}:{srdw+3}], s{sT} offen offset:1024 lds")
        if st == 5:
            o.append(f"s_cmp_lt_u32 s{sSig}, 3\ns_cselect_b32 s{sAs}, s{sAs}, 0x40000000\ns_add_u32 m0, s{sLw}, {sl}\ns_mov_b32 s{sT}, 0x40000000\n"
                     f"buffer_load_dwordx4 v{vL16}, s[{SWS}:{SWS+3}], s{sAs} offen{LD} lds")
            o.append(f"buffer_load_dwordx4 v{vL16}, s[{SWS}:{SWS+3}], s{sT} offen offset:1024{LD} lds")
        else:
            pl = ""
            o.append(pl + f"s_add_u32 m0, s{sLw}, {sl}\ns_nop 0\n"
                     f"buffer_load_dwordx4 v{vL16}, s[{SWS}:{SWS+3}], s{sAs} offen{LD} lds")
            o.append(f"buffer_load_dwordx4 v{vL16}, s[{SWS}:{SWS+3}], s{sAs} offen offset:1024{LD} lds")
        return o
    a("s_barrier")
    for st in range(4):
        for o in dma(st): a(o)
    a("s_waitcnt vmcnt(12)\ns_barrier")
    S = Sched(lookahead=10, per_slot=2)
    na = nw = 0
    for st in range(NST):
        sl = (st % 5) * 32768
        S.add_sync(f"v_add_u32 v{vAa}, {sl}, v{vA0}\nv_add_u32 v{vWa}, {sl}, v{vWb}\nv_add_u32 v{vWa+1}, {sl}, v{vWb+1}", drain=False)
        base = len(S.slots)
        for ks in range(2):
            wf = []; af = []
            for ct in range(2):
                f = FW + (nw % NW)*4; nw += 1; wf.append(f)
            for rt in range(4):
                f = FA + (na % NA)*4; na += 1; af.append(f)
            def ldw(ct):
                S.add_load(('W', st, ks, ct), [f"ds_read_b64_tr_b16 v[{wf[ct]}:{wf[ct]+1}], v{vWa+ct} offset:{ks*8192}",
                                               f"ds_read_b64_tr_b16 v[{wf[ct]+2}:{wf[ct]+3}], v{vWa+ct} offset:{ks*8192+4096}"], wf[ct])
            def lda(rt):
                S.add_load(('A', st, ks, rt), [f"ds_read_b128 v[{af[rt]}:{af[rt]+3}], v{vAa} offset:{(rt*2+ks)*1024}"], af[rt])
            ldw(0); lda(0); ldw(1); lda(1); lda(2); lda(3)
            for rt in range(4):
                for ct in range(2):
                    S.add_slot(mfma(ACC + (rt*2+ct)*4, wf[ct], af[rt], "0" if st == 0 and ks == 0 else None), [('W', st, ks, ct), ('A', st, ks, rt)])
        if st + 1 < NST:
            left = min(NST - 1, st + 3) - (st + 1)
            pl = ""
            if st == 2:
                pl = (f"s_lshl_b32 s{sT}, s{sSig}, 6\ns_add_u32 s{sT}, s{sT}, s100\nv_and_b32 v{vPA}, 7, v{vLANE}\nv_lshl_add_u32 v{vPA}, v{vPA}, 3, s{sT}\n" + F['flag_addr']() + "\n" +
                      poll_one(4) + "\n")
            stx = F['stamp_txt'](None, 16 + st // 2) if (PROF == 5 and st % 2 == 0) else ""
            S.add_pre(base + 2, pl + f"s_waitcnt vmcnt({4*left})\ns_barrier\n" + stx)
            if st + 4 < NST:
                for i, o in enumerate(dma(st + 4)):
                    S.add_fill(base + 2 + i, o)
    for l in S.build()[0]: a(l)
    stamp(a, 12)
    a(publish(5))
    a(f"s_lshl_b32 s97, s{sRb}, 2\ns_add_u32 s97, s97, s{sCb}\ns_lshl_b32 s97, s97, 18\ns_add_u32 s97, s97, {EX}")
    a(f"s_lshr_b32 s98, s{sW}, 1\ns_cmp_eq_u32 s98, s{sSig}\ns_cbranch_scc1 L_c_own")
    a(f"s_lshl_b32 s{sT}, s{sSig}, 16\ns_add_u32 s99, s97, s{sT}\ns_lshl_b32 s{sT}, s{sW}, 13\ns_add_u32 s99, s99, s{sT}\ns_add_u32 s101, s99, 4096")
    for q in range(8):
        a(f"buffer_store_dwordx4 v[{ACC+4*q}:{ACC+4*q+3}], v{vL16}, s[{SWS}:{SWS+3}], s{99 if q < 4 else 101} offen offset:{(q&3)*1024}{ST}")
    a("s_branch L_c_st")
    a.label("L_c_own")
    a(f"v_add_u32 v{t}, {4*32768}, v{vA0}\ns_nop 3")
    for q in range(8):
        a(f"ds_write_b128 v{t}, v[{ACC+4*q}:{ACC+4*q+3}] offset:{q*1024}")
    a.label("L_c_st")
    a(f"v_and_b32 v{t}, 15, v{vLANE}\nv_lshrrev_b32 v{t+1}, 4, v{vLANE}\nv_lshlrev_b32 v{t+2}, 9, v{t+1}\nv_lshl_add_u32 v{t+2}, v{t}, 4, v{t+2}")
    a(f"v_lshlrev_b32 v{t+3}, 10, v{t}\nv_lshl_add_u32 v{t+3}, v{t+1}, 4, v{t+3}\nv_lshlrev_b32 v{t+1}, 4, v{t+1}")
    a(f"s_lshl_b32 s98, s{sRb}, 7\ns_lshl_b32 s{sT}, s{sW}, 4\ns_add_u32 s98, s98, s{sT}\ns_lshl_b32 s98, s98, 10\ns_lshl_b32 s99, s{sCb}, 8\ns_lshl_b32 s{sT}, s{sSig}, 6\ns_add_u32 s99, s99, s{sT}\ns_add_u32 s98, s98, s99")
    a(f"buffer_load_dwordx4 v[100:103], v{t+3}, s[{SX}:{SX+3}], s98 offen")
    a(f"buffer_load_dwordx4 v[104:107], v{t+1}, s[{SB2}:{SB2+3}], s99 offen")
    a(f"s_and_b32 s101, s2, 4\ns_lshl_b32 s101, s101, 5\ns_bfe_u32 s{sT}, s2, 0x20003\ns_lshl_b32 s{sT}, s{sT}, 3\ns_add_u32 s101, s101, s{sT}\ns_lshr_b32 s{sT}, s2, 5\ns_add_u32 s101, s101, s{sT}")
    a(f"v_and_b32 v{vPA}, 3, v{vLANE}\nv_max_u32 v{vPA}, 1, v{vPA}\nv_add_u32 v{vPA}, s{sSig}, v{vPA}\nv_and_b32 v{vPA}, 3, v{vPA}\nv_lshl_add_u32 v{vPA}, v{vPA}, 5, s101\n" + F['flag_addr']())
    a(f"s_lshl_b32 s99, s{sSig}, 14\ns_lshl_b32 s{sT}, s{sW}, 11\ns_add_u32 s99, s99, s{sT}\ns_add_u32 s97, s97, s99")
    a(f"s_add_u32 s{sT}, s{sT}, {4*32768}\nv_add_u32 v{t}, s{sT}, v{t+2}")
    a(f"s_lshl_b32 s99, s{sSig}, 1\ns_add_u32 s99, s99, 1")
    a(poll_one(5, "s99") + "\ns_waitcnt lgkmcnt(0)\ns_barrier")
    if PROF == 5: a(F['stamp_txt'](None, 29))
    a(f"ds_read_b128 v[32:35], v{t}\nds_read_b128 v[36:39], v{t} offset:256")
    a("s_mov_b32 s101, 0")
    a.label("L_c_rd")
    for i in range(1, 4):
        a(f"s_add_u32 s{sT}, s{sSig}, {i}\ns_and_b32 s{sT}, s{sT}, 3\ns_lshl_b32 s{sT}, s{sT}, 16\ns_add_u32 s{sT}, s{sT}, s97")
        a(f"buffer_load_dwordx4 v[{32+8*i}:{35+8*i}], v{t+2}, s[{SWS}:{SWS+3}], s{sT} offen{LD}")
        a(f"buffer_load_dwordx4 v[{36+8*i}:{39+8*i}], v{t+2}, s[{SWS}:{SWS+3}], s{sT} offen offset:256{LD}")
    a("s_waitcnt vmcnt(0)")
    a("v_max_u32 v64, v40, v41")
    for i in range(42, 64, 2): a(f"v_max3_u32 v64, v64, v{i}, v{i+1}")
    a("v_cmp_eq_u32 vcc, -1, v64\ns_cbranch_vccz L_c_ok")
    a("s_add_u32 s101, s101, 1\ns_cmp_gt_u32 s101, 0x20000\ns_cbranch_scc1 L_c_ok\ns_sleep 8\ns_branch L_c_rd")
    a.label("L_c_ok")
    unpack8(a, 100, 108); unpack8(a, 104, 116)
    for i in range(8): a(f"v_add_f32 v{108+i}, v{108+i}, v{116+i}")
    a("s_waitcnt lgkmcnt(0)")
    for k in range(4):
        for i in range(8): a(f"v_add_f32 v{108+i}, v{108+i}, v{32+8*k+i}")
    for i in range(4): a(f"v_cvt_pk_bf16_f32 v{100+i}, v{108+2*i}, v{109+2*i}")
    a(f"buffer_store_dwordx4 v[100:103], v{t+3}, s[{SOUT}:{SOUT+3}], s98 offen")
    if PROF: a("s_waitcnt vmcnt(0)")
    stamp(a, 13)
```

```python
import fused2
from fused2 import *
import att2, phc

SLOT = [0, 65536, 114688, 0]
def rXm(rt, ks): return 64 + ((ks % 6)*2 + rt)*4
AQ, A1, CS, WR, NWR, vD1, ONE = 112, 120, 124, 224, 5, 246, 248
QACC, MACC3 = 128, 192

def p2_dma(stg, i):
    if i < 4:
        return (f"s_add_u32 m0, s{sNlds}, {SLOT[stg] + i*1024}\ns_add_u32 s{sT}, s{sJ}, {(stg*128 + i*4)*8192}\n"
                f"buffer_load_dwordx4 v{vDW+((i>>1)&1)}, s[{SWQ}:{SWQ+3}], s{sT} offen lds ;@vm d{stg}")
    j = i - 4
    return (f"s_add_u32 m0, s85, {SLOT[stg] + 32768 + j*1024}\ns_add_u32 s{sT}, s88, {(stg*128 + j*8)*2752}\n"
            f"buffer_load_dwordx4 v{vD1+j}, s[{SW1}:{SW1+3}], s{sT} offen lds ;@vm d{stg}")

def x_load3(rt, ks):
    r = rXm(rt, ks)
    return (f"s_add_u32 s{sT}, s{sXn}, {rt*16384 + (ks//4)*4096}\n"
            f"buffer_load_dwordx4 v[{r}:{r+3}], v{vL16}, s[{SWS}:{SWS+3}], s{sT} offen offset:{(ks%4)*1024}{LD} ;@vm x{ks}")

def with_regs(txt, m):
    for k, v in m.items(): txt = re.sub(rf"\bv{k}\b", f"v{v}", txt)
    return txt
LOW = {248: 0, 249: 1, 250: 2, 251: 3}

def p2_merged(a):
    a(f"s_lshl_b32 s64, s{sH}, 19\ns_lshl_b32 s{sT}, s{sP}, 16\ns_add_u32 s64, s64, s{sT}\ns_and_b32 s{sT}, s{sW}, 1\ns_lshl_b32 s{sT}, s{sT}, 15\ns_add_u32 s64, s64, s{sT}")
    a(f"s_bfe_u32 s66, s{sW}, 0x10001\ns_lshl_b32 s67, s66, 12\ns_lshl_b32 s66, s66, 11\ns_add_u32 s66, s66, {KF}\ns_add_u32 s67, s67, {VF}")
    a(f"s_cmp_lt_u32 s{sW}, 4\ns_cselect_b32 s66, s66, s67\ns_cselect_b32 s65, 2, 1\ns_lshl_b32 s65, s65, 11\ns_add_u32 s64, s64, s66\ns_add_u32 s65, s65, s64")
    for j in range(16):
        for i in range(4): a(f"v_cvt_pk_bf16_f32 v{4*j+i}, v{8*j+2*i}, v{8*j+2*i+1}")
    lines = []
    for ks in range(5):
        for rt in range(2): lines.append(x_load3(rt, ks))
    b = Asm()
    att_scalars(b)
    b("s_mov_b32 s84, 0x10000\ns_add_u32 s92, s92, s84\ns_mov_b32 s100, 0")
    t = 192
    w_read_addr(b, AQ, 8, 100, 100, t)
    b(f"v_lshrrev_b32 v{t}, 4, v{vLANE}\nv_bfe_u32 v{t+1}, v{vLANE}, 2, 2\nv_lshl_add_u32 v{t+2}, v{t}, 3, v{t+1}\nv_lshlrev_b32 v{t+2}, 7, v{t+2}")
    b(f"v_and_b32 v{t+3}, 3, v{vLANE}\nv_lshl_add_u32 v{t+2}, v{t+3}, 3, v{t+2}\nv_add_u32 v{t+2}, 32768, v{t+2}")
    b(f"v_and_b32 v{t}, 1, v{t}\nv_lshrrev_b32 v{t+1}, 1, v{t+1}\nv_lshl_or_b32 v{t}, v{t}, 1, v{t+1}")
    for ct in range(4):
        b(f"v_xor_b32 v{t+3}, {ct}, v{t}\nv_lshl_add_u32 v{A1+ct}, v{t+3}, 5, v{t+2}")
    for r in range(CS, CS+4): b(f"v_mov_b32 v{r}, 0")
    for r in range(ONE, ONE+4): b(f"v_mov_b32 v{r}, 0x3f803f80")
    lines += [l.strip() for l in b.lines]
    lines += stamp_txt(None, 24).split("\n")
    K = 24
    fills = {}
    def F(sl, txt): fills.setdefault(sl, []).append(txt)
    for ks in range(11):
        F(K*ks + 5, x_load3(0, ks+5)); F(K*ks + 17, x_load3(1, ks+5))
    for i in range(16): F(int(i*16.2) + 2, kv_store(i))
    for i in range(6): F(1 + 8*i + 3, p2_dma(2, i))
    ST_, BI_ = 8, 12
    F(K*6 + 1, f"v_and_b32 v4, 15, v{vLANE}\nv_lshlrev_b32 v4, 3, v4\ns_lshl_b32 s{sT}, s{sRt0}, 7\ns_add_u32 s{sT}, s{sT}, {STAT}\n"
               f"buffer_load_dwordx2 v[{ST_}:{ST_+1}], v4, s[{SWS}:{SWS+3}], s{sT} offen{LD} ;@vm m\n"
               f"buffer_load_dwordx2 v[{ST_+2}:{ST_+3}], v4, s[{SWS}:{SWS+3}], s{sT} offen offset:128{LD} ;@vm m")
    F(K*7 + 1, f"v_lshrrev_b32 v5, 4, v{vLANE}\nv_lshlrev_b32 v5, 3, v5\ns_lshl_b32 s{sT}, s{sC1}, 7\n" +
               "\n".join(f"buffer_load_dwordx2 v[{BI_+2*ct}:{BI_+2*ct+1}], v5, s[{SB1}:{SB1+3}], s{sT} offen offset:{ct*32} ;@vm m" for ct in range(4)))
    F(K*13 + 1, with_regs(f"v_and_b32 v{vPA}, 7, v{vLANE}\nv_max_u32 v{vPA}, 1, v{vPA}\nv_add_u32 v{vPA}, s{sP}, v{vPA}\nv_and_b32 v{vPA}, 7, v{vPA}\ns_lshl_b32 s{sT}, s{sH}, 3\nv_add_u32 v{vPA}, s{sT}, v{vPA}\n" + flag_addr(), LOW))
    F(K*15 + 1, with_regs(f"s_cmp_lg_u32 s{sW}, 0\ns_cbranch_scc1 L_p2_ni\n" + poll_issue() + "\nL_p2_ni:", LOW))
    S = Sched(lookahead=8, per_slot=2)
    n = 0
    for ks in range(16):
        stg, kk = ks // 4, ks % 4
        if kk == 0 and stg > 0:
            d = SLOT[stg] - SLOT[stg-1]
            upd = "\n".join(f"v_add_u32 v{r}, {d & 0xffffffff}, v{r}" for r in range(AQ, AQ+12))
            sy = {1: "s_barrier\n", 2: "@vmwait d2\ns_barrier\n", 3: "@vmwait st\ns_barrier\n" + with_regs(publish(2), LOW) + "\n"}[stg]
            S.add_sync(stamp_txt(None, 24 + stg) + sy + upd, drain=True, delay=2)
            if stg == 1:
                for i in range(6): F(K*4 + 2 + 4*i, p2_dma(3, i))
        for c in range(12):
            wf = WR + (n % NWR)*4; n += 1
            if c < 8:
                S.add_load((ks, c), [f"ds_read_b64_tr_b16 v[{wf}:{wf+1}], v{AQ+c} offset:{kk*8192}",
                                     f"ds_read_b64_tr_b16 v[{wf+2}:{wf+3}], v{AQ+c} offset:{kk*8192+1024}"], wf)
            else:
                S.add_load((ks, c), [f"ds_read_b64_tr_b16 v[{wf}:{wf+1}], v{A1+c-8} offset:{kk*4096}",
                                     f"ds_read_b64_tr_b16 v[{wf+2}:{wf+3}], v{A1+c-8} offset:{kk*4096+512}"], wf)
            for rt in range(2):
                acc = QACC + (rt*8 + c)*4 if c < 8 else MACC3 + (rt*4 + c-8)*4
                pre = ""
                if c >= 8 and rt == 1:
                    u = uid()
                    pre = f"s_cmp_eq_u32 s{sW}, {(ks>>3)*4+c-8}\ns_cbranch_scc0 L_cs{u}\n" + mfma(CS, wf, ONE) + f"\nL_cs{u}:\n"
                sl = S.add_slot(pre + mfma(acc, wf, rXm(rt, ks), "0" if ks == 0 else None), [(ks, c)])
                if c == 0 and rt == 0: S.add_pre(sl, f"@vmwait x{ks}")
    for sl, fl in fills.items():
        for f in fl: S.add_fill(sl, f)
    lines += S.build()[0]
    for l in resolve_vm(lines): a(l)
    a(stamp_txt(None, 28))
    t = 20
    a(f"v_lshrrev_b32 v{t}, 4, v{vLANE}\nv_lshlrev_b32 v{t}, 4, v{t}\ns_lshl_b32 s{sT}, s{sW}, 6\ns_add_u32 s{sT}, s{sT}, 131072\nv_add_u32 v{t+1}, s{sT}, v{t}\nv_add_u32 v{t}, 131072, v{t}")
    a("s_nop 3")
    a(f"ds_write_b128 v{t+1}, v[{CS}:{CS+3}]")
    a(f"s_waitcnt vmcnt(0) lgkmcnt(0)\ns_cmp_lg_u32 s{sW}, 0\ns_cbranch_scc1 L_p2_np\n" + with_regs(poll_check(2), LOW) + "\nL_p2_np:\ns_barrier")
    a(stamp_txt(None, 29))
    a(kv_first("a") + "\n" + kv_second("a"))
    C = 64
    for i in range(8): a(f"ds_read_b128 v[{C+4*i}:{C+4*i+3}], v{t} offset:{i*64}")
    a("s_mov_b32 s100, 0x3e0293ee")
    for j in range(8):
        s, d = QACC + 8*j, QACC + 4*j
        for i in range(8): a(f"v_mul_f32 v{s+i}, s100, v{s+i}")
        for i in range(4): a(f"v_cvt_pk_bf16_f32 v{d+i}, v{s+2*i}, v{s+2*i+1}")
    stamp(a, 5)
    a(f"s_cmp_eq_u32 s{sHasM}, 0\ns_cbranch_scc1 L_p2_nm")
    k = -2.0 * 0.7978845608028654 * 1.4426950408889634
    a(f"s_mov_b32 s100, {fb(k*0.044715)}\nv_mov_b32 v{t+2}, {fb(k)}")
    Bf = 96
    for ct in range(4):
        a(f"v_lshlrev_b32 v{Bf+4*ct}, 16, v{BI_+2*ct}\nv_and_b32 v{Bf+1+4*ct}, 0xffff0000, v{BI_+2*ct}")
        a(f"v_lshlrev_b32 v{Bf+2+4*ct}, 16, v{BI_+1+2*ct}\nv_and_b32 v{Bf+3+4*ct}, 0xffff0000, v{BI_+1+2*ct}")
    a("s_waitcnt lgkmcnt(0)")
    for i in range(16): a(f"v_add_f32 v{C+i}, v{C+i}, v{C+16+i}")
    for q in range(8):
        rt, ct = q >> 2, q & 3
        r0 = MACC3 + 4*q; T = 24 + (q & 1)*4; m2 = ST_ + 2*rt; r2 = m2 + 1
        for j in range(4): a(f"v_fma_f32 v{r0+j}, -v{m2}, v{C+4*ct+j}, v{r0+j}")
        for j in range(4): a(f"v_fma_f32 v{r0+j}, v{r0+j}, v{r2}, v{Bf+4*ct+j}")
        for j in range(4): a(f"v_mul_f32 v{T+j}, v{r0+j}, v{r0+j}")
        for j in range(4): a(f"v_fma_f32 v{T+j}, v{T+j}, s100, v{t+2}")
        for j in range(4): a(f"v_mul_f32 v{T+j}, v{T+j}, v{r0+j}")
        for j in range(4): a(f"v_exp_f32 v{T+j}, v{T+j}")
        for j in range(4): a(f"v_add_f32 v{T+j}, 1.0, v{T+j}")
        for j in range(4): a(f"v_rcp_f32 v{T+j}, v{T+j}")
        for j in range(4): a(f"v_mul_f32 v{r0+j}, v{r0+j}, v{T+j}")
    a.label("L_p2_nm")
    a("s_waitcnt vmcnt(12) lgkmcnt(0)\ns_barrier")
    a(f"s_cmp_eq_u32 s{sHasM}, 0\ns_cbranch_scc1 L_p2_done")
    a(f"s_mul_i32 s100, s{sRt0}, {AFS}\ns_lshl_b32 s{sT}, s{sC1}, 11\ns_add_u32 s100, s100, s{sT}\ns_add_u32 s100, s100, {AF + 128*1024}")
    a(f"s_add_u32 s101, s100, {AFS}")
    pack_store(a, MACC3, MACC3+4, 160, SWS, 100, 0, ST)
    pack_store(a, MACC3+16, MACC3+20, 164, SWS, 101, 0, ST)
    a(f"s_cmp_ge_u32 s{sC1}, 21\ns_cbranch_scc1 L_p2_done")
    pack_store(a, MACC3+8, MACC3+12, 168, SWS, 100, 1024, ST)
    pack_store(a, MACC3+24, MACC3+28, 172, SWS, 101, 1024, ST)
    a.label("L_p2_done")

def fused3(a):
    fused2.wq_dma_override = lambda i, half: p2_dma(half, i).replace(" ;@vm", " ;") if i < 6 else None
    def extra(a):
        t = 236
        a(f"s_lshl_b32 s{sJ}, s{sW}, 17\ns_lshl_b32 s{sT}, s{sH}, 8\ns_add_u32 s{sJ}, s{sJ}, s{sT}")
        a(f"s_lshl_b32 s{sNlds}, s{sW}, 12\ns_lshl_b32 s85, s{sW}, 11")
        a(f"v_lshrrev_b32 v{t}, 3, v{vLANE}\nv_mul_u32_u24 v{t}, 2752, v{t}\nv_bfe_u32 v{t+1}, v{vLANE}, 1, 2\nv_bfe_u32 v{t+2}, v{vLANE}, 4, 1")
        a(f"v_xor_b32 v{t+1}, v{t+1}, v{t+2}\nv_lshlrev_b32 v{t+1}, 5, v{t+1}\nv_and_b32 v{t+2}, 1, v{vLANE}\nv_lshl_add_u32 v{t+1}, v{t+2}, 4, v{t+1}")
        a(f"v_add_u32 v{vD1}, v{t}, v{t+1}\nv_xor_b32 v{t+1}, 64, v{t+1}\nv_add_u32 v{vD1+1}, v{t}, v{t+1}")
        a(f"s_mul_i32 s88, s{sW}, {16*2752}\ns_lshl_b32 s{sT}, s{sC1}, 7\ns_add_u32 s88, s88, s{sT}\ns_cmp_lg_u32 s{sHasM}, 0\ns_cselect_b32 s88, s88, 0x40000000")
    fused2.p1_extra = extra
    phase1_f(a)
    p2_merged(a)
    stamp(a, 6)
    phc.prefill(a)
    att2.attention2(a, ST, LD, hook0=publish(3), idle_hook=late_touch())
    a("s_waitcnt vmcnt(0)\ns_barrier")
    a(publish(4))
    stamp(a, 10)
    phc.phase_c(a, dict(publish=publish, poll_one=poll_one, vPA=vPA, flag_addr=flag_addr, stamp_txt=lambda x, i: stamp_txt(x, i, True)))

if __name__ == "__main__":
    open(sys.argv[1], "w").write(build1(fused3))
```

```python
import sys, re, os, struct
from asmlib import *

NAME = "parallel_sum__compressed_kv_cla__mixer_channel_mlp__prompt"
MB = 1 << 20
XNF, STAT, FLG, KF, VF, AF, EX, STAMP = 0, 2*MB, 3*MB, 4*MB, 20*MB, 36*MB, 64*MB, 96*MB
AFS = 171 * 1024
WS_BYTES = 268435456
OOB = 0x40000000
PROF = int(os.environ.get("PROF", "0"))
SC = " sc1"
EARLY = int(os.environ.get("EARLY", "0"))
def fb(x): return "0x%08x" % struct.unpack("<I", struct.pack("<f", x))[0]

sW, sH, sP, sF = 3, 4, 5, 6
SX, SCKV, SWQ, SWKV, SWO, SW1, SW2, SB1, SB2, SOUT, SDBG, SWS = 8, 12, 16, 20, 24, 28, 32, 36, 40, 44, 48, 52
sCnt, sT, sRet, sSpin = 92, 93, 94, 90
vLANE, vL16 = 255, 254
vPA, vPV = 250, 249
_u = [0]
def uid():
    _u[0] += 1; return _u[0]

def stamp_txt(idx, level=1, dyn=None):
    if PROF == 0 or (level > 1 and PROF != level): return ""
    return ("s_memrealtime s[72:73]\ns_memtime s[74:75]\n"
            f"s_lshl_b32 s76, s2, 3\ns_add_u32 s76, s76, s{sW}\ns_lshl_b32 s76, s76, 8\ns_add_u32 s76, s76, {STAMP + idx*8}\n"
            + (f"s_lshl_b32 s77, s{dyn}, 3\ns_sub_u32 s76, s76, s77\n" if dyn else "") +
            "s_waitcnt lgkmcnt(0)\nv_mov_b32 v252, s72\nv_mov_b32 v253, s74\n"
            f"s_mov_b64 s[72:73], exec\ns_mov_b64 exec, 1\nbuffer_store_dwordx2 v[252:253], v{vLANE}, s[{SWS}:{SWS+3}], s76 offen\ns_mov_b64 exec, s[72:73]\n")
def stamp(a, idx, level=1): a(stamp_txt(idx, level))

def srd(a, d, ptr, nbytes):
    a(f"s_mov_b32 s{d}, s{ptr}\ns_and_b32 s{d+1}, s{ptr+1}, 0xffff\ns_mov_b32 s{d+2}, {nbytes}\ns_mov_b32 s{d+3}, 0x20000")

def resolve_vm(lines):
    out = []; ops = []
    for l in lines:
        for s in l.split("\n"):
            s = s.strip()
            if s.startswith("@vmwait"):
                tag = s.split()[1]
                idx = max(i for i, t in enumerate(ops) if t == tag)
                n = len(ops) - 1 - idx
                assert n <= 63
                out.append(f"s_waitcnt vmcnt({n})")
            else:
                m = re.search(r";@vm (\S+)", s)
                if m: ops.append(m.group(1))
                out.append(s)
    return out

def publish(val, wave=0):
    u = uid()
    if val == 1:
        st = f"v_mov_b32 v251, s{sF}\n", f"buffer_store_byte v248, v251, s[{SDBG}:{SDBG+3}], 0 offen sc1\n"
    else:
        st = f"s_lshl_b32 s{sT}, s{sF}, 7\ns_add_u32 s{sT}, s{sT}, {FLG}\nv_mov_b32 v251, s{sT}\n", f"buffer_store_dword v248, v251, s[{SWS}:{SWS+3}], 0 offen sc1\n"
    return (f"s_cmp_lg_u32 s{sW}, {wave}\ns_cbranch_scc1 L_pub{u}\nv_mov_b32 v248, {val}\n" + st[0] +
            "s_mov_b64 s[72:73], exec\ns_mov_b64 exec, 1\n" + st[1] + f"s_mov_b64 exec, s[72:73]\nL_pub{u}:")
def flag_addr(): return f"v_lshlrev_b32 v{vPA}, 7, v{vPA}\nv_add_u32 v{vPA}, {FLG}, v{vPA}"
def poll_issue(): return f"buffer_load_dword v{vPV}, v{vPA}, s[{SWS}:{SWS+3}], 0 offen sc1"
def poll_check(thr):
    u = uid()
    return (f"s_mov_b32 s{sSpin}, 0\nL_pl{u}:\nv_cmp_gt_u32 vcc, {thr}, v{vPV}\ns_cbranch_vccz L_pd{u}\n"
            f"s_add_u32 s{sSpin}, s{sSpin}, 1\ns_cmp_gt_u32 s{sSpin}, 0x40000\ns_cbranch_scc1 L_pd{u}\n"
            f"s_sleep 4\n{poll_issue()}\ns_waitcnt vmcnt(0)\ns_branch L_pl{u}\nL_pd{u}:")
def poll_one(thr, wave=0):
    u = uid()
    return (f"s_cmp_lg_u32 s{sW}, {wave}\ns_cbranch_scc1 L_po{u}\n" + poll_issue() + "\ns_waitcnt vmcnt(0)\n" + poll_check(thr) + f"\nL_po{u}:")
def poll2_issue(): return f"buffer_load_dword v{vPV}, v{vPA}, s[{SDBG}:{SDBG+3}], 0 offen sc1"
def poll2_check():
    u = uid()
    return (f"s_mov_b32 s{sSpin}, 0\nL_pl{u}:\nv_cmp_ne_u32 vcc, 0x01010101, v{vPV}\ns_cbranch_vccz L_pd{u}\n"
            f"s_add_u32 s{sSpin}, s{sSpin}, 1\ns_cmp_gt_u32 s{sSpin}, 0x40000\ns_cbranch_scc1 L_pd{u}\n"
            f"s_sleep 8\n{poll2_issue()}\ns_waitcnt vmcnt(0)\ns_branch L_pl{u}\nL_pd{u}:")
def with_regs(txt, m):
    for k, v in m.items(): txt = re.sub(rf"\bv{k}\b", f"v{v}", txt)
    return txt

def unpack8(a, src, dst):
    for i in range(4):
        a(f"v_lshlrev_b32 v{dst+2*i}, 16, v{src+i}\nv_and_b32 v{dst+2*i+1}, 0xffff0000, v{src+i}")
def w_dma_voff(a, v, stride, t):
    a(f"v_lshrrev_b32 v{t}, 4, v{vLANE}\nv_bfe_u32 v{t+1}, v{vLANE}, 1, 3\nv_xor_b32 v{t+1}, v{t+1}, v{t}\nv_lshlrev_b32 v{t+1}, 5, v{t+1}")
    a(f"v_and_b32 v{t+2}, 1, v{vLANE}\nv_lshl_add_u32 v{t+1}, v{t+2}, 4, v{t+1}\nv_mul_u32_u24 v{t}, {stride}, v{t}")
    a(f"v_add_u32 v{v}, v{t}, v{t+1}\nv_xor_b32 v{t+1}, 128, v{t+1}\nv_add_u32 v{v+1}, v{t}, v{t+1}")
def w_read_addr(a, v, n, base_s, dt0_s, t):
    a(f"v_lshrrev_b32 v{t}, 4, v{vLANE}\nv_bfe_u32 v{t+1}, v{vLANE}, 2, 2")
    a(f"v_lshl_add_u32 v{t+2}, v{t}, 3, v{t+1}\nv_lshlrev_b32 v{t+2}, 8, v{t+2}")
    a(f"v_and_b32 v{t+3}, 3, v{vLANE}\nv_lshl_add_u32 v{t+2}, v{t+3}, 3, v{t+2}\nv_add_u32 v{t+2}, s{base_s}, v{t+2}")
    a(f"v_and_b32 v{t}, 1, v{t}\nv_lshl_or_b32 v{t}, v{t}, 2, v{t+1}")
    for i in range(n):
        a(f"s_add_u32 s{sT}, s{dt0_s}, {i}\nv_xor_b32 v{t+3}, s{sT}, v{t}\nv_lshl_add_u32 v{v+i}, v{t+3}, 5, v{t+2}")
def interleave(x, y):
    out = []
    for i in range(max(len(x), len(y))):
        if i < len(x): out.append(x[i])
        if i < len(y): out.append(y[i])
    return out

def ln_row(B, nop=0):
    a = Asm()
    pk, x, t = B, B+4, B+12
    m, s, u, r, d = t, t+1, t+2, t+3, t+4
    def allreduce(v):
        for mode in ("quad_perm:[1,0,3,2]", "quad_perm:[2,3,0,1]", "row_half_mirror", "row_mirror"):
            a(f"s_nop {nop}\nv_add_f32_dpp v{v}, v{v}, v{v} {mode} row_mask:0xf bank_mask:0xf")
        for sw in ("v_permlane16_swap_b32", "v_permlane32_swap_b32"):
            a(f"v_mov_b32 v{u}, v{v}\ns_nop {nop}\n{sw} v{v}, v{u}\nv_add_f32 v{v}, v{v}, v{u}")
    def rbf(v): a(f"v_cvt_pk_bf16_f32 v{v}, v{v}, v{v}\nv_lshlrev_b32 v{v}, 16, v{v}")
    def stats():
        a(f"v_add_f32 v{m}, v{x}, v{x+1}\nv_add_f32 v{s}, v{x+2}, v{x+3}\nv_add_f32 v{u}, v{x+4}, v{x+5}\nv_add_f32 v{r}, v{x+6}, v{x+7}")
        a(f"v_add_f32 v{m}, v{m}, v{s}\nv_add_f32 v{u}, v{u}, v{r}\nv_add_f32 v{m}, v{m}, v{u}")
        allreduce(m)
        a(f"v_mul_f32 v{m}, 0x3b000000, v{m}")
        for i in range(8): a(f"v_sub_f32 v{d+i}, v{x+i}, v{m}")
        a(f"v_mul_f32 v{s}, v{d}, v{d}\nv_mul_f32 v{r}, v{d+1}, v{d+1}")
        for i in range(2, 8, 2): a(f"v_fmac_f32 v{s}, v{d+i}, v{d+i}\nv_fmac_f32 v{r}, v{d+i+1}, v{d+i+1}")
        a(f"v_add_f32 v{s}, v{s}, v{r}")
        allreduce(s)
        a(f"v_mul_f32 v{s}, 0x3b000000, v{s}")
        rbf(m); rbf(s)
        a(f"v_add_f32 v{s}, 0x3727c5ac, v{s}")
        rbf(s)
        a(f"v_sqrt_f32 v{s}, v{s}\ns_nop 0")
        rbf(s)
        a(f"v_rcp_f32 v{r}, v{s}")
    unpack8(a, pk, x)
    stats()
    for i in range(8): a(f"v_sub_f32 v{d+i}, v{x+i}, v{m}")
    for i in range(4): a(f"v_cvt_pk_bf16_f32 v{pk+i}, v{d+2*i}, v{d+2*i+1}")
    unpack8(a, pk, d)
    for i in range(8):
        a(f"v_mul_f32 v{x+i}, v{d+i}, v{r}\nv_fma_f32 v{d+i}, -v{x+i}, v{s}, v{d+i}\nv_fmac_f32 v{x+i}, v{d+i}, v{r}")
    for i in range(4): a(f"v_cvt_pk_bf16_f32 v{pk+i}, v{x+2*i}, v{x+2*i+1}")
    unpack8(a, pk, x)
    stats()
    a(f"v_mov_b32 v{B+26}, v{m}\nv_mov_b32 v{B+27}, v{r}")
    return [l.strip() for l in a.lines]

sG, sRQ, sBlk, sN, sNW, sIt, sKs, sVs, sThr, sFloor, sMask, sRt0 = 56, 57, 58, 59, 60, 61, 62, 63, 96, 97, 98, 99
def att_ids(a):
    a(f"s_lshr_b32 s{sG}, s{sW}, 2\ns_and_b32 s{sRQ}, s{sW}, 3")
    a(f"s_sub_u32 s{sBlk}, 15, s{sP}\ns_cmp_eq_u32 s{sG}, 0\ns_cselect_b32 s{sBlk}, s{sBlk}, s{sP}")
    a(f"s_lshl_b32 s{sRt0}, s{sBlk}, 3\ns_lshl_b32 s{sT}, s{sRQ}, 1\ns_add_u32 s{sRt0}, s{sRt0}, s{sT}")

P1_W, P1_A, P1_NA = 128, 160, 8
vAr, vWr, vDA, vDW, vD1 = 192, 194, 198, 244, 246
sAoff, sWoff, sLdsA, sLdsW = 60, 61, 62, 63
sNlds, sHasM, sOOB, sXit, sL1, sC1, sXn, sW1b, sJ = 70, 71, 82, 83, 85, 86, 87, 88, 89
SLOT = [0, 65536, 114688, 0]

def p1_dma(i, srdw=SWKV, dA=0, dL=0):
    if i < 4:
        return (f"s_add_u32 m0, s{sLdsA}, {(i*1024 + dL) & 0xffffffff}\ns_add_u32 s{sT}, s{sAoff}, {(i*8192 + dA) & 0xffffffff}\n"
                f"buffer_load_dwordx4 v{vDA+(i&1)}, s[{SCKV}:{SCKV+3}], s{sT} offen lds")
    j = i - 4
    return (f"s_add_u32 m0, s{sLdsW}, {(j*1024 + dL) & 0xffffffff}\ns_add_u32 s{sT}, s{sWoff}, {j*4*8192}\n"
            f"buffer_load_dwordx4 v{vDW+(j>>1)}, s[{srdw}:{srdw+3}], s{sT} offen lds")
def p1_adv():
    return (f"s_add_u32 s{sAoff}, s{sAoff}, 128\ns_add_u32 s{sWoff}, s{sWoff}, {64*8192}\n"
            f"s_xor_b32 s{sLdsA}, s{sLdsA}, 0x10000\ns_xor_b32 s{sLdsW}, s{sLdsW}, 0x10000")
def p2_dma(stg, i, tag=True):
    tg = f" ;@vm d{stg}" if tag else ""
    if i < 4:
        return (f"s_add_u32 m0, s{sNlds}, {SLOT[stg] + i*1024}\ns_add_u32 s{sT}, s{sJ}, {(stg*128 + i*4)*8192}\n"
                f"buffer_load_dwordx4 v{vDW+((i>>1)&1)}, s[{SWQ}:{SWQ+3}], s{sT} offen lds{tg}")
    j = i - 4
    return (f"s_add_u32 m0, s{sL1}, {SLOT[stg] + 32768 + j*1024}\ns_add_u32 s{sT}, s{sW1b}, {(stg*128 + j*8)*2752}\n"
            f"buffer_load_dwordx4 v{vD1+j}, s[{SW1}:{SW1+3}], s{sT} offen lds{tg}")
def accP1(isV, kt, dt):
    return (((kt >> 1)*4 + dt)*2 + (kt & 1))*4 if isV else (kt*4 + dt)*4

vT128, vT1K, vTW, vLNr, vLNs = 232, 233, 234, 235, 240
sPre, sPost = 80, 81
def side_pre(tag, isV):
    if isV: return ""
    return (f"L_pre{tag}:\ns_cmp_lg_u32 s{sCnt}, 6\ns_cbranch_scc1 L_pre1{tag}\ns_call_b64 s[{sRet}:{sRet+1}], L_ln\ns_branch L_preb{tag}\n"
            f"L_pre1{tag}:\ns_waitcnt vmcnt(0)\n" + poll2_check() + f"\ns_branch L_preb{tag}")
def side_post(tag, isV):
    def ld(v, srdn, x=""): return f"buffer_load_dword v229, v{v}, s[{srdn}:{srdn+3}], s57 offen{x}\n"
    t = f"L_post{tag}:\ns_cmp_lg_u32 s{sCnt}, s{sXit}\ns_cbranch_scc1 L_q1{tag}\n"
    t += f"s_lshr_b32 s57, s2, 3\ns_lshl_b32 s57, s57, 16\ns_lshl_b32 s58, s{sW}, 13\ns_add_u32 s57, s57, s58\n" + ld(vT128, SWS, " sc1") + f"s_branch L_postb{tag}\n"
    t += f"L_q1{tag}:\n"
    if isV:
        t += f"s_cmp_lg_u32 s{sW}, 4\ns_cbranch_scc1 L_q2{tag}\n"
        t += f"s_lshl_b32 s57, s{sP}, 2\ns_and_b32 s58, s{sH}, 3\ns_add_u32 s57, s57, s58\ns_lshl_b32 s57, s57, 16\ns_sub_u32 s58, 9, s{sCnt}\ns_lshl_b32 s58, s58, 7\ns_add_u32 s57, s57, s58\n" + ld(vT1K, SCKV) + f"s_branch L_postb{tag}\n"
        t += f"L_q2{tag}:\ns_cmp_eq_u32 s{sCnt}, 4\ns_cbranch_scc1 L_q3{tag}\n"
        t += f"s_and_b32 s57, s{sCnt}, 1\ns_lshl_b32 s57, s57, 21\ns_lshl_b32 s58, s{sP}, 16\ns_add_u32 s57, s57, s58\ns_lshl_b32 s58, s{sH}, 8\ns_add_u32 s57, s57, s58\n" + ld(vTW, SWQ) + f"s_branch L_postb{tag}\n"
        t += f"L_q3{tag}:\ns_lshl_b32 s57, s2, 13\n" + ld(vT128, SW1) + f"s_branch L_postb{tag}"
    else:
        t += f"s_cmp_eq_u32 s{sCnt}, 5\ns_cbranch_scc0 L_q2{tag}\n" + publish(1) + f"\ns_branch L_postb{tag}\n"
        t += f"L_q2{tag}:\n" + poll2_issue() + f"\ns_branch L_postb{tag}"
    return t
def ln_sub(a):
    a.label("L_ln")
    for l in ln_row(200, 1): a(l)
    a(f"s_mul_i32 s57, s{sW}, 1040\ns_add_u32 s57, s57, 131072\nv_add_u32 v204, s57, v{vL16}\nv_mov_b32 v205, 0")
    a("ds_write_b128 v204, v[200:203]")
    a(f"s_lshl_b32 s57, s{sF}, 3\ns_add_u32 s57, s57, s{sW}\ns_lshl_b32 s57, s57, 3\ns_add_u32 s57, s57, {STAT}")
    a("s_mov_b64 s[72:73], exec\ns_mov_b64 exec, 1")
    a(f"buffer_store_dwordx2 v[226:227], v205, s[{SWS}:{SWS+3}], s57 offen{SC}")
    a("s_mov_b64 exec, s[72:73]\ns_waitcnt lgkmcnt(0)")
    a(f"s_setpc_b64 s[{sRet}:{sRet+1}]")
def ln_store_txt(tag):
    return (f"s_cmp_lg_u32 s{sCnt}, 6\ns_cbranch_scc1 L_lns{tag}\nds_read_b128 v[200:203], v{vLNr}\ns_waitcnt lgkmcnt(0)\n"
            f"buffer_store_dwordx4 v[200:203], v{vLNs}, s[{SWS}:{SWS+3}], s7 offen{SC}\nL_lns{tag}:\n")

def p1_main(a, isV, tag):
    S = Sched(lookahead=24, per_slot=1)
    for st in range(8):
        for ks in range(2):
            for kt in range(8):
                for dt in range(4):
                    acc = accP1(isV, kt, dt)
                    wf = P1_W + ((st*2+ks) & 1) * 16 + dt * 4
                    af = P1_A + ((st*16 + ks*8 + kt) % P1_NA) * 4
                    S.add_slot(mfma(acc, af, wf) if isV else mfma(acc, wf, af), [('W', st, ks, dt), ('A', st, ks, kt)])
    x = "\n".join(f"v_xor_b32 v{r}, 0x10000, v{r}" for r in list(range(vAr, vAr+2)) + list(range(vWr, vWr+4)))
    for st in range(9):
        dmas = []
        if st > 0:
            sy = ""
            if st < 7 and not isV: sy += f"s_bitcmp1_b32 s{sPre}, s{sCnt}\ns_cbranch_scc1 L_pre{tag}\nL_preb{tag}:\n"
            sy += "s_waitcnt vmcnt(0)\ns_barrier\n" + (stamp_txt(22, 4, sCnt) if st < 7 else stamp_txt(15 + st, 4))
            if st < 7:
                sy += f"s_cmp_eq_u32 s{sCnt}, 6\ns_cbranch_scc1 L_lns{tag}\nL_lnsb{tag}:\n"
                dmas = [p1_dma(i) for i in range(8)]
                dmas[7] += "\n" + p1_adv() + f"\ns_bitcmp1_b32 s{sPost}, s{sCnt}\ns_cbranch_scc1 L_post{tag}\nL_postb{tag}:"
            else:
                dmas = [p2_dma(st - 7, i, False) for i in range(6)]
            if isV or st == 8:
                sy += "\n".join(dmas) + "\n"; dmas = []
            S.add_sync(sy + (x if st < 8 else ""), drain=True, delay=3)
        if st == 8: break
        for ks in range(2):
            order = [('W', 0), ('W', 1), ('A', 0), ('W', 2), ('W', 3)] + [('A', k) for k in range(1, 8)]
            for (kind, i) in order:
                if kind == 'W':
                    wf = P1_W + ((st*2+ks) & 1) * 16 + i * 4
                    S.add_load(('W', st, ks, i),
                               [f"ds_read_b64_tr_b16 v[{wf}:{wf+1}], v{vWr+i} offset:{ks*8192}",
                                f"ds_read_b64_tr_b16 v[{wf+2}:{wf+3}], v{vWr+i} offset:{ks*8192+1024}"], wf)
                else:
                    af = P1_A + ((st*16 + ks*8 + i) % P1_NA) * 4
                    S.add_load(('A', st, ks, i), [f"ds_read_b128 v[{af}:{af+3}], v{vAr+ks} offset:{i*2048}"], af)
                if dmas and ks == 0:
                    S.add_sync(dmas.pop(0), drain=False)
                    if kind == 'W' and dmas: S.add_sync(dmas.pop(0), drain=False)
    S.ops[-1]['force_at'] = 64*7 + 44
    segs = S.build(cuts=[64*s for s in range(8)])
    body = segs[2]
    for k in range(3, 7): assert body == segs[k], "p1 not periodic"
    bi = [i for i, l in enumerate(body) if "s_barrier" in l][0]
    for l in body[bi+1:]:
        if l.startswith("ds_read"): a(l)
    a(f"s_mov_b32 s{sCnt}, 6")
    a.label(f"L_p1_{tag}")
    for l in body: a(l)
    a(f"s_sub_u32 s{sCnt}, s{sCnt}, 1\ns_cmp_lg_u32 s{sCnt}, 0\ns_cbranch_scc1 L_p1_{tag}")
    for l in segs[7] + segs[8]: a(l)
    a("s_branch L_p1_done")
    a(side_pre(tag, isV)); a(side_post(tag, isV))
    a(f"L_lns{tag}:\nds_read_b128 v[200:203], v{vLNr}\ns_waitcnt lgkmcnt(0)\n"
      f"buffer_store_dwordx4 v[200:203], v{vLNs}, s[{SWS}:{SWS+3}], s7 offen{SC}\ns_branch L_lnsb{tag}")

def phase1(a):
    a("s_cmp_ge_u32 s2, 256\ns_cbranch_scc1 L_end")
    a("s_load_dwordx16 s[64:79], s[0:1], 0\ns_load_dwordx8 s[80:87], s[0:1], 64\ns_load_dwordx4 s[88:91], s[0:1], 96")
    a(f"v_lshrrev_b32 v1, 6, v0\nv_and_b32 v{vLANE}, 63, v0\nv_readfirstlane_b32 s{sW}, v1\nv_lshlrev_b32 v{vL16}, 4, v{vLANE}")
    a(f"s_and_b32 s56, s2, 7\ns_lshl_b32 s56, s56, 2\ns_lshr_b32 s57, s2, 3\ns_and_b32 s57, s57, 3\ns_add_u32 s{sH}, s56, s57")
    a(f"s_lshr_b32 s{sP}, s2, 5\ns_lshl_b32 s{sF}, s{sH}, 3\ns_add_u32 s{sF}, s{sF}, s{sP}")
    t = 236
    a(f"v_lshrrev_b32 v{t}, 3, v{vLANE}\nv_lshlrev_b32 v{t}, 10, v{t}")
    a(f"v_and_b32 v{t+1}, 7, v{vLANE}\nv_lshrrev_b32 v{t+2}, 4, v{vLANE}\nv_xor_b32 v{t+1}, v{t+1}, v{t+2}\nv_lshlrev_b32 v{t+1}, 4, v{t+1}")
    a(f"v_add_u32 v{vDA}, v{t}, v{t+1}\nv_xor_b32 v{t+1}, 64, v{t+1}\nv_add_u32 v{vDA+1}, v{t}, v{t+1}")
    w_dma_voff(a, vDW, 8192, t)
    a(f"s_lshl_b32 s{sAoff}, s{sP}, 8\ns_lshl_b32 s{sT}, s{sW}, 5\ns_add_u32 s{sAoff}, s{sAoff}, s{sT}\ns_lshl_b32 s{sAoff}, s{sAoff}, 10")
    a(f"s_and_b32 s{sT}, s{sW}, 3\ns_lshl_b32 s{sWoff}, s{sT}, 17\ns_lshl_b32 s{sT}, s{sH}, 8\ns_add_u32 s{sWoff}, s{sWoff}, s{sT}")
    a(f"s_lshl_b32 s{sLdsA}, s{sW}, 12\ns_add_u32 s{sLdsW}, s{sLdsA}, 32768")
    a("s_waitcnt lgkmcnt(0)")
    srd(a, SX, 64, 2*MB); srd(a, SCKV, 66, 2*MB); srd(a, SWO, 70, 4*MB)
    a("s_mov_b32 s100, s74\ns_mov_b32 s101, s75\ns_mov_b32 s96, s72\ns_mov_b32 s97, s73")
    a(f"s_cmp_lt_u32 s{sW}, 4\ns_cselect_b32 s56, s70, s72\ns_cselect_b32 s57, s71, s73")
    srd(a, SWKV, 56, 4*MB); srd(a, SWS, 90, WS_BYTES)
    stamp(a, 0)
    a(f"s_lshl_b32 s56, s{sF}, 3\ns_add_u32 s56, s56, s{sW}\ns_lshl_b32 s57, s56, 10")
    for i in range(8): a(p1_dma(i))
    a(p1_adv())
    a(f"buffer_load_dwordx4 v[200:203], v{vL16}, s[{SX}:{SX+3}], s57 offen")
    a(publish(0))
    a.label("L_st_j")
    stamp(a, 4)
    srd(a, SWQ, 68, 4*MB); srd(a, SWO, 100, 4*MB); srd(a, SW1, 78, 512*1376*2); srd(a, SB1, 80, 1376*2); srd(a, SW2, 82, 512*1376*2)
    srd(a, SB2, 84, 1024); srd(a, SOUT, 86, 2*MB); srd(a, SDBG, 88, 256)
    a(f"s_and_b32 s{sT}, s{sW}, 1\ns_lshl_b32 s{sT}, s{sT}, 14")
    a(f"v_and_b32 v{t}, 15, v{vLANE}\nv_lshlrev_b32 v{t+1}, 7, v{t}\nv_add_u32 v{t+1}, s{sT}, v{t+1}")
    a(f"v_lshrrev_b32 v{t}, 1, v{t}\nv_lshrrev_b32 v{t+2}, 4, v{vLANE}\nv_xor_b32 v{t}, v{t}, v{t+2}")
    a(f"v_lshl_add_u32 v{vAr}, v{t}, 4, v{t+1}\nv_xor_b32 v{vAr+1}, 64, v{vAr}")
    a(f"s_lshr_b32 s56, s{sW}, 2\ns_lshl_b32 s56, s56, 14\ns_add_u32 s56, s56, 32768\ns_bfe_u32 s57, s{sW}, 0x10001\ns_lshl_b32 s57, s57, 2")
    w_read_addr(a, vWr, 4, 56, 57, t)
    att_ids(a)
    a(f"s_lshl_b32 s{sXn}, s{sRt0}, 14")
    a(f"s_lshr_b32 s{sC1}, s{sH}, 2\ns_add_u32 s{sC1}, s{sC1}, s{sP}\ns_and_b32 s{sC1}, s{sC1}, 7\ns_and_b32 s{sT}, s{sH}, 3\ns_lshl_b32 s{sT}, s{sT}, 3\ns_add_u32 s{sC1}, s{sC1}, s{sT}")
    a(f"s_cmp_lt_u32 s{sC1}, 22\ns_cselect_b32 s{sHasM}, 1, 0")
    a(f"s_lshl_b32 s{sJ}, s{sW}, 17\ns_lshl_b32 s{sT}, s{sH}, 8\ns_add_u32 s{sJ}, s{sJ}, s{sT}")
    a(f"s_lshl_b32 s{sNlds}, s{sW}, 12\ns_lshl_b32 s{sL1}, s{sW}, 11\ns_mov_b32 s{sOOB}, {OOB}")
    a(f"v_lshrrev_b32 v{t}, 3, v{vLANE}\nv_mul_u32_u24 v{t}, 2752, v{t}\nv_bfe_u32 v{t+1}, v{vLANE}, 1, 2\nv_bfe_u32 v{t+2}, v{vLANE}, 4, 1")
    a(f"v_xor_b32 v{t+1}, v{t+1}, v{t+2}\nv_lshlrev_b32 v{t+1}, 5, v{t+1}\nv_and_b32 v{t+2}, 1, v{vLANE}\nv_lshl_add_u32 v{t+1}, v{t+2}, 4, v{t+1}")
    a(f"v_add_u32 v{vD1}, v{t}, v{t+1}\nv_xor_b32 v{t+1}, 64, v{t+1}\nv_add_u32 v{vD1+1}, v{t}, v{t+1}")
    a(f"s_mul_i32 s{sW1b}, s{sW}, {16*2752}\ns_lshl_b32 s{sT}, s{sC1}, 7\ns_add_u32 s{sW1b}, s{sW1b}, s{sT}\ns_cmp_lg_u32 s{sHasM}, 0\ns_cselect_b32 s{sW1b}, s{sW1b}, s{sOOB}")
    a(f"s_lshl_b32 s{sT}, s{sW}, 2\ns_lshr_b32 s{sXit}, 0x22211221, s{sT}\ns_and_b32 s{sXit}, s{sXit}, 15")
    a(f"s_lshl_b32 s{sPost}, 1, s{sXit}\ns_mov_b32 s{sPre}, 0x40")
    a(f"s_cmp_eq_u32 s{sW}, 0\ns_cselect_b32 s{sT}, 0x28, 0\ns_or_b32 s{sPost}, s{sPost}, s{sT}\ns_cmp_eq_u32 s{sW}, 0\ns_cselect_b32 s{sT}, 4, 0\ns_or_b32 s{sPre}, s{sPre}, s{sT}")
    a(f"s_cmp_eq_u32 s{sW}, 4\ns_cselect_b32 s{sT}, 0x7c, 0\ns_or_b32 s{sPost}, s{sPost}, s{sT}\ns_cmp_eq_u32 s{sW}, 5\ns_cselect_b32 s{sT}, 0x70, 0\ns_or_b32 s{sPost}, s{sPost}, s{sT}")
    a(f"v_lshlrev_b32 v{vPA}, 2, v{vLANE}\nv_lshlrev_b32 v{vT128}, 7, v{vLANE}\nv_lshlrev_b32 v{vT1K}, 10, v{vLANE}")
    a(f"v_lshrrev_b32 v{t+1}, 4, v{vLANE}\nv_lshlrev_b32 v{t+1}, 6, v{t+1}\nv_bfe_u32 v{t+2}, v{vLANE}, 1, 3\nv_add_u32 v{t+1}, v{t+1}, v{t+2}\nv_lshlrev_b32 v{t+1}, 13, v{t+1}")
    a(f"v_and_b32 v{t+2}, 1, v{vLANE}\nv_lshl_add_u32 v{vTW}, v{t+2}, 7, v{t+1}")
    a(f"v_and_b32 v{t}, 7, v{vLANE}\nv_mul_u32_u24 v{vLNr}, 1040, v{t}\nv_lshrrev_b32 v{t+2}, 3, v{vLANE}\nv_lshl_add_u32 v{vLNr}, v{t+2}, 4, v{vLNr}")
    a(f"s_lshl_b32 s57, s{sW}, 7\ns_add_u32 s57, s57, 131072\nv_add_u32 v{vLNr}, s57, v{vLNr}")
    a(f"v_lshlrev_b32 v{vLNs}, 8, v{t+2}\nv_lshl_add_u32 v{vLNs}, v{t}, 4, v{vLNs}")
    a(f"s_lshr_b32 s7, s{sF}, 1\ns_lshl_b32 s7, s7, 14\ns_lshl_b32 s58, s{sW}, 11\ns_add_u32 s7, s7, s58\ns_and_b32 s58, s{sF}, 1\ns_lshl_b32 s58, s58, 7\ns_add_u32 s7, s7, s58")
    for r in range(128): a(f"v_mov_b32 v{r}, 0")
    for i in range(4): a(p1_dma(i))
    a("s_waitcnt vmcnt(4)\ns_barrier")
    stamp(a, 1)
    for i in range(4, 8): a(p1_dma(i))
    a(p1_adv())
    a(f"s_bitcmp1_b32 s{sW}, 1\ns_cbranch_scc0 L_st_a")
    a(f"s_and_b32 s57, s{sW}, 1\ns_lshl_b32 s57, s57, 21\ns_lshl_b32 s58, s{sP}, 16\ns_add_u32 s57, s57, s58\ns_lshl_b32 s58, s{sH}, 8\ns_add_u32 s57, s57, s58")
    a(f"buffer_load_dword v229, v{vTW}, s[{SWKV}:{SWKV+3}], s57 offen")
    a.label("L_st_a")
    a(f"s_cmp_ge_u32 s{sW}, 4\ns_cbranch_scc1 L_p1v")
    p1_main(a, False, "k")
    ln_sub(a)
    a.label("L_p1v")
    a(f"s_cmp_lg_u32 s{sW}, 4\ns_cbranch_scc1 L_st_b")
    a(f"s_lshl_b32 s57, s{sP}, 2\ns_and_b32 s58, s{sH}, 3\ns_add_u32 s57, s57, s58\ns_lshl_b32 s57, s57, 16\ns_add_u32 s57, s57, 256")
    a(f"buffer_load_dword v229, v{vT1K}, s[{SCKV}:{SCKV+3}], s57 offen")
    a.label("L_st_b")
    a(f"s_call_b64 s[{sRet}:{sRet+1}], L_ln")
    p1_main(a, True, "v")
    a.label("L_p1_done")
    stamp(a, 2)

def rXm(rt, ks): return 64 + ((ks % 6)*2 + rt)*4
AQ, A1, CS, WR, NWR, ONE = 112, 120, 124, 224, 5, 248
QACC, MACC = 128, 192
LOW = {248: 0, 249: 1, 250: 2, 251: 3}
def x_load(rt, ks):
    r = rXm(rt, ks)
    return (f"s_add_u32 s{sT}, s{sXn}, {rt*16384 + (ks//4)*4096}\n"
            f"buffer_load_dwordx4 v[{r}:{r+3}], v{vL16}, s[{SWS}:{SWS+3}], s{sT} offen offset:{(ks%4)*1024}{SC} ;@vm x{ks}")
def kv_store(j):
    base = 65 if j & 2 else 64
    return (f"s_add_u32 s{sT}, s{base}, {(j>>2)*8192}\n"
            f"buffer_store_dwordx4 v[{4*j}:{4*j+3}], v{vL16}, s[{SWS}:{SWS+3}], s{sT} offen offset:{(j&1)*1024}{SC} ;@vm st")
def att_scalars(a):
    att_ids(a)
    a(f"s_lshl_b32 s{sN}, s{sBlk}, 1\ns_lshr_b32 s{sT}, s{sRQ}, 1\ns_add_u32 s{sN}, s{sN}, s{sT}\ns_add_u32 s{sN}, s{sN}, 1")
    a(f"s_lshl_b32 s{sT}, s{sP}, 1\ns_sub_u32 s{sNW}, 32, s{sT}\ns_lshl_b32 s92, s{sRQ}, 12")
    a(f"s_lshl_b32 s{sKs}, s{sH}, 19\ns_add_u32 s{sKs}, s{sKs}, s92\ns_add_u32 s{sVs}, s{sKs}, {VF}\ns_add_u32 s{sKs}, s{sKs}, {KF}")
    a("s_add_u32 s92, s92, 0x10000")
def kv_dma(src, t, lds):
    s = f"s_xor_b32 m0, s92, {lds ^ 0x10000}\ns_add_u32 s{sT}, s{src}, {t*16384}\n"
    for i in range(4):
        s += f"buffer_load_dwordx4 v{vL16}, s[{SWS}:{SWS+3}], s{sT} offen offset:{i*1024}{SC} lds\n"
    return s
def pk(op, d, x, y, mods=""): return f"v_pk_{op}_f32 v[{d}:{d+1}], {x}, {y}{mods}"

def p2_merged(a):
    a(f"s_lshl_b32 s64, s{sH}, 19\ns_lshl_b32 s{sT}, s{sP}, 16\ns_add_u32 s64, s64, s{sT}\ns_and_b32 s{sT}, s{sW}, 1\ns_lshl_b32 s{sT}, s{sT}, 15\ns_add_u32 s64, s64, s{sT}")
    a(f"s_bfe_u32 s66, s{sW}, 0x10001\ns_lshl_b32 s67, s66, 12\ns_lshl_b32 s66, s66, 11\ns_add_u32 s66, s66, {KF}\ns_add_u32 s67, s67, {VF}")
    a(f"s_cmp_lt_u32 s{sW}, 4\ns_cselect_b32 s66, s66, s67\ns_cselect_b32 s65, 2, 1\ns_lshl_b32 s65, s65, 11\ns_add_u32 s64, s64, s66\ns_add_u32 s65, s65, s64")
    for j in range(16):
        for i in range(4): a(f"v_cvt_pk_bf16_f32 v{4*j+i}, v{8*j+2*i}, v{8*j+2*i+1}")
    lines = []
    for ks in range(5):
        for rt in range(2): lines.append(x_load(rt, ks))
    b = Asm()
    att_scalars(b)
    b("s_mov_b32 s100, 0")
    t = 192
    w_read_addr(b, AQ, 8, 100, 100, t)
    b(f"v_lshrrev_b32 v{t}, 4, v{vLANE}\nv_bfe_u32 v{t+1}, v{vLANE}, 2, 2\nv_lshl_add_u32 v{t+2}, v{t}, 3, v{t+1}\nv_lshlrev_b32 v{t+2}, 7, v{t+2}")
    b(f"v_and_b32 v{t+3}, 3, v{vLANE}\nv_lshl_add_u32 v{t+2}, v{t+3}, 3, v{t+2}\nv_add_u32 v{t+2}, 32768, v{t+2}")
    b(f"v_and_b32 v{t}, 1, v{t}\nv_lshrrev_b32 v{t+1}, 1, v{t+1}\nv_lshl_or_b32 v{t}, v{t}, 1, v{t+1}")
    for ct in range(4): b(f"v_xor_b32 v{t+3}, {ct}, v{t}\nv_lshl_add_u32 v{A1+ct}, v{t+3}, 5, v{t+2}")
    for r in range(CS, CS+4): b(f"v_mov_b32 v{r}, 0")
    for r in range(ONE, ONE+4): b(f"v_mov_b32 v{r}, 0x3f803f80")
    lines += [l.strip() for l in b.lines]
    lines += stamp_txt(24, 4).split("\n")
    K = 24
    fills = {}
    def F(sl, txt): fills.setdefault(sl, []).append(txt)
    for ks in range(11):
        F(K*ks + 5, x_load(0, ks+5)); F(K*ks + 17, x_load(1, ks+5))
    for i in range(16): F(int(i*16.2) + 2, kv_store(i))
    for i in range(6): F(1 + 8*i + 3, p2_dma(2, i))
    ST_, BI_ = 8, 12
    F(K*6 + 1, f"v_and_b32 v4, 15, v{vLANE}\nv_lshlrev_b32 v4, 3, v4\ns_lshl_b32 s{sT}, s{sRt0}, 7\ns_add_u32 s{sT}, s{sT}, {STAT}\n"
               f"buffer_load_dwordx2 v[{ST_}:{ST_+1}], v4, s[{SWS}:{SWS+3}], s{sT} offen{SC} ;@vm m\n"
               f"buffer_load_dwordx2 v[{ST_+2}:{ST_+3}], v4, s[{SWS}:{SWS+3}], s{sT} offen offset:128{SC} ;@vm m")
    F(K*7 + 1, f"v_lshrrev_b32 v5, 4, v{vLANE}\nv_lshlrev_b32 v5, 3, v5\ns_lshl_b32 s{sT}, s{sC1}, 7\n" +
               "\n".join(f"buffer_load_dwordx2 v[{BI_+2*ct}:{BI_+2*ct+1}], v5, s[{SB1}:{SB1+3}], s{sT} offen offset:{ct*32} ;@vm m" for ct in range(4)))
    F(K*13 + 1, with_regs(f"v_and_b32 v{vPA}, 7, v{vLANE}\nv_max_u32 v{vPA}, 1, v{vPA}\nv_add_u32 v{vPA}, s{sP}, v{vPA}\nv_and_b32 v{vPA}, 7, v{vPA}\ns_lshl_b32 s{sT}, s{sH}, 3\nv_add_u32 v{vPA}, s{sT}, v{vPA}\n" + flag_addr(), LOW))
    F(K*15 + 1, with_regs(f"s_cmp_lg_u32 s{sW}, 0\ns_cbranch_scc1 L_p2_ni\n" + poll_issue() + "\nL_p2_ni:", LOW))
    Bf, t = 32, 20
    for ct in range(4):
        F(K*14 + 2 + 4*ct, f"v_lshlrev_b32 v{Bf+4*ct}, 16, v{BI_+2*ct}\nv_and_b32 v{Bf+1+4*ct}, 0xffff0000, v{BI_+2*ct}\n"
                           f"v_lshlrev_b32 v{Bf+2+4*ct}, 16, v{BI_+1+2*ct}\nv_and_b32 v{Bf+3+4*ct}, 0xffff0000, v{BI_+1+2*ct}")
    F(K*14 + 20, f"v_lshrrev_b32 v{t}, 4, v{vLANE}\nv_lshlrev_b32 v{t}, 4, v{t}\ns_lshl_b32 s{sT}, s{sW}, 6\ns_add_u32 s{sT}, s{sT}, 131072\nv_add_u32 v{t+1}, s{sT}, v{t}\nv_add_u32 v{t}, 131072, v{t}")
    S = Sched(lookahead=8, per_slot=2)
    n = 0
    for ks in range(16):
        stg, kk = ks // 4, ks % 4
        if kk == 0 and stg > 0:
            d = SLOT[stg] - SLOT[stg-1]
            upd = "\n".join(f"v_add_u32 v{r}, {d & 0xffffffff}, v{r}" for r in range(AQ, AQ+12))
            sy = {1: "s_barrier\n", 2: "@vmwait d2\ns_barrier\n", 3: "@vmwait st\ns_barrier\n" + with_regs(publish(2), LOW) + "\n"}[stg]
            S.add_sync(stamp_txt(24 + stg, 4) + sy + upd, drain=True, delay=2)
            if stg == 1:
                for i in range(6): F(K*4 + 2 + 4*i, p2_dma(3, i))
        order = list(range(8, 12)) + list(range(8)) if ks == 15 else list(range(12))
        firstslot = True
        for c in order:
            wf = WR + (n % NWR)*4; n += 1
            if c < 8:
                S.add_load((ks, c), [f"ds_read_b64_tr_b16 v[{wf}:{wf+1}], v{AQ+c} offset:{kk*8192}",
                                     f"ds_read_b64_tr_b16 v[{wf+2}:{wf+3}], v{AQ+c} offset:{kk*8192+1024}"], wf)
            else:
                S.add_load((ks, c), [f"ds_read_b64_tr_b16 v[{wf}:{wf+1}], v{A1+c-8} offset:{kk*4096}",
                                     f"ds_read_b64_tr_b16 v[{wf+2}:{wf+3}], v{A1+c-8} offset:{kk*4096+512}"], wf)
            for rt in range(2):
                acc = QACC + (rt*8 + c)*4 if c < 8 else MACC + (rt*4 + c-8)*4
                pre = ""
                if c >= 8 and rt == 1:
                    u = uid()
                    pre = f"s_cmp_eq_u32 s{sW}, {(ks>>3)*4+c-8}\ns_cbranch_scc0 L_cs{u}\n" + mfma(CS, wf, ONE) + f"\nL_cs{u}:\n"
                sl = S.add_slot(pre + mfma(acc, wf, rXm(rt, ks), "0" if ks == 0 else None), [(ks, c)])
                if firstslot: S.add_pre(sl, f"@vmwait x{ks}"); firstslot = False
    for sl, fl in fills.items():
        for f in fl: S.add_fill(sl, f)
    lines += S.build()[0]
    for l in resolve_vm(lines): a(l)
    stamp(a, 28, 4)
    a(f"ds_write_b128 v{t+1}, v[{CS}:{CS+3}]")
    a(f"s_waitcnt vmcnt(0) lgkmcnt(0)\ns_cmp_lg_u32 s{sW}, 0\ns_cbranch_scc1 L_p2_np\n" + with_regs(poll_check(2), LOW) + "\nL_p2_np:\ns_barrier")
    stamp(a, 29, 4)
    a(f"s_cmp_eq_u32 s{sG}, 0\ns_cbranch_scc1 L_kvf\n" + kv_dma(sKs, 0, 65536) + kv_dma(sKs, 1, 81920) + kv_dma(sVs, 0, 98304) + kv_dma(sKs, 2, 0) + "L_kvf:")
    C = 64
    for i in range(8): a(f"ds_read_b128 v[{C+4*i}:{C+4*i+3}], v{t} offset:{i*64}")
    a("v_mov_b32 v22, 0x3e0293ee")
    for j in range(8):
        s, d = QACC + 8*j, QACC + 4*j
        for i in range(0, 8, 2): a(pk("mul", s+i, f"v[{s+i}:{s+i+1}]", "v[22:23]", " op_sel_hi:[1,0]"))
        for i in range(4): a(f"v_cvt_pk_bf16_f32 v{d+i}, v{s+2*i}, v{s+2*i+1}")
    stamp(a, 5)
    a(f"s_cmp_eq_u32 s{sHasM}, 0\ns_cbranch_scc1 L_p2_nm")
    k = -2.0 * 0.7978845608028654 * 1.4426950408889634
    a(f"v_mov_b32 v22, {fb(k*0.044715)}\nv_mov_b32 v23, {fb(k)}\nv_mov_b32 v48, 1.0")
    a("s_waitcnt lgkmcnt(0)")
    for i in range(0, 16, 2): a(pk("add", C+i, f"v[{C+i}:{C+i+1}]", f"v[{C+16+i}:{C+17+i}]"))
    for q in range(8):
        rt, ct = q >> 2, q & 3
        r0 = MACC + 4*q; T = 24 + (q & 1)*4; mr = f"v[{ST_+2*rt}:{ST_+2*rt+1}]"
        R = lambda j: f"v[{r0+j}:{r0+j+1}]"
        TT = lambda j: f"v[{T+j}:{T+j+1}]"
        for j in (0, 2): a(f"v_pk_fma_f32 {R(j)}, {mr}, v[{C+4*ct+j}:{C+4*ct+j+1}], {R(j)} op_sel_hi:[0,1,1] neg_lo:[1,0,0] neg_hi:[1,0,0]")
        for j in (0, 2): a(f"v_pk_fma_f32 {R(j)}, {R(j)}, {mr}, v[{Bf+4*ct+j}:{Bf+4*ct+j+1}] op_sel:[0,1,0] op_sel_hi:[1,1,1]")
        for j in (0, 2): a(f"v_pk_mul_f32 {TT(j)}, {R(j)}, {R(j)}")
        for j in (0, 2): a(f"v_pk_fma_f32 {TT(j)}, {TT(j)}, v[22:23], v[22:23] op_sel:[0,0,1] op_sel_hi:[1,0,1]")
        for j in (0, 2): a(f"v_pk_mul_f32 {TT(j)}, {TT(j)}, {R(j)}")
        for j in range(4): a(f"v_exp_f32 v{T+j}, v{T+j}")
        for j in (0, 2): a(f"v_pk_add_f32 {TT(j)}, {TT(j)}, v[48:49] op_sel_hi:[1,0]")
        for j in range(4): a(f"v_rcp_f32 v{T+j}, v{T+j}")
        for j in (0, 2): a(f"v_pk_mul_f32 {R(j)}, {R(j)}, {TT(j)}")
    for i, (x, y) in enumerate(((0, 4), (16, 20), (8, 12), (24, 28))):
        tq = 176 + 4*i
        a(f"v_cvt_pk_bf16_f32 v{tq}, v{MACC+x}, v{MACC+x+1}\nv_cvt_pk_bf16_f32 v{tq+1}, v{MACC+x+2}, v{MACC+x+3}")
        a(f"v_cvt_pk_bf16_f32 v{tq+2}, v{MACC+y}, v{MACC+y+1}\nv_cvt_pk_bf16_f32 v{tq+3}, v{MACC+y+2}, v{MACC+y+3}")
    a.label("L_p2_nm")
    a(f"s_mul_i32 s66, s{sRt0}, {AFS}\ns_lshl_b32 s{sT}, s{sC1}, 11\ns_add_u32 s66, s66, s{sT}\ns_add_u32 s66, s66, {AF + 128*1024}")
    a(f"s_add_u32 s67, s66, {AFS}\ns_cmp_lt_u32 s{sC1}, 21\ns_cselect_b32 s68, s66, s{sOOB}\ns_cselect_b32 s69, s67, s{sOOB}")
    a(f"s_cmp_lt_u32 s{sC1}, 22\ns_cselect_b32 s66, s66, s{sOOB}\ns_cselect_b32 s67, s67, s{sOOB}")

def h_stores():
    return [f"buffer_store_dwordx4 v[{176+4*i}:{179+4*i}], v{vL16}, s[{SWS}:{SWS+3}], s{sb} offen offset:{off}{SC}"
            for i, (sb, off) in enumerate(((66, 0), (67, 0), (68, 1024), (69, 1024)))]

vO, vS, vQ, vP, vF, NF, vCm, vT, vL, vTS, vK, vV, vDm, vNEG = 0, 64, 128, 160, 192, 8, 224, 232, 240, 242, 244, 245, 246, 247
sMk, sVr, sVw = 80, 88, 89
def rS(b, kt, qt): return vS + b*32 + (kt*2 + qt)*4
def rP(b, ks, qt): return vP + b*16 + (ks*2 + qt)*4
def rO(dt, qt): return vO + (dt*2 + qt)*4
def rQ(qt, ds): return vQ + (qt*4 + ds)*4
def rL(b, qt): return (vL if b == 0 else 238) + qt
def v_next(s):
    return (f"s_add_u32 s{s}, s{s}, 16384\ns_cmp_eq_u32 s{s}, {144*1024}\ns_cselect_b32 s{s}, {32*1024}, s{s}\n"
            f"s_cmp_eq_u32 s{s}, {64*1024}\ns_cselect_b32 s{s}, {96*1024}, s{s}")
def dma_block():
    o = []
    for add in (4, 5):
        pre = (f"s_add_u32 s{sT}, s{sIt}, {add}\ns_and_b32 s100, s{sT}, 1\ns_lshl_b32 s100, s100, 14\ns_and_b32 s101, s{sT}, 2\ns_lshl_b32 s101, s101, 15\ns_add_u32 s100, s100, s101\n"
               f"s_xor_b32 m0, s100, s92\ns_lshl_b32 s101, s{sT}, 14\ns_add_u32 s101, s101, s{sKs}\ns_cmp_lt_i32 s{sT}, s{sNW}\ns_cselect_b32 s101, s101, {OOB}\n")
        for i in range(4):
            o.append((pre if i == 0 else "") + f"buffer_load_dwordx4 v{vL16}, s[{SWS}:{SWS+3}], s101 offen offset:{i*1024}{SC} lds")
    for add in (2, 3):
        pre = (v_next(sVw) + f"\ns_add_u32 s{sT}, s{sIt}, {add}\ns_and_b32 s100, s92, 0xffff\ns_add_u32 m0, s100, s{sVw}\n"
               f"s_lshl_b32 s101, s{sT}, 14\ns_add_u32 s101, s101, s{sVs}\ns_cmp_lt_i32 s{sT}, s{sNW}\ns_cselect_b32 s101, s101, {OOB}\n")
        for i in range(4):
            o.append((pre if i == 0 else "") + f"buffer_load_dwordx4 v{vL16}, s[{SWS}:{SWS+3}], s101 offen offset:{i*1024}{SC} lds")
    return o
def sync_odd():
    u = uid()
    return (f"s_cmp_eq_u32 s{sG}, 0\ns_cbranch_scc1 L_sa{u}\ns_waitcnt vmcnt(0)\ns_barrier\n" + "\n".join(dma_block()) +
            f"\ns_branch L_sb{u}\nL_sa{u}:\ns_barrier\nL_sb{u}:")
def add_qk(S, tile, cnt, tagn="", c0=None):
    b = tile & 1
    if b == 0: S.add_sync(f"v_xor_b32 v{vK}, 0x10000, v{vK}{tagn}", drain=False)
    for kt in range(4):
        for ds in range(4):
            f = vF + (cnt[0] % NF)*4; cnt[0] += 1
            S.add_load(('K', tile, kt, ds), [f"ds_read_b128 v[{f}:{f+3}], v{vK} offset:{b*16384 + (kt*4+ds)*1024}{tagn}"], f)
            for qt in range(2):
                S.add_slot(mfma(rS(b, kt, qt), f, rQ(qt, ds), (c0 or vCm + 4*qt) if ds == 0 else None), [('K', tile, kt, ds)])
def add_pv(S, tile, cnt, nks=2):
    b = tile & 1
    S.add_sync(v_next(sVr) + f"\nv_add_u32 v{vV}, s{sVr}, v{vL16}", drain=False)
    for ks in range(nks):
        for dt in range(8):
            f = vF + (cnt[0] % NF)*4; cnt[0] += 1
            S.add_load(('V', tile, ks, dt), [f"ds_read_b128 v[{f}:{f+3}], v{vV} offset:{(ks*8+dt)*1024}"], f)
            for qt in range(2):
                S.add_slot(mfma(rO(dt, qt), f, rP(b, ks, qt)), [('V', tile, ks, dt)])
def sm_pairs(b):
    out = []
    for qt in range(2):
        for ks in range(2):
            for h in range(2):
                kt = 2*ks + h
                for j in range(2):
                    s = rS(b, kt, qt) + 2*j
                    out.append((s, s+1, rP(b, ks, qt) + 2*h + j, qt, ks == 0 and h == 0 and j == 0))
    return out
def row_max(a, b, D, U):
    for qt in range(2):
        regs = [rS(b, kt, qt) + r for kt in range(4) for r in range(4)]
        a(f"v_max3_f32 v{D+qt}, v{regs[0]}, v{regs[1]}, v{regs[2]}")
        for i in range(3, 15, 2): a(f"v_max3_f32 v{D+qt}, v{D+qt}, v{regs[i]}, v{regs[i+1]}")
        a(f"v_max_f32 v{D+qt}, v{D+qt}, v{regs[15]}")
    for sw in ("v_permlane16_swap_b32", "v_permlane32_swap_b32"):
        a(f"v_mov_b32 v{U}, v{D}\nv_mov_b32 v{U+1}, v{D+1}\ns_nop 1")
        a(f"{sw} v{D}, v{U}\n{sw} v{D+1}, v{U+1}")
        a(f"v_max_f32 v{D}, v{D}, v{U}\nv_max_f32 v{D+1}, v{D+1}, v{U+1}")
def exact(a, b):
    a.label(f"L_exact{b}")
    a("s_nop 7")
    a(f"s_cmp_eq_u32 s{sMask}, 0\ns_cbranch_scc1 L_exact_nm{b}")
    els = [(kt, qt, r) for kt in range(4) for qt in range(2) for r in range(4)]
    prs = [64, 66, 68, 70]
    for i in range(len(els) + 3):
        if i < len(els):
            kt, qt, r = els[i]
            a(f"v_cmp_ge_i32 s[{prs[i%4]}:{prs[i%4]+1}], v{vDm}, {16*(kt-qt)+r}")
        if i >= 3:
            kt, qt, r = els[i-3]; s = rS(b, kt, qt) + r
            if i >= len(els): a("s_nop 0")
            a(f"v_cndmask_b32 v{s}, v{vNEG}, v{s}, s[{prs[(i-3)%4]}:{prs[(i-3)%4]+1}]")
    a.label(f"L_exact_nm{b}")
    D, Fc, U = vT, vT+2, vT+4
    row_max(a, b, D, U)
    for qt in range(2):
        a(f"v_max_f32 v{D+qt}, s{sFloor}, v{D+qt}\nv_max_f32 v{Fc+qt}, 0, v{D+qt}\nv_exp_f32 v{Fc+qt}, -v{Fc+qt}")
    for (s0, s1, dp, qt, first) in sm_pairs(b):
        a(f"v_sub_f32 v{U}, v{s0}, v{D+qt}\nv_sub_f32 v{U+1}, v{s1}, v{D+qt}")
        a(f"v_exp_f32 v{U}, v{U}\nv_exp_f32 v{U+1}, v{U+1}\ns_nop 0")
        if first: a(f"v_add_f32 v{vTS+qt}, v{U}, v{U+1}")
        else: a(f"v_add_f32 v{vTS+qt}, v{vTS+qt}, v{U}\nv_add_f32 v{vTS+qt}, v{vTS+qt}, v{U+1}")
        a(f"v_cvt_pk_bf16_f32 v{dp}, v{U}, v{U+1}")
    for qt in range(2): a(f"v_fma_f32 v{rL(b^1,qt)}, v{rL(b,qt)}, v{Fc+qt}, v{vTS+qt}")
    a(f"s_cmp_lg_u32 s{sFloor}, 0\ns_cbranch_scc1 L_exact_no{b}")
    for dt in range(8):
        for qt in range(2):
            for r in range(4): a(f"v_mul_f32 v{rO(dt,qt)+r}, v{rO(dt,qt)+r}, v{Fc+qt}")
    a.label(f"L_exact_no{b}")
    a(f"s_cmp_lg_u32 s{sMask}, 0\ns_cbranch_scc1 L_exact_ns{b}")
    for kt in range(4):
        for qt in range(2):
            for r in range(4): a(f"v_sub_f32 v{rS(b^1,kt,qt)+r}, v{rS(b^1,kt,qt)+r}, v{D+qt}")
    for qt in range(2):
        for r in range(4): a(f"v_sub_f32 v{vCm+4*qt+r}, v{vCm+4*qt+r}, v{D+qt}")
    a.label(f"L_exact_ns{b}")
    a(f"s_mov_b32 s{sFloor}, 0\ns_nop 1\ns_setpc_b64 s[{sRet}:{sRet+1}]")
def first_block(a, extra):
    D, U = vT + 4, vT
    a("s_nop 3")
    row_max(a, 0, D, U)
    for qt in range(2):
        for r in range(4): a(f"v_sub_f32 v{vCm+4*qt+r}, 0, v{D+qt}")
    a(f"s_mov_b32 s{sFloor}, 0")
    S = Sched(lookahead=14, per_slot=1, wait_group=4)
    add_qk(S, 1, [0])
    for i, (s0, s1, dp, qt, first) in enumerate(sm_pairs(0)):
        t0 = vT + (i & 1)*2; acc = rL(1, qt)
        S.add_fill(2*i, f"v_sub_f32 v{t0}, v{s0}, v{D+qt}\nv_sub_f32 v{t0+1}, v{s1}, v{D+qt}\nv_exp_f32 v{t0}, v{t0}\nv_exp_f32 v{t0+1}, v{t0+1}")
        S.add_fill(2*i+1, (f"v_add_f32 v{acc}, v{t0}, v{t0+1}" if first else f"v_add_f32 v{acc}, v{acc}, v{t0}\nv_add_f32 v{acc}, v{acc}, v{t0+1}") +
                   f"\nv_cvt_pk_bf16_f32 v{dp}, v{t0}, v{t0+1}")
    for i, t in enumerate(extra): S.add_fill(5 + 7*i, t)
    for l in S.build()[0]: a(l)
def tail_block(a, b, odd):
    S = Sched(lookahead=14, per_slot=1, wait_group=4)
    add_pv(S, b ^ 1, [0])
    k0 = 2 if odd else 0
    items = []
    for (kt, qt) in ((k0, 0), (k0+1, 1)):
        for r in range(4):
            x = rS(b, kt, qt) + r
            items.append(f"v_cndmask_b32 v{x}, v{vNEG}, v{x}, s[{sMk+2*r}:{sMk+2*r+1}]")
    started = [False, False]; i = 0
    for qt in range(2):
        for kt in range(4):
            for j in range(2):
                dp = rP(b, kt >> 1, qt) + 2*(kt & 1) + j
                if kt > k0 + qt:
                    if kt <= k0 + 1: items.append(f"v_mov_b32 v{dp}, 0")
                    continue
                s0 = rS(b, kt, qt) + 2*j; t0 = vT + (i & 1)*2; i += 1
                items.append(f"v_exp_f32 v{t0}, v{s0}\nv_exp_f32 v{t0+1}, v{s0+1}")
                items.append((f"v_add_f32 v{vTS+qt}, v{vTS+qt}, v{t0}\nv_add_f32 v{vTS+qt}, v{vTS+qt}, v{t0+1}" if started[qt] else f"v_add_f32 v{vTS+qt}, v{t0}, v{t0+1}")
                             + f"\nv_cvt_pk_bf16_f32 v{dp}, v{t0}, v{t0+1}")
                started[qt] = True
    items.append(f"v_add_f32 v{vT+4}, v{vTS}, v{vTS+1}\nv_add_f32 v{rL(b^1,0)}, v{rL(b,0)}, v{vTS}")
    items.append(f"v_cmp_nge_f32 vcc, s{sThr}, v{vT+4}\nv_add_f32 v{rL(b^1,1)}, v{rL(b,1)}, v{vTS+1}")
    n = len(items)
    for i2, t in enumerate(items):
        if n <= 30: S.add_fill(i2, t)
        else: S.add_fill(min(31, i2 * 31 // n), ("s_nop 0\n" if t.startswith("v_add") else "") + t)
    for l in S.build()[0]: a(l)
def blk(a, fn, *args, fill=()):
    S = Sched(lookahead=14, per_slot=1, wait_group=4)
    fn(S, *args)
    for i, t in enumerate(fill): S.add_fill(i * 32 // len(fill), t)
    for l in S.build()[0]: a(l)

def attention(a, events, ev_mask, idle_post):
    a(f"v_mov_b32 v{vK}, v{vL16}")
    a(f"s_mov_b32 s{sVr}, {80*1024}\ns_mov_b32 s{sVw}, {96*1024}")
    a(f"s_mov_b32 s{sThr}, 0x53800000\ns_mov_b32 s{sFloor}, 0xff7fffff\ns_mov_b32 s{sMask}, 0\ns_mov_b32 s{sIt}, -1\ns_mov_b32 s79, 0")
    a(ev_mask)
    a("s_waitcnt vmcnt(12) lgkmcnt(0)\ns_barrier")
    stamp(a, 7)
    b = Asm()
    b(f"v_mov_b32 v{vNEG}, 0xf149f2ca")
    b(f"s_and_b32 s{sT}, s{sRQ}, 1\ns_lshl_b32 s{sT}, s{sT}, 5")
    b(f"v_and_b32 v{vT+1}, 15, v{vLANE}\nv_lshrrev_b32 v{vT}, 4, v{vLANE}\nv_lshlrev_b32 v{vT}, 2, v{vT}\nv_sub_u32 v{vT+1}, v{vT+1}, v{vT}\nv_add_u32 v{vDm}, s{sT}, v{vT+1}")
    for r in range(4): b(f"v_cmp_ge_i32 s[{sMk+2*r}:{sMk+2*r+1}], v{vT+1}, {r}")
    for r in list(range(vO, vO+64)) + [rL(0,0), rL(0,1)]: b(f"v_mov_b32 v{r}, 0")
    blk(a, add_qk, 0, [0], "", "0", fill=[l.strip() for l in b.lines])
    a(sync_odd())
    a(f"s_mov_b32 s{sIt}, 0")
    a(f"s_cmp_eq_u32 s{sN}, 1\ns_cbranch_scc1 L_att_n1")
    first_block(a, h_stores())
    a("s_branch L_att_i0")
    a.label("L_att_n1")
    for t in h_stores(): a(t)
    a(f"s_mov_b32 s{sMask}, 1\ns_call_b64 s[{sRet}:{sRet+1}], L_exact0")
    a.label("L_att_i0")
    a(f"s_mov_b32 s{sIt}, 1")
    a(f"s_cmp_eq_u32 s{sN}, 1\ns_cbranch_scc1 L_att_last0")
    a(f"s_cmp_eq_u32 s{sN}, 2\ns_cbranch_scc1 L_att_tail1")
    slow = []
    def steady_loop(g):
        S = Sched(lookahead=14, per_slot=1, wait_group=8)
        cnt = [0]
        its = list(range(1, 8))
        for it in its:
            base = len(S.slots); b = it & 1
            add_qk(S, it+1, cnt, " ;@k")
            add_pv(S, it-1, cnt)
            S.add_pre(base + 32, "; @mid")
            if b == 1:
                if g == 0: S.add_pre(base + 32, "s_barrier")
                else:
                    S.add_pre(base + 32, "s_waitcnt vmcnt(0)\ns_barrier")
                    for i, o in enumerate(dma_block()): S.add_fill(base + 32 + i, o)
            elif g == 0:
                S.add_fill(base + 36, "s_waitcnt vmcnt(0)")
                S.add_fill(base + 40, f"s_bitcmp1_b32 s78, s{sIt}\ns_cbranch_scc1 L_att_ev\nL_att_evb:")
            pos = [int(round(i * 3.75)) for i in range(17)]
            for i, (s0, s1, dp, qt, first) in enumerate(sm_pairs(b)):
                t0 = vT + (i & 1)*2; p = base + pos[i]; w = pos[i+1] - pos[i]
                S.add_fill(p, f"v_exp_f32 v{t0}, v{s0}")
                S.add_fill(p + 1, f"v_exp_f32 v{t0+1}, v{s1}")
                if first: S.add_fill(p + 2, f"v_add_f32 v{vTS+qt}, v{t0}, v{t0+1}")
                else: S.add_fill(p + 2, f"v_add_f32 v{vTS+qt}, v{vTS+qt}, v{t0}\nv_add_f32 v{vTS+qt}, v{vTS+qt}, v{t0+1}")
                S.add_fill(p + w - 1, f"v_cvt_pk_bf16_f32 v{dp}, v{t0}, v{t0+1}")
            S.add_fill(base + 60, f"v_add_f32 v{vT+4}, v{vTS}, v{vTS+1}\nv_add_f32 v{rL(b^1,0)}, v{rL(b,0)}, v{vTS}")
            S.add_fill(base + 61, f"v_cmp_nge_f32 vcc, s{sThr}, v{vT+4}\nv_add_f32 v{rL(b^1,1)}, v{rL(b,1)}, v{vTS+1}")
            S.add_fill(base + 62, f"s_add_u32 s{sIt}, s{sIt}, 1\ns_add_u32 s{sT}, s{sIt}, 2\ns_cmp_gt_u32 s{sT}, s{sN}")
        segs = S.build(cuts=[64*i for i in range(len(its))])
        body1, body0 = segs[3], segs[4]
        assert body1 == segs[5] and body0 == segs[6], "attention not periodic"
        si = [i for i, l in enumerate(body0) if "@mid" in l][0]
        for l in body0[si:]:
            if ";@k" in l: a(l)
        a.raw(".p2align 6")
        a.label(f"L_att_loop{g}")
        for body, b in ((body1, 1), (body0, 0)):
            for l in body: a(l)
            a(f"s_cbranch_vccnz L_att_sl{g}{b}")
            a.label(f"L_att_bk{g}{b}")
            a("s_cbranch_scc1 L_att_tail0" if b == 1 else f"s_cbranch_scc0 L_att_loop{g}")
            slow.append(f"L_att_sl{g}{b}:\ns_call_b64 s[{sRet}:{sRet+1}], L_exact{b}\ns_add_u32 s{sT}, s{sIt}, 2\ns_cmp_gt_u32 s{sT}, s{sN}\ns_branch L_att_bk{g}{b}")
        a("s_branch L_att_tail1")
        if g == 0: a("L_att_ev:\n" + events + "\ns_branch L_att_evb")
    a(f"s_cmp_lg_u32 s{sG}, 0\ns_cbranch_scc1 L_att_g1")
    steady_loop(0)
    a.label("L_att_g1")
    a("s_setprio 1")
    steady_loop(1)
    for t in slow: a(t)
    for b in (1, 0):
        a.label(f"L_att_tail{b}")
        a("s_waitcnt lgkmcnt(0)")
        if b == 1: a(sync_odd())
        a(f"s_mov_b32 s{sMask}, 1\ns_bitcmp1_b32 s{sRQ}, 0\ns_cbranch_scc1 L_att_to{b}")
        tail_block(a, b, False)
        a(f"s_branch L_att_tc{b}")
        a.label(f"L_att_to{b}")
        tail_block(a, b, True)
        a.label(f"L_att_tc{b}")
        a(f"s_cbranch_vccz L_att_tk{b}\ns_call_b64 s[{sRet}:{sRet+1}], L_exact{b}")
        a.label(f"L_att_tk{b}")
        a(f"s_add_u32 s{sIt}, s{sIt}, 1")
        a.label(f"L_att_last{b}")
        if b == 0: a(sync_odd())
        a(f"s_bitcmp1_b32 s{sRQ}, 0\ns_cbranch_scc1 L_att_lo{b}")
        blk(a, add_pv, b, [0], 1)
        a(f"s_branch L_att_le{b}")
        a.label(f"L_att_lo{b}")
        blk(a, add_pv, b, [0], 2)
        a.label(f"L_att_le{b}")
        if b == 0: a(f"v_mov_b32 v{rL(0,0)}, v{rL(1,0)}\nv_mov_b32 v{rL(0,1)}, v{rL(1,1)}\ns_add_u32 s{sIt}, s{sIt}, 1")
        a("s_branch L_att_epi")
    exact(a, 0); exact(a, 1)
    a.label("L_att_epi")
    stamp(a, 8)
    a("s_setprio 0")
    U = vT
    for sw in ("v_permlane16_swap_b32", "v_permlane32_swap_b32"):
        a(f"v_mov_b32 v{U}, v{vL}\nv_mov_b32 v{U+1}, v{vL+1}\ns_nop 1")
        a(f"{sw} v{vL}, v{U}\n{sw} v{vL+1}, v{U+1}")
        a(f"v_add_f32 v{vL}, v{vL}, v{U}\nv_add_f32 v{vL+1}, v{vL+1}, v{U+1}")
    a(f"v_rcp_f32 v{vL}, v{vL}\nv_rcp_f32 v{vL+1}, v{vL+1}")
    a(f"s_mul_i32 s100, s{sRt0}, {AFS}\ns_lshl_b32 s{sT}, s{sH}, 12\ns_add_u32 s100, s100, s{sT}\ns_add_u32 s100, s100, {AF}\ns_add_u32 s101, s100, {AFS}")
    n = 0
    for qt in range(2):
        sel = " op_sel_hi:[1,0]" if qt == 0 else " op_sel:[0,1] op_sel_hi:[1,1]"
        for s in range(4):
            tq = vF + (n % 4)*4; n += 1
            for k, d in enumerate((2*s, 2*s+1)):
                r = rO(d, qt)
                for j in (0, 2): a(pk("mul", r+j, f"v[{r+j}:{r+j+1}]", f"v[{vL}:{vL+1}]", sel))
            for k, d in enumerate((2*s, 2*s+1)):
                r = rO(d, qt)
                a(f"v_cvt_pk_bf16_f32 v{tq+2*k}, v{r}, v{r+1}\nv_cvt_pk_bf16_f32 v{tq+2*k+1}, v{r+2}, v{r+3}")
            a(f"buffer_store_dwordx4 v[{tq}:{tq+3}], v{vL16}, s[{SWS}:{SWS+3}], s{100+qt} offen offset:{s*1024}{SC}")
    stamp(a, 9)
    a(f"s_add_u32 s{sIt}, s{sIt}, 1")
    a.label("L_att_idle")
    a(f"s_cmp_ge_u32 s{sIt}, s{sNW}\ns_cbranch_scc1 L_att_done")
    a(sync_odd())
    a(idle_post)
    a(f"s_add_u32 s{sIt}, s{sIt}, 2\ns_branch L_att_idle")
    a.label("L_att_done")

def c_ids(sig, rb, cb):
    return (f"s_and_b32 s{sig}, s2, 3\ns_bfe_u32 s{rb}, s2, 0x10002\ns_lshl_b32 s{rb}, s{rb}, 3\ns_bfe_u32 s{sT}, s2, 0x30003\ns_add_u32 s{rb}, s{rb}, s{sT}\ns_lshr_b32 s{cb}, s2, 6")
def events():
    b = Asm()
    b(f"s_cmp_lg_u32 s{sIt}, 4\ns_cbranch_scc1 L_ev1")
    b(c_ids(64, 65, 66))
    b(f"s_lshl_b32 s65, s65, 2\ns_add_u32 s65, s65, s66\ns_lshl_b32 s65, s65, 17\ns_add_u32 s65, s65, {EX}")
    b(f"s_lshl_b32 s66, s64, 13\ns_add_u32 s65, s65, s66\ns_lshl_b32 s66, s{sW}, 11\ns_add_u32 s65, s65, s66")
    for r in range(248, 252): b(f"v_mov_b32 v{r}, -1")
    for i in range(1, 4):
        b(f"s_add_u32 s{sT}, s64, {i}\ns_and_b32 s{sT}, s{sT}, 3\ns_lshl_b32 s{sT}, s{sT}, 15\ns_add_u32 s{sT}, s{sT}, s65")
        for j in range(2): b(f"buffer_store_dwordx4 v[248:251], v{vL16}, s[{SWS}:{SWS+3}], s{sT} offen offset:{j*1024}{SC}")
    b("s_branch L_ev9")
    b.label("L_ev1")
    b(f"v_lshlrev_b32 v251, 7, v{vLANE}")
    b(f"s_and_b32 s64, s2, 3\ns_lshr_b32 s65, s2, 3\ns_lshl_b32 s66, s64, 20\ns_lshl_b32 s67, s65, 15\ns_add_u32 s66, s66, s67\ns_lshl_b32 s67, s{sRQ}, 13\ns_add_u32 s66, s66, s67")
    b(f"buffer_load_dword v249, v251, s[{SWO}:{SWO+3}], s66 offen")
    b(f"s_cmp_ge_u32 s{sRQ}, 2\ns_cbranch_scc1 L_ev9")
    b(f"s_mul_i32 s66, s64, {11*32768}\ns_lshl_b32 s67, s65, 1\ns_add_u32 s67, s67, s{sRQ}\ns_cmp_ge_u32 s67, 44\ns_cbranch_scc1 L_ev9\ns_lshl_b32 s67, s67, 13\ns_add_u32 s66, s66, s67")
    b(f"buffer_load_dword v249, v251, s[{SW2}:{SW2+3}], s66 offen")
    b.label("L_ev9")
    return b.text()
def ev_mask(): return f"s_sub_u32 s{sT}, s{sNW}, 8\ns_lshl_b32 s78, 1, s{sT}\ns_or_b32 s78, s78, 0x10"
def idle_post():
    return (f"s_cmp_lg_u32 s79, 0\ns_cbranch_scc1 L_ip9\ns_cmp_lt_u32 s{sIt}, 7\ns_cbranch_scc1 L_ip9\ns_mov_b32 s79, 1\n" + publish(3, 4) + "\nL_ip9:")

def phase_c(a):
    sSig, sRb, sCb, sAs, sWs, sLw, sIdx = 56, 57, 58, 59, 60, 62, 63
    ACC, FA, NA, FW, NW = 0, 32, 8, 64, 4
    vA0, vWb, vAa, vWa, vDq = 224, 225, 228, 229, 232
    t = 236
    a(c_ids(sSig, sRb, sCb))
    a(f"s_sub_u32 s100, 15, s{sRb}\ns_min_u32 s100, s100, s{sRb}")
    a(f"v_and_b32 v{t}, 31, v{vLANE}\nv_lshl_add_u32 v{vPA}, v{t}, 3, s100")
    a(f"s_and_b32 s101, s2, 4\ns_lshl_b32 s101, s101, 5\ns_bfe_u32 s{sT}, s2, 0x20003\ns_lshl_b32 s{sT}, s{sT}, 3\ns_add_u32 s101, s101, s{sT}\ns_lshr_b32 s{sT}, s2, 5\ns_add_u32 s101, s101, s{sT}")
    a(f"v_and_b32 v{t}, 3, v{vLANE}\nv_lshl_add_u32 v{t}, v{t}, 5, s101\nv_cmp_gt_u32 vcc, 32, v{vLANE}\ns_nop 1\nv_cndmask_b32 v{vPA}, v{t}, v{vPA}, vcc\n" + flag_addr())
    w_dma_voff(a, vDq, 1024, t)
    a(f"s_and_b32 s{sT}, s{sW}, 1\ns_lshl_b32 s{sT}, s{sT}, 13\nv_add_u32 v{vA0}, s{sT}, v{vL16}")
    a(f"v_lshrrev_b32 v{t}, 2, v{vLANE}\nv_lshlrev_b32 v{t+1}, 8, v{t}\nv_and_b32 v{t+2}, 3, v{vLANE}\nv_lshl_add_u32 v{t+1}, v{t+2}, 3, v{t+1}\nv_add_u32 v{t+1}, 16384, v{t+1}")
    a(f"v_and_b32 v{t}, 7, v{t}\ns_and_b32 s{sT}, s{sW}, 6")
    a(f"v_xor_b32 v{t+2}, s{sT}, v{t}\nv_lshl_add_u32 v{vWb}, v{t+2}, 5, v{t+1}\nv_xor_b32 v{vWb+1}, 32, v{vWb}")
    a(f"s_lshl_b32 s97, s{sRb}, 3\ns_add_u32 s97, s97, s{sW}\ns_mul_i32 s97, s97, {AFS}\ns_add_u32 s97, s97, {AF}")
    a(f"s_lshl_b32 s98, s{sW}, 13\ns_lshl_b32 s{sT}, s{sCb}, 8\ns_add_u32 s98, s98, s{sT}")
    a(f"s_lshl_b32 s{sLw}, s{sW}, 11\ns_mul_i32 s99, s{sSig}, 11")
    a(poll_one(3, 5))
    a("s_waitcnt vmcnt(0)\ns_barrier")
    a(publish(4))
    stamp(a, 10)
    NST = 22
    def dma(st):
        sl = (st % 5) * 32768
        o = []
        if st < 6:
            pre = (f"s_add_u32 s{sIdx}, s99, {2*st}\ns_lshl_b32 s{sAs}, s{sIdx}, 10\ns_add_u32 s{sAs}, s{sAs}, s97\ns_add_u32 s{sAs}, s{sAs}, {128*1024}\n"
                   f"s_lshl_b32 s{sWs}, s{sIdx}, 15\ns_add_u32 s{sWs}, s{sWs}, s98\n")
            srdw = SW2
        else:
            pre = (f"s_lshl_b32 s{sIdx}, s{sCb}, 3\ns_add_u32 s{sIdx}, s{sIdx}, {2*(st-6)}\ns_and_b32 s{sIdx}, s{sIdx}, 31\ns_lshl_b32 s{sAs}, s{sSig}, 5\ns_add_u32 s{sIdx}, s{sIdx}, s{sAs}\n"
                   f"s_lshl_b32 s{sAs}, s{sIdx}, 10\ns_add_u32 s{sAs}, s{sAs}, s97\ns_lshl_b32 s{sWs}, s{sIdx}, 15\ns_add_u32 s{sWs}, s{sWs}, s98\n")
            srdw = SWO
        o.append(pre + f"s_add_u32 m0, s{sLw}, {sl + 16384}\ns_add_u32 s{sT}, s{sWs}, {4096 - 1024}\n"
                 f"buffer_load_dwordx4 v{vDq}, s[{srdw}:{srdw+3}], s{sWs} offen lds")
        o.append(f"buffer_load_dwordx4 v{vDq+1}, s[{srdw}:{srdw+3}], s{sT} offen offset:1024 lds")
        if st == 5:
            o.append(f"s_cmp_lt_u32 s{sSig}, 3\ns_cselect_b32 s{sAs}, s{sAs}, {OOB}\ns_add_u32 m0, s{sLw}, {sl}\ns_mov_b32 s{sT}, {OOB}\n"
                     f"buffer_load_dwordx4 v{vL16}, s[{SWS}:{SWS+3}], s{sAs} offen{SC} lds")
            o.append(f"buffer_load_dwordx4 v{vL16}, s[{SWS}:{SWS+3}], s{sT} offen offset:1024{SC} lds")
        else:
            o.append(f"s_add_u32 m0, s{sLw}, {sl}\ns_nop 0\nbuffer_load_dwordx4 v{vL16}, s[{SWS}:{SWS+3}], s{sAs} offen{SC} lds")
            o.append(f"buffer_load_dwordx4 v{vL16}, s[{SWS}:{SWS+3}], s{sAs} offen offset:1024{SC} lds")
        return o
    for st in range(4):
        for o in dma(st): a(o)
    a(f"s_lshl_b32 s{sT}, s{sSig}, 6\ns_add_u32 s{sT}, s{sT}, s100\nv_and_b32 v{vPA}, 7, v{vLANE}\nv_lshl_add_u32 v{vPA}, v{vPA}, 3, s{sT}\n" + flag_addr())
    a("s_waitcnt vmcnt(12)\ns_barrier")
    S = Sched(lookahead=10, per_slot=2)
    na = nw = 0
    for st in range(NST):
        sl = (st % 5) * 32768
        S.add_sync(f"v_add_u32 v{vAa}, {sl}, v{vA0}\nv_add_u32 v{vWa}, {sl}, v{vWb}\nv_add_u32 v{vWa+1}, {sl}, v{vWb+1}", drain=False)
        base = len(S.slots)
        for ks in range(2):
            wf = [FW + ((nw + i) % NW)*4 for i in range(2)]; nw += 2
            af = [FA + ((na + i) % NA)*4 for i in range(4)]; na += 4
            def ldw(ct):
                S.add_load(('W', st, ks, ct), [f"ds_read_b64_tr_b16 v[{wf[ct]}:{wf[ct]+1}], v{vWa+ct} offset:{ks*8192}",
                                               f"ds_read_b64_tr_b16 v[{wf[ct]+2}:{wf[ct]+3}], v{vWa+ct} offset:{ks*8192+4096}"], wf[ct])
            def lda(rt):
                S.add_load(('A', st, ks, rt), [f"ds_read_b128 v[{af[rt]}:{af[rt]+3}], v{vAa} offset:{(rt*2+ks)*1024}"], af[rt])
            ldw(0); lda(0); ldw(1); lda(1); lda(2); lda(3)
            for rt in range(4):
                for ct in range(2):
                    S.add_slot(mfma(ACC + (rt*2+ct)*4, wf[ct], af[rt], "0" if st == 0 and ks == 0 else None), [('W', st, ks, ct), ('A', st, ks, rt)])
        if st + 1 < NST:
            left = min(NST - 1, st + 3) - (st + 1)
            pl = poll_one(4) + "\n" if st == 2 else ""
            S.add_pre(base + 2, pl + f"s_waitcnt vmcnt({4*left})\ns_barrier\n" + (stamp_txt(16 + st//2, 5) if st % 2 == 0 else ""))
            if st + 4 < NST:
                for i, o in enumerate(dma(st + 4)): S.add_fill(base + 2 + i, o)
        if st == NST - 2:
            x = Asm()
            x(f"v_and_b32 v{t}, 15, v{vLANE}\nv_lshrrev_b32 v{t+1}, 4, v{vLANE}\nv_lshlrev_b32 v{t+2}, 9, v{t+1}\nv_lshl_add_u32 v{t+2}, v{t}, 4, v{t+2}")
            x(f"v_lshlrev_b32 v{t+3}, 10, v{t}\nv_lshl_add_u32 v{t+3}, v{t+1}, 4, v{t+3}")
            x(f"v_and_b32 v{t+4}, 1, v{t+1}\nv_lshlrev_b32 v{t+4}, 9, v{t+4}\nv_lshl_add_u32 v{t+4}, v{t}, 4, v{t+4}\nv_lshrrev_b32 v{t}, 1, v{t+1}\nv_lshl_add_u32 v{t+4}, v{t}, 3, v{t+4}")
            x(f"v_lshlrev_b32 v{t+1}, 4, v{t+1}")
            x(f"s_lshl_b32 s98, s{sRb}, 7\ns_lshl_b32 s{sT}, s{sW}, 4\ns_add_u32 s98, s98, s{sT}\ns_lshl_b32 s98, s98, 10\ns_lshl_b32 s99, s{sCb}, 8\ns_lshl_b32 s{sT}, s{sSig}, 6\ns_add_u32 s99, s99, s{sT}\ns_add_u32 s98, s98, s99")
            x(f"buffer_load_dwordx4 v[100:103], v{t+3}, s[{SX}:{SX+3}], s98 offen")
            x(f"buffer_load_dwordx4 v[104:107], v{t+1}, s[{SB2}:{SB2+3}], s99 offen")
            x(f"v_and_b32 v{vPA}, 3, v{vLANE}\nv_max_u32 v{vPA}, 1, v{vPA}\nv_add_u32 v{vPA}, s{sSig}, v{vPA}\nv_and_b32 v{vPA}, 3, v{vPA}\nv_lshl_add_u32 v{vPA}, v{vPA}, 5, s101\n" + flag_addr())
            x(f"s_lshl_b32 s97, s{sRb}, 2\ns_add_u32 s97, s97, s{sCb}\ns_lshl_b32 s97, s97, 17\ns_add_u32 s97, s97, {EX}")
            x(f"s_lshl_b32 s{sT}, s{sSig}, 15\ns_add_u32 s99, s97, s{sT}\ns_lshl_b32 s{sT}, s{sW}, 12\ns_add_u32 s99, s99, s{sT}")
            ls = [l.strip() for l in x.lines]
            for i, l in enumerate(ls): S.add_fill(base + 4 + i * 24 // len(ls), l)
    for l in S.build()[0]: a(l)
    stamp(a, 12)
    a(publish(5))
    a(f"s_lshr_b32 s{sT}, s{sW}, 1\ns_cmp_eq_u32 s{sT}, s{sSig}\ns_cbranch_scc1 L_c_own")
    a("s_nop 3")
    for rt in range(4):
        r = ACC + rt*8; q = 80 + rt*4
        for k in range(4): a(f"v_cvt_pk_bf16_f32 v{q+k}, v{r+2*k}, v{r+2*k+1}")
        a(f"buffer_store_dwordx4 v[{q}:{q+3}], v{vL16}, s[{SWS}:{SWS+3}], s99 offen offset:{rt*1024}{SC}")
    a("s_branch L_c_st")
    a.label("L_c_own")
    a(f"v_add_u32 v{t}, {4*32768}, v{vA0}\ns_nop 3")
    for q in range(8): a(f"ds_write_b128 v{t}, v[{ACC+4*q}:{ACC+4*q+3}] offset:{q*1024}")
    a.label("L_c_st")
    a(f"s_lshl_b32 s99, s{sSig}, 13\ns_lshl_b32 s{sT}, s{sW}, 10\ns_add_u32 s99, s99, s{sT}\ns_add_u32 s97, s97, s99")
    a(f"s_lshl_b32 s{sT}, s{sW}, 11\ns_add_u32 s{sT}, s{sT}, {4*32768}\nv_add_u32 v{t}, s{sT}, v{t+2}")
    a(f"s_lshl_b32 s99, s{sSig}, 1\ns_add_u32 s99, s99, 1")
    a(poll_one(5, "s99") + "\ns_waitcnt lgkmcnt(0)\ns_barrier")
    stamp(a, 29, 5)
    a(f"ds_read_b128 v[32:35], v{t}\nds_read_b128 v[36:39], v{t} offset:256")
    a("s_mov_b32 s101, 0")
    a.label("L_c_rd")
    for i in range(1, 4):
        a(f"s_add_u32 s{sT}, s{sSig}, {i}\ns_and_b32 s{sT}, s{sT}, 3\ns_lshl_b32 s{sT}, s{sT}, 15\ns_add_u32 s{sT}, s{sT}, s97")
        a(f"buffer_load_dwordx2 v[{40+4*i}:{41+4*i}], v{t+4}, s[{SWS}:{SWS+3}], s{sT} offen{SC}")
        a(f"buffer_load_dwordx2 v[{42+4*i}:{43+4*i}], v{t+4}, s[{SWS}:{SWS+3}], s{sT} offen offset:256{SC}")
    a("s_waitcnt vmcnt(0)")
    a("v_max_u32 v64, v44, v45")
    for i in range(46, 56, 2): a(f"v_max3_u32 v64, v64, v{i}, v{i+1}")
    a("v_cmp_eq_u32 vcc, -1, v64\ns_cbranch_vccz L_c_ok")
    a("s_add_u32 s101, s101, 1\ns_cmp_gt_u32 s101, 0x20000\ns_cbranch_scc1 L_c_ok\ns_sleep 4\ns_branch L_c_rd")
    a.label("L_c_ok")
    unpack8(a, 100, 108); unpack8(a, 104, 116)
    for i in range(0, 8, 2): a(pk("add", 108+i, f"v[{108+i}:{109+i}]", f"v[{116+i}:{117+i}]"))
    a("s_waitcnt lgkmcnt(0)")
    for i in range(0, 8, 2): a(pk("add", 108+i, f"v[{108+i}:{109+i}]", f"v[{32+i}:{33+i}]"))
    for k in range(1, 4):
        unpack8(a, 40+4*k, 116)
        for i in range(0, 8, 2): a(pk("add", 108+i, f"v[{108+i}:{109+i}]", f"v[{116+i}:{117+i}]"))
    for i in range(4): a(f"v_cvt_pk_bf16_f32 v{100+i}, v{108+2*i}, v{109+2*i}")
    a(f"buffer_store_dwordx4 v[100:103], v{t+3}, s[{SOUT}:{SOUT+3}], s98 offen")
    if PROF: a("s_waitcnt vmcnt(0)")
    stamp(a, 13)

def build():
    head = open("cdna_kernels/" + NAME + ".s.ref").read().split("; Override launch")[0]
    name = NAME + "_kernel"
    out = head + "; @launch grid=(256,1,1) block=(512,1,1) lds=163840\n"
    out += '.amdgcn_target "amdgcn-amd-amdhsa--gfx950"\n.text\n'
    a = Asm()
    a.raw(f".globl {name}\n.p2align 8\n.type {name},@function\n{name}:")
    phase1(a)
    p2_merged(a)
    stamp(a, 6)
    attention(a, events(), ev_mask(), idle_post())
    phase_c(a)
    a.label("L_end")
    a("s_endpgm")
    t = a.text()
    for p in lint(t): print("LINT", p, file=sys.stderr)
    out += t + '.section .rodata,"a"\n.p2align 6\n'
    out += (f".amdhsa_kernel {name}\n  .amdhsa_next_free_vgpr 256\n  .amdhsa_next_free_sgpr 102\n  .amdhsa_accum_offset 256\n"
            "  .amdhsa_group_segment_fixed_size 0\n  .amdhsa_kernarg_size 112\n  .amdhsa_user_sgpr_count 2\n"
            "  .amdhsa_user_sgpr_kernarg_segment_ptr 1\n  .amdhsa_system_sgpr_workgroup_id_x 1\n.end_amdhsa_kernel\n")
    return out

if __name__ == "__main__":
    open(sys.argv[1], "w").write(build())
```

```python
from gen2 import *
vL2 = 248
def rL(b, qt): return (vL if b == 0 else 238) + qt

def dma_block(ld):
    o = []
    for (add, src, voff) in ((4, sKs, 0), (2, sVs, 32768)):
        pre = (f"s_add_u32 s{sT}, s{sIt}, {add}\ns_and_b32 s100, s{sT}, 1\ns_lshl_b32 s100, s100, 14\ns_and_b32 s101, s{sT}, 2\ns_lshl_b32 s101, s101, 15\ns_add_u32 s100, s100, s101\n"
               + (f"s_add_u32 s100, s100, {voff}\n" if voff else "") +
               f"s_xor_b32 m0, s100, s92\ns_lshl_b32 s101, s{sT}, 14\ns_add_u32 s101, s101, s{src}\ns_cmp_lt_i32 s{sT}, s{sNW}\ns_cselect_b32 s101, s101, 0x40000000\n")
        for i in range(4):
            o.append((pre if i == 0 else "") + f"buffer_load_dwordx4 v{vL16}, s[{SWS}:{SWS+3}], s101 offen offset:{i*1024}{ld} lds")
    return o

_u2 = [0]
def sync_any(ld):
    _u2[0] += 1; u = _u2[0]
    return (f"s_cmp_eq_u32 s{sG}, 0\ns_cbranch_scc1 L_sa{u}\ns_waitcnt vmcnt(8)\ns_barrier\n" + "\n".join(dma_block(ld)) +
            f"\ns_branch L_sb{u}\nL_sa{u}:\ns_barrier\nL_sb{u}:")

def exact2(a, b):
    a.label(f"L_exact{b}")
    a("s_nop 7")
    a(f"s_cmp_eq_u32 s{sMask}, 0\ns_cbranch_scc1 L_exact_nm{b}")
    els = [(kt, qt, r) for kt in range(4) for qt in range(2) for r in range(4)]
    prs = [64, 66, 68, 70]
    for i in range(len(els) + 3):
        if i < len(els):
            kt, qt, r = els[i]
            a(f"v_cmp_ge_i32 s[{prs[i%4]}:{prs[i%4]+1}], v{vDm}, {16*(kt-qt)+r}")
        if i >= 3:
            kt, qt, r = els[i-3]; s = rS(b, kt, qt) + r
            if i >= len(els): a("s_nop 0")
            a(f"v_cndmask_b32 v{s}, v{vNEG}, v{s}, s[{prs[(i-3)%4]}:{prs[(i-3)%4]+1}]")
    a.label(f"L_exact_nm{b}")
    D, Fc, U = vT, vT+2, vT+4
    for qt in range(2):
        regs = [rS(b, kt, qt) + r for kt in range(4) for r in range(4)]
        a(f"v_max3_f32 v{D+qt}, v{regs[0]}, v{regs[1]}, v{regs[2]}")
        for i in range(3, 15, 2): a(f"v_max3_f32 v{D+qt}, v{D+qt}, v{regs[i]}, v{regs[i+1]}")
        a(f"v_max_f32 v{D+qt}, v{D+qt}, v{regs[15]}")
    for sw in ("v_permlane16_swap_b32", "v_permlane32_swap_b32"):
        a(f"v_mov_b32 v{U}, v{D}\nv_mov_b32 v{U+1}, v{D+1}\ns_nop 1")
        a(f"{sw} v{D}, v{U}\n{sw} v{D+1}, v{U+1}")
        a(f"v_max_f32 v{D}, v{D}, v{U}\nv_max_f32 v{D+1}, v{D+1}, v{U+1}")
    for qt in range(2):
        a(f"v_max_f32 v{D+qt}, s{sFloor}, v{D+qt}")
        a(f"v_max_f32 v{Fc+qt}, 0, v{D+qt}")
        a(f"v_exp_f32 v{Fc+qt}, -v{Fc+qt}")
    for (s0, s1, dp, qt, first) in sm_pairs(b):
        a(f"v_sub_f32 v{U}, v{s0}, v{D+qt}\nv_sub_f32 v{U+1}, v{s1}, v{D+qt}")
        a(f"v_exp_f32 v{U}, v{U}\nv_exp_f32 v{U+1}, v{U+1}\ns_nop 0")
        if first: a(f"v_add_f32 v{vTS+qt}, v{U}, v{U+1}")
        else: a(f"v_add_f32 v{vTS+qt}, v{vTS+qt}, v{U}\nv_add_f32 v{vTS+qt}, v{vTS+qt}, v{U+1}")
        a(f"v_cvt_pk_bf16_f32 v{dp}, v{U}, v{U+1}")
    for qt in range(2):
        a(f"v_fma_f32 v{rL(b^1,qt)}, v{rL(b,qt)}, v{Fc+qt}, v{vTS+qt}")
    a(f"s_cmp_lg_u32 s{sFloor}, 0\ns_cbranch_scc1 L_exact_no{b}")
    a(f"v_max_f32 v{U}, v{D}, v{D+1}\nv_cmp_lt_f32 vcc, 0, v{U}\ns_cbranch_vccz L_exact_no{b}")
    for dt in range(8):
        for qt in range(2):
            for r in range(4): a(f"v_mul_f32 v{rO(dt,qt)+r}, v{rO(dt,qt)+r}, v{Fc+qt}")
    a.label(f"L_exact_no{b}")
    a(f"s_cmp_lg_u32 s{sMask}, 0\ns_cbranch_scc1 L_exact_ns{b}")
    for kt in range(4):
        for qt in range(2):
            for r in range(4): a(f"v_sub_f32 v{rS(b^1,kt,qt)+r}, v{rS(b^1,kt,qt)+r}, v{D+qt}")
    for qt in range(2):
        for r in range(4): a(f"v_sub_f32 v{vCm+4*qt+r}, v{vCm+4*qt+r}, v{D+qt}")
    a.label(f"L_exact_ns{b}")
    a(f"s_mov_b32 s{sFloor}, 0")
    a(f"s_nop 1\ns_setpc_b64 s[{sRet}:{sRet+1}]")

def emit_blk2(a, fn, tile):
    S = Sched(lookahead=14, per_slot=1, wait_group=4)
    fn(S, tile, [0])
    for l in S.build()[0]: a(l)

def spread(S, base, nslots, items):
    for i, t in enumerate(items):
        S.add_fill(base + min(nslots - 1, i * nslots // len(items)), t)

def first_block(a, extra=()):
    D, U = vT + 4, vT
    a("s_nop 7")
    for qt in range(2):
        regs = [rS(0, kt, qt) + r for kt in range(4) for r in range(4)]
        a(f"v_max3_f32 v{D+qt}, v{regs[0]}, v{regs[1]}, v{regs[2]}")
        for i in range(3, 15, 2): a(f"v_max3_f32 v{D+qt}, v{D+qt}, v{regs[i]}, v{regs[i+1]}")
        a(f"v_max_f32 v{D+qt}, v{D+qt}, v{regs[15]}")
    for sw in ("v_permlane16_swap_b32", "v_permlane32_swap_b32"):
        a(f"v_mov_b32 v{U}, v{D}\nv_mov_b32 v{U+1}, v{D+1}\ns_nop 1")
        a(f"{sw} v{D}, v{U}\n{sw} v{D+1}, v{U+1}")
        a(f"v_max_f32 v{D}, v{D}, v{U}\nv_max_f32 v{D+1}, v{D+1}, v{U+1}")
    for qt in range(2):
        for r in range(4): a(f"v_sub_f32 v{vCm+4*qt+r}, 0, v{D+qt}")
    a(f"s_mov_b32 s{sFloor}, 0")
    S = Sched(lookahead=14, per_slot=1, wait_group=4)
    add_qk(S, 1, [0])
    items = []
    for i, (s0, s1, dp, qt, first) in enumerate(sm_pairs(0)):
        t0 = vT + (i & 1)*2
        items += [f"v_sub_f32 v{t0}, v{s0}, v{D+qt}\nv_sub_f32 v{t0+1}, v{s1}, v{D+qt}\nv_exp_f32 v{t0}, v{t0}\nv_exp_f32 v{t0+1}, v{t0+1}"]
        acc = rL(1, qt)
        items += [(f"v_add_f32 v{acc}, v{t0}, v{t0+1}" if first else f"v_add_f32 v{acc}, v{acc}, v{t0}\nv_add_f32 v{acc}, v{acc}, v{t0+1}") +
                  f"\nv_cvt_pk_bf16_f32 v{dp}, v{t0}, v{t0+1}"]
    spread(S, 0, 32, items)
    for i, t in enumerate(extra): S.add_fill(5 + 7*i, t)
    for l in S.build()[0]: a(l)

sMk = 80
def tail_block(a, b, odd):
    S = Sched(lookahead=14, per_slot=1, wait_group=4)
    add_pv(S, b ^ 1, [0])
    k0 = 2 if odd else 0
    items = []
    for (kt, qt) in ((k0, 0), (k0+1, 1)):
        for r in range(4):
            x = rS(b, kt, qt) + r
            items.append(f"v_cndmask_b32 v{x}, v{vNEG}, v{x}, s[{sMk+2*r}:{sMk+2*r+1}]")
    started = [False, False]; i = 0
    for qt in range(2):
        for kt in range(4):
            for j in range(2):
                dp = rP(b, kt >> 1, qt) + 2*(kt & 1) + j
                if kt > k0 + qt:
                    if kt <= k0 + 1: items.append(f"v_mov_b32 v{dp}, 0")
                    continue
                s0 = rS(b, kt, qt) + 2*j; t0 = vT + (i & 1)*2; i += 1
                items.append(f"v_exp_f32 v{t0}, v{s0}\nv_exp_f32 v{t0+1}, v{s0+1}")
                items.append((f"v_add_f32 v{vTS+qt}, v{vTS+qt}, v{t0}\nv_add_f32 v{vTS+qt}, v{vTS+qt}, v{t0+1}" if started[qt] else f"v_add_f32 v{vTS+qt}, v{t0}, v{t0+1}")
                             + f"\nv_cvt_pk_bf16_f32 v{dp}, v{t0}, v{t0+1}")
                started[qt] = True
    items.append(f"v_add_f32 v{vT+4}, v{vTS}, v{vTS+1}\nv_add_f32 v{rL(b^1,0)}, v{rL(b,0)}, v{vTS}")
    items.append(f"v_cmp_nge_f32 vcc, s{sThr}, v{vT+4}\nv_add_f32 v{rL(b^1,1)}, v{rL(b,1)}, v{vTS+1}")
    n = len(items)
    if n <= 30:
        for i2, t in enumerate(items): S.add_fill(i2, t)
    else:
        pos = 0
        for i2, t in enumerate(items):
            S.add_fill(min(31, i2 * 31 // n), ("s_nop 0\n" if t.startswith("v_add") else "") + t)
    for l in S.build()[0]: a(l)

def add_pv_half(S, tile, cnt):
    b = tile & 1
    if b == 0: S.add_sync(f"v_xor_b32 v{vV}, 0x10000, v{vV}", drain=False)
    for dt in range(8):
        f = vF + (cnt[0] % NF)*4; cnt[0] += 1
        S.add_load(('V', tile, 0, dt), [f"ds_read_b128 v[{f}:{f+3}], v{vV} offset:{32768 + b*16384 + dt*1024}"], f)
        for qt in range(2):
            S.add_slot(mfma(rO(dt, qt), f, rP(b, 0, qt)), [('V', tile, 0, dt)])

def attention2(a, st, ld, hook0=None, idle_hook=None):
    for r in list(range(vO, vO+64)) + list(range(vCm, vCm+8)) + [rL(0,0), rL(0,1)]: a(f"v_mov_b32 v{r}, 0")
    a(f"s_xor_b32 s{sT}, s84, 0x10000\nv_xor_b32 v{vK}, s{sT}, v{vL16}\nv_xor_b32 v{vV}, s{sT}, v{vL16}")
    a(f"v_mov_b32 v{vNEG}, 0xf149f2ca")
    a(f"s_and_b32 s{sT}, s{sRQ}, 1\ns_lshl_b32 s{sT}, s{sT}, 5")
    a(f"v_and_b32 v{vDm}, 15, v{vLANE}\nv_add_u32 v{vDm}, s{sT}, v{vDm}\nv_lshrrev_b32 v{vT}, 4, v{vLANE}\nv_lshlrev_b32 v{vT}, 2, v{vT}\nv_sub_u32 v{vDm}, v{vDm}, v{vT}")
    a(f"s_mov_b32 s{sThr}, 0x53800000\ns_mov_b32 s{sFloor}, 0xff7fffff\ns_mov_b32 s{sMask}, 0\ns_mov_b32 s{sIt}, -1")
    a(f"v_and_b32 v{vT+1}, 15, v{vLANE}\nv_sub_u32 v{vT+1}, v{vT+1}, v{vT}")
    for r in range(4): a(f"v_cmp_ge_i32 s[{sMk+2*r}:{sMk+2*r+1}], v{vT+1}, {r}")
    stamp(a, 7)
    emit_blk2(a, add_qk, 0)
    a(sync_any(ld))
    a(f"s_mov_b32 s{sIt}, 0")
    a(f"s_cmp_eq_u32 s{sN}, 1\ns_cbranch_scc1 L_att_n1")
    first_block(a)
    a("s_branch L_att_i0")
    a.label("L_att_n1")
    a(f"s_mov_b32 s{sMask}, 1")
    a(f"s_call_b64 s[{sRet}:{sRet+1}], L_exact0")
    a.label("L_att_i0")
    if hook0: a(f"s_cmp_lg_u32 s{sG}, 0\ns_cbranch_scc1 L_att_h0\ns_waitcnt vmcnt(0)\nL_att_h0:")
    a(sync_any(ld))
    if hook0: a(hook0)
    a(f"s_mov_b32 s{sIt}, 1")
    a(f"s_cmp_eq_u32 s{sN}, 1\ns_cbranch_scc1 L_att_last0")
    a(f"s_cmp_eq_u32 s{sN}, 2\ns_cbranch_scc1 L_att_tail1")
    slow = []
    def steady_loop(g):
        S = Sched(lookahead=14, per_slot=1, wait_group=8)
        cnt = [0]
        its = list(range(1, 8))
        for it in its:
            base = len(S.slots); b = it & 1
            add_qk(S, it+1, cnt, " ;@k")
            add_pv(S, it-1, cnt)
            if g == 0: S.add_pre(base + 32, "s_barrier")
            else:
                S.add_pre(base + 32, "s_waitcnt vmcnt(8)\ns_barrier")
                for i, o in enumerate(dma_block(ld)): S.add_fill(base + 32 + i, o)
            pos = [int(round(i * 3.75)) for i in range(17)]
            for i, (s0, s1, dp, qt, first) in enumerate(sm_pairs(b)):
                t0 = vT + (i & 1)*2; p = base + pos[i]; w = pos[i+1] - pos[i]
                S.add_fill(p, f"v_exp_f32 v{t0}, v{s0}")
                S.add_fill(p + 1, f"v_exp_f32 v{t0+1}, v{s1}")
                if first: S.add_fill(p + 2, f"v_add_f32 v{vTS+qt}, v{t0}, v{t0+1}")
                else: S.add_fill(p + 2, f"v_add_f32 v{vTS+qt}, v{vTS+qt}, v{t0}\nv_add_f32 v{vTS+qt}, v{vTS+qt}, v{t0+1}")
                S.add_fill(p + w - 1, f"v_cvt_pk_bf16_f32 v{dp}, v{t0}, v{t0+1}")
            S.add_fill(base + 60, f"v_add_f32 v{vT+4}, v{vTS}, v{vTS+1}\nv_add_f32 v{rL(b^1,0)}, v{rL(b,0)}, v{vTS}")
            S.add_fill(base + 61, f"v_cmp_nge_f32 vcc, s{sThr}, v{vT+4}\nv_add_f32 v{rL(b^1,1)}, v{rL(b,1)}, v{vTS+1}")
            S.add_fill(base + 62, f"s_add_u32 s{sIt}, s{sIt}, 1\ns_add_u32 s{sT}, s{sIt}, 2\ns_cmp_gt_u32 s{sT}, s{sN}")
        segs = S.build(cuts=[64*i for i in range(len(its))])
        body1, body0 = segs[3], segs[4]
        assert body1 == segs[5] and body0 == segs[6], "attention not periodic"
        si = [i for i, l in enumerate(body0) if "s_barrier" in l][0]
        for l in body0[si:]:
            if ";@k" in l: a(l)
        a.raw(".p2align 6")
        a.label(f"L_att_loop{g}")
        for body, b in ((body1, 1), (body0, 0)):
            for l in body: a(l)
            a(f"s_cbranch_vccnz L_att_sl{g}{b}")
            a.label(f"L_att_bk{g}{b}")
            a("s_cbranch_scc1 L_att_tail0" if b == 1 else f"s_cbranch_scc0 L_att_loop{g}")
            slow.append(f"L_att_sl{g}{b}:\ns_call_b64 s[{sRet}:{sRet+1}], L_exact{b}\ns_add_u32 s{sT}, s{sIt}, 2\ns_cmp_gt_u32 s{sT}, s{sN}\ns_branch L_att_bk{g}{b}")
        a("s_branch L_att_tail1")
    a(f"s_cmp_lg_u32 s{sG}, 0\ns_cbranch_scc1 L_att_g1")
    steady_loop(0)
    a.label("L_att_g1")
    a("s_setprio 1")
    steady_loop(1)
    for t in slow: a(t)
    for b in (1, 0):
        a.label(f"L_att_tail{b}")
        a("s_waitcnt lgkmcnt(0)")
        a(sync_any(ld))
        a(f"s_mov_b32 s{sMask}, 1\ns_bitcmp1_b32 s{sRQ}, 0\ns_cbranch_scc1 L_att_to{b}")
        tail_block(a, b, False)
        a(f"s_branch L_att_tc{b}")
        a.label(f"L_att_to{b}")
        tail_block(a, b, True)
        a.label(f"L_att_tc{b}")
        a(f"s_cbranch_vccz L_att_tk{b}")
        a(f"s_call_b64 s[{sRet}:{sRet+1}], L_exact{b}")
        a.label(f"L_att_tk{b}")
        a(f"s_add_u32 s{sIt}, s{sIt}, 1")
        a.label(f"L_att_last{b}")
        a(f"s_cmp_ge_u32 s{sIt}, s{sNW}\ns_cbranch_scc1 L_att_ls{b}")
        a(sync_any(ld))
        a.label(f"L_att_ls{b}")
        a(f"s_bitcmp1_b32 s{sRQ}, 0\ns_cbranch_scc1 L_att_lo{b}")
        emit_blk2(a, add_pv_half, b)
        a(f"s_branch L_att_le{b}")
        a.label(f"L_att_lo{b}")
        emit_blk2(a, add_pv, b)
        a.label(f"L_att_le{b}")
        if b == 0: a(f"v_mov_b32 v{rL(0,0)}, v{rL(1,0)}\nv_mov_b32 v{rL(0,1)}, v{rL(1,1)}")
        a("s_branch L_att_epi")
    exact2(a, 0); exact2(a, 1)
    a.label("L_att_epi")
    stamp(a, 8)
    U = vT
    for sw in ("v_permlane16_swap_b32", "v_permlane32_swap_b32"):
        a(f"v_mov_b32 v{U}, v{vL}\nv_mov_b32 v{U+1}, v{vL+1}\ns_nop 1")
        a(f"{sw} v{vL}, v{U}\n{sw} v{vL+1}, v{U+1}")
        a(f"v_add_f32 v{vL}, v{vL}, v{U}\nv_add_f32 v{vL+1}, v{vL+1}, v{U+1}")
    a(f"v_rcp_f32 v{vL}, v{vL}\nv_rcp_f32 v{vL+1}, v{vL+1}")
    a(f"s_mul_i32 s100, s{sRt0}, {AFS}\ns_lshl_b32 s{sT}, s{sH}, 12\ns_add_u32 s100, s100, s{sT}\ns_add_u32 s100, s100, {AF}\ns_add_u32 s101, s100, {AFS}")
    n = 0
    for qt in range(2):
        for s in range(4):
            for d in (2*s, 2*s+1):
                for r in range(4): a(f"v_mul_f32 v{rO(d,qt)+r}, v{rO(d,qt)+r}, v{vL+qt}")
            pack_store(a, rO(2*s, qt), rO(2*s+1, qt), vF + (n % 4)*4, SWS, 100 + qt, s*1024, st); n += 1
    stamp(a, 9)
    a("s_mov_b32 s79, 0")
    a.label("L_att_idle")
    if idle_hook: a(idle_hook)
    a(f"s_add_u32 s{sIt}, s{sIt}, 1")
    a(f"s_cmp_ge_u32 s{sIt}, s{sNW}\ns_cbranch_scc1 L_att_done")
    a(sync_any(ld))
    a("s_branch L_att_idle")
    a.label("L_att_done")
    a("s_setprio 0")
```

```python
from gen2 import *
import att2
from att2 import rL, exact2, spread, sMk
sVr, sVw = 64+8, 64+9
sVr, sVw = 88, 89

def v_next(s):
    return (f"s_add_u32 s{s}, s{s}, 16384\ns_cmp_eq_u32 s{s}, {144*1024}\ns_cselect_b32 s{s}, {32*1024}, s{s}\n"
            f"s_cmp_eq_u32 s{s}, {64*1024}\ns_cselect_b32 s{s}, {96*1024}, s{s}")

def dma_block(ld):
    o = []
    for add in (4, 5):
        pre = (f"s_add_u32 s{sT}, s{sIt}, {add}\ns_and_b32 s100, s{sT}, 1\ns_lshl_b32 s100, s100, 14\ns_and_b32 s101, s{sT}, 2\ns_lshl_b32 s101, s101, 15\ns_add_u32 s100, s100, s101\n"
               f"s_xor_b32 m0, s100, s92\ns_lshl_b32 s101, s{sT}, 14\ns_add_u32 s101, s101, s{sKs}\ns_cmp_lt_i32 s{sT}, s{sNW}\ns_cselect_b32 s101, s101, 0x40000000\n")
        for i in range(4):
            o.append((pre if i == 0 else "") + f"buffer_load_dwordx4 v{vL16}, s[{SWS}:{SWS+3}], s101 offen offset:{i*1024}{ld} lds")
    for add in (2, 3):
        pre = (v_next(sVw) + f"\ns_add_u32 s{sT}, s{sIt}, {add}\ns_and_b32 s100, s92, 0xffff\ns_add_u32 m0, s100, s{sVw}\n"
               f"s_lshl_b32 s101, s{sT}, 14\ns_add_u32 s101, s101, s{sVs}\ns_cmp_lt_i32 s{sT}, s{sNW}\ns_cselect_b32 s101, s101, 0x40000000\n")
        for i in range(4):
            o.append((pre if i == 0 else "") + f"buffer_load_dwordx4 v{vL16}, s[{SWS}:{SWS+3}], s101 offen offset:{i*1024}{ld} lds")
    return o

_u = [0]
def sync_odd(ld, w0=True):
    _u[0] += 1; u = _u[0]
    return (f"s_cmp_eq_u32 s{sG}, 0\ns_cbranch_scc1 L_sa{u}\ns_waitcnt vmcnt(0)\ns_barrier\n" + "\n".join(dma_block(ld)) +
            f"\ns_branch L_sb{u}\nL_sa{u}:\n" + ("s_waitcnt vmcnt(0)\n" if w0 else "") + f"s_barrier\nL_sb{u}:")

def add_pv3(S, tile, cnt, nks=2):
    b = tile & 1
    S.add_sync(v_next(sVr) + f"\nv_add_u32 v{vV}, s{sVr}, v{vL16}", drain=False)
    for ks in range(nks):
        for dt in range(8):
            f = vF + (cnt[0] % NF)*4; cnt[0] += 1
            S.add_load(('V', tile, ks, dt), [f"ds_read_b128 v[{f}:{f+3}], v{vV} offset:{(ks*8+dt)*1024}"], f)
            for qt in range(2):
                S.add_slot(mfma(rO(dt, qt), f, rP(b, ks, qt)), [('V', tile, ks, dt)])
def add_pv3h(S, tile, cnt): add_pv3(S, tile, cnt, 1)

def blk(a, fn, tile):
    S = Sched(lookahead=14, per_slot=1, wait_group=4)
    fn(S, tile, [0])
    for l in S.build()[0]: a(l)

def attention3(a, st, ld, hook0=None, idle_hook=None, post_b=(), idle_post=None, events=None):
    att2.add_pv = add_pv3
    for r in list(range(vO, vO+64)) + list(range(vCm, vCm+8)) + [rL(0,0), rL(0,1)]: a(f"v_mov_b32 v{r}, 0")
    a(f"s_xor_b32 s{sT}, s84, 0x10000\nv_xor_b32 v{vK}, s{sT}, v{vL16}")
    a(f"s_mov_b32 s{sVr}, {80*1024}\ns_mov_b32 s{sVw}, {96*1024}")
    a(f"v_mov_b32 v{vNEG}, 0xf149f2ca")
    a(f"s_and_b32 s{sT}, s{sRQ}, 1\ns_lshl_b32 s{sT}, s{sT}, 5")
    a(f"v_and_b32 v{vDm}, 15, v{vLANE}\nv_add_u32 v{vDm}, s{sT}, v{vDm}\nv_lshrrev_b32 v{vT}, 4, v{vLANE}\nv_lshlrev_b32 v{vT}, 2, v{vT}\nv_sub_u32 v{vDm}, v{vDm}, v{vT}")
    a(f"s_mov_b32 s{sThr}, 0x53800000\ns_mov_b32 s{sFloor}, 0xff7fffff\ns_mov_b32 s{sMask}, 0\ns_mov_b32 s{sIt}, -1")
    a(f"v_and_b32 v{vT+1}, 15, v{vLANE}\nv_sub_u32 v{vT+1}, v{vT+1}, v{vT}")
    for r in range(4): a(f"v_cmp_ge_i32 s[{sMk+2*r}:{sMk+2*r+1}], v{vT+1}, {r}")
    a("s_mov_b32 s78, 0\ns_mov_b32 s79, 0")
    stamp(a, 7)
    blk(a, add_qk, 0)
    if PROF == 6: stamp(a, 16)
    a(sync_odd(ld, False))
    if PROF == 6: stamp(a, 17)
    if PROF == 6: stamp(a, 18)
    a(f"s_mov_b32 s{sIt}, 0")
    a(f"s_cmp_eq_u32 s{sN}, 1\ns_cbranch_scc1 L_att_n1")
    att2.first_block(a, post_b)
    a("s_branch L_att_i0")
    a.label("L_att_n1")
    for t in post_b: a(t)
    a(f"s_mov_b32 s{sMask}, 1")
    a(f"s_call_b64 s[{sRet}:{sRet+1}], L_exact0")
    a.label("L_att_i0")
    if PROF == 6: stamp(a, 19)
    a(f"s_mov_b32 s{sIt}, 1")
    a(f"s_cmp_eq_u32 s{sN}, 1\ns_cbranch_scc1 L_att_last0")
    a(f"s_cmp_eq_u32 s{sN}, 2\ns_cbranch_scc1 L_att_tail1")
    slow = []
    def steady_loop(g):
        S = Sched(lookahead=14, per_slot=1, wait_group=8)
        cnt = [0]
        its = list(range(1, 8))
        for it in its:
            base = len(S.slots); b = it & 1
            add_qk(S, it+1, cnt, " ;@k")
            add_pv3(S, it-1, cnt)
            S.add_pre(base + 32, "; @mid")
            if b == 1:
                if g == 0: S.add_pre(base + 32, "s_barrier")
                else:
                    S.add_pre(base + 32, "s_waitcnt vmcnt(0)\ns_barrier")
                    for i, o in enumerate(dma_block(ld)): S.add_fill(base + 32 + i, o)
            if b == 0 and g == 0: S.add_fill(base + 59, "s_waitcnt vmcnt(0)")
            pos = [int(round(i * 3.75)) for i in range(17)]
            for i, (s0, s1, dp, qt, first) in enumerate(sm_pairs(b)):
                t0 = vT + (i & 1)*2; p = base + pos[i]; w = pos[i+1] - pos[i]
                S.add_fill(p, f"v_exp_f32 v{t0}, v{s0}")
                S.add_fill(p + 1, f"v_exp_f32 v{t0+1}, v{s1}")
                if first: S.add_fill(p + 2, f"v_add_f32 v{vTS+qt}, v{t0}, v{t0+1}")
                else: S.add_fill(p + 2, f"v_add_f32 v{vTS+qt}, v{vTS+qt}, v{t0}\nv_add_f32 v{vTS+qt}, v{vTS+qt}, v{t0+1}")
                S.add_fill(p + w - 1, f"v_cvt_pk_bf16_f32 v{dp}, v{t0}, v{t0+1}")
            S.add_fill(base + 60, f"v_add_f32 v{vT+4}, v{vTS}, v{vTS+1}\nv_add_f32 v{rL(b^1,0)}, v{rL(b,0)}, v{vTS}")
            S.add_fill(base + 61, f"v_cmp_nge_f32 vcc, s{sThr}, v{vT+4}\nv_add_f32 v{rL(b^1,1)}, v{rL(b,1)}, v{vTS+1}")
            S.add_fill(base + 62, f"s_add_u32 s{sIt}, s{sIt}, 1\ns_add_u32 s{sT}, s{sIt}, 2\ns_cmp_gt_u32 s{sT}, s{sN}")
        segs = S.build(cuts=[64*i for i in range(len(its))])
        body1, body0 = segs[3], segs[4]
        assert body1 == segs[5] and body0 == segs[6], "attention not periodic"
        si = [i for i, l in enumerate(body0) if "@mid" in l][0]
        for l in body0[si:]:
            if ";@k" in l: a(l)
        a.raw(".p2align 6")
        a.label(f"L_att_loop{g}")
        for body, b in ((body1, 1), (body0, 0)):
            for l in body: a(l)
            a(f"s_cbranch_vccnz L_att_sl{g}{b}")
            a.label(f"L_att_bk{g}{b}")
            a("s_cbranch_scc1 L_att_tail0" if b == 1 else f"s_cbranch_scc0 L_att_loop{g}")
            slow.append(f"L_att_sl{g}{b}:\ns_call_b64 s[{sRet}:{sRet+1}], L_exact{b}\ns_add_u32 s{sT}, s{sIt}, 2\ns_cmp_gt_u32 s{sT}, s{sN}\ns_branch L_att_bk{g}{b}")
        a("s_branch L_att_tail1")
    a(f"s_cmp_lg_u32 s{sG}, 0\ns_cbranch_scc1 L_att_g1")
    steady_loop(0)
    a.label("L_att_g1")
    a("s_setprio 1")
    steady_loop(1)
    for t in slow: a(t)
    if events: a("L_att_ev:\n" + events + "\ns_branch L_att_evb")
    for b in (1, 0):
        a.label(f"L_att_tail{b}")
        a("s_waitcnt lgkmcnt(0)")
        if b == 1: a(sync_odd(ld))
        if PROF == 6: stamp(a, 20)
        a(f"s_mov_b32 s{sMask}, 1\ns_bitcmp1_b32 s{sRQ}, 0\ns_cbranch_scc1 L_att_to{b}")
        att2.tail_block(a, b, False)
        a(f"s_branch L_att_tc{b}")
        a.label(f"L_att_to{b}")
        att2.tail_block(a, b, True)
        a.label(f"L_att_tc{b}")
        a(f"s_cbranch_vccz L_att_tk{b}")
        a(f"s_call_b64 s[{sRet}:{sRet+1}], L_exact{b}")
        a.label(f"L_att_tk{b}")
        a(f"s_add_u32 s{sIt}, s{sIt}, 1")
        a.label(f"L_att_last{b}")
        if PROF == 6: stamp(a, 21)
        if b == 0: a(sync_odd(ld))
        a(f"s_bitcmp1_b32 s{sRQ}, 0\ns_cbranch_scc1 L_att_lo{b}")
        blk(a, add_pv3h, b)
        a(f"s_branch L_att_le{b}")
        a.label(f"L_att_lo{b}")
        blk(a, add_pv3, b)
        a.label(f"L_att_le{b}")
        if b == 0: a(f"v_mov_b32 v{rL(0,0)}, v{rL(1,0)}\nv_mov_b32 v{rL(0,1)}, v{rL(1,1)}\ns_add_u32 s{sIt}, s{sIt}, 1")
        a("s_branch L_att_epi")
    exact2(a, 0); exact2(a, 1)
    a.label("L_att_epi")
    stamp(a, 8)
    a("s_setprio 0")
    U = vT
    for sw in ("v_permlane16_swap_b32", "v_permlane32_swap_b32"):
        a(f"v_mov_b32 v{U}, v{vL}\nv_mov_b32 v{U+1}, v{vL+1}\ns_nop 1")
        a(f"{sw} v{vL}, v{U}\n{sw} v{vL+1}, v{U+1}")
        a(f"v_add_f32 v{vL}, v{vL}, v{U}\nv_add_f32 v{vL+1}, v{vL+1}, v{U+1}")
    a(f"v_rcp_f32 v{vL}, v{vL}\nv_rcp_f32 v{vL+1}, v{vL+1}")
    a(f"s_mul_i32 s100, s{sRt0}, {AFS}\ns_lshl_b32 s{sT}, s{sH}, 12\ns_add_u32 s100, s100, s{sT}\ns_add_u32 s100, s100, {AF}\ns_add_u32 s101, s100, {AFS}")
    n = 0
    for qt in range(2):
        for s in range(4):
            for d in (2*s, 2*s+1):
                for r in range(4): a(f"v_mul_f32 v{rO(d,qt)+r}, v{rO(d,qt)+r}, v{vL+qt}")
            pack_store(a, rO(2*s, qt), rO(2*s+1, qt), vF + (n % 4)*4, SWS, 100 + qt, s*1024, st); n += 1
    stamp(a, 9)
    a(f"s_add_u32 s{sIt}, s{sIt}, 1")
    a.label("L_att_idle")
    if idle_hook: a(idle_hook)
    a(f"s_cmp_ge_u32 s{sIt}, s{sNW}\ns_cbranch_scc1 L_att_done")
    a(sync_odd(ld))
    if idle_post: a(idle_post)
    a(f"s_add_u32 s{sIt}, s{sIt}, 2")
    a("s_branch L_att_idle")
    a.label("L_att_done")
```

```python
import gen, gen2, gen3
from gen3 import *
import struct
def fb(x): return "0x%08x" % struct.unpack("<I", struct.pack("<f", x))[0]

ST, LD = " sc1", " sc1"
STAT = YF
vPA, vPV = 250, 249
sFast, sXcc, sHasM, sC1, sXn, sJ, sSpin, sNlds, sStg = 78, 77, 71, 86, 87, 89, 90, 70, 91
sAb, sWb = 68, 69

wq_dma_override = None
p1_extra = None
def rX(rt, ks): return (((ks + 8) % 16) * 2 + rt) * 4

_u = [0]
def uid():
    _u[0] += 1; return _u[0]
FLG = 3*MB
def publish(val, wave=0):
    u = uid()
    if val == 1:
        st = f"v_mov_b32 v251, s{sF}\n", f"buffer_store_byte v248, v251, s[{SDBG}:{SDBG+3}], 0 offen sc1\n"
    else:
        st = f"s_lshl_b32 s{sT}, s{sF}, 7\ns_add_u32 s{sT}, s{sT}, {FLG}\nv_mov_b32 v251, s{sT}\n", f"buffer_store_dword v248, v251, s[{SWS}:{SWS+3}], 0 offen sc1\n"
    return (f"s_cmp_lg_u32 s{sW}, {wave}\ns_cbranch_scc1 L_pub{u}\n"
            f"v_mov_b32 v248, {val}\n" + st[0] +
            f"s_mov_b64 s[72:73], exec\ns_mov_b64 exec, 1\n" + st[1] +
            f"s_mov_b64 exec, s[72:73]\nL_pub{u}:")
def flag_addr():
    return f"v_lshlrev_b32 v{vPA}, 7, v{vPA}\nv_add_u32 v{vPA}, {FLG}, v{vPA}"
def poll_issue():
    return f"buffer_load_dword v{vPV}, v{vPA}, s[{SWS}:{SWS+3}], 0 offen sc1"
def poll_check(thr):
    u = uid()
    return (f"s_mov_b32 s{sSpin}, 0\nL_pl{u}:\nv_cmp_gt_u32 vcc, {thr}, v{vPV}\ns_cbranch_vccz L_pd{u}\n"
            f"s_add_u32 s{sSpin}, s{sSpin}, 1\ns_cmp_gt_u32 s{sSpin}, 0x40000\ns_cbranch_scc1 L_pd{u}\n"
            f"s_sleep 4\n{poll_issue()}\ns_waitcnt vmcnt(0)\ns_branch L_pl{u}\nL_pd{u}:")
def poll_one(thr, wave=0):
    u = uid()
    return (f"s_cmp_lg_u32 s{sW}, {wave}\ns_cbranch_scc1 L_po{u}\n" + poll_issue() + "\ns_waitcnt vmcnt(0)\n" + poll_check(thr) + f"\nL_po{u}:")
def poll2_issue():
    return f"buffer_load_dword v{vPV}, v{vPA}, s[{SDBG}:{SDBG+3}], 0 offen sc1"
def poll2_check(tag):
    u = tag
    return (f"s_mov_b32 s{sSpin}, 0\nL_pl{u}:\nv_cmp_ne_u32 vcc, 0x01010101, v{vPV}\ns_cbranch_vccz L_pd{u}\n"
            f"s_add_u32 s{sSpin}, s{sSpin}, 1\ns_cmp_gt_u32 s{sSpin}, 0x40000\ns_cbranch_scc1 L_pd{u}\n"
            f"s_sleep 8\n{poll2_issue()}\ns_waitcnt vmcnt(0)\ns_branch L_pl{u}\nL_pd{u}:")

def stamp_txt(idx_expr_sgpr=None, idx=0, force=False):
    if PROF != (5 if force else 4): return ""
    t = "s_memrealtime s[72:73]\ns_memtime s[74:75]\n"
    t += f"s_lshl_b32 s76, s2, 3\ns_add_u32 s76, s76, s{sW}\ns_lshl_b32 s76, s76, 8\ns_add_u32 s76, s76, {STAMP + idx*8}\n"
    if idx_expr_sgpr is not None:
        t += f"s_lshl_b32 s79, s{idx_expr_sgpr}, 3\ns_sub_u32 s76, s76, s79\n"
    t += "s_waitcnt lgkmcnt(0)\nv_mov_b32 v252, s72\nv_mov_b32 v253, s74\nv_mov_b32 v251, 0\n"
    t += f"buffer_store_dwordx2 v[252:253], v251, s[{SWS}:{SWS+3}], s76 offen\n"
    return t

def ln_stats(a, x, t):
    m, s, u, r = t, t+1, t+2, t+3
    d = t + 4
    a(f"v_add_f32 v{m}, v{x}, v{x+1}\nv_add_f32 v{s}, v{x+2}, v{x+3}\nv_add_f32 v{u}, v{x+4}, v{x+5}\nv_add_f32 v{r}, v{x+6}, v{x+7}")
    a(f"v_add_f32 v{m}, v{m}, v{s}\nv_add_f32 v{u}, v{u}, v{r}\nv_add_f32 v{m}, v{m}, v{u}")
    allreduce_add(a, m, u)
    a(f"v_mul_f32 v{m}, 0x3b000000, v{m}")
    for i in range(8): a(f"v_sub_f32 v{d+i}, v{x+i}, v{m}")
    a(f"v_mul_f32 v{s}, v{d}, v{d}\nv_mul_f32 v{r}, v{d+1}, v{d+1}")
    for i in range(2, 8, 2):
        a(f"v_fmac_f32 v{s}, v{d+i}, v{d+i}\nv_fmac_f32 v{r}, v{d+i+1}, v{d+i+1}")
    a(f"v_add_f32 v{s}, v{s}, v{r}")
    allreduce_add(a, s, u)
    a(f"v_mul_f32 v{s}, 0x3b000000, v{s}")
    rbf(a, m); rbf(a, s)
    a(f"v_add_f32 v{s}, 0x3727c5ac, v{s}")
    rbf(a, s)
    a(f"v_sqrt_f32 v{s}, v{s}\ns_nop 0")
    rbf(a, s)
    a(f"v_rcp_f32 v{r}, v{s}")

def ln_compute_f(a):
    x, t, pk = 204, 212, 200
    m, s, u, r, d = t, t+1, t+2, t+3, t+4
    a(f"s_mul_i32 s57, s{sW}, 1040\ns_add_u32 s57, s57, 131072\nv_add_u32 v230, s57, v{vL16}")
    unpack8(a, 200, x)
    ln_stats(a, x, t)
    for i in range(8): a(f"v_sub_f32 v{d+i}, v{x+i}, v{m}")
    for i in range(4): a(f"v_cvt_pk_bf16_f32 v{pk+i}, v{d+2*i}, v{d+2*i+1}")
    unpack8(a, pk, d)
    for i in range(8):
        a(f"v_mul_f32 v{x+i}, v{d+i}, v{r}")
        a(f"v_fma_f32 v{d+i}, -v{x+i}, v{s}, v{d+i}")
        a(f"v_fmac_f32 v{x+i}, v{d+i}, v{r}")
    for i in range(4): a(f"v_cvt_pk_bf16_f32 v{pk+i}, v{x+2*i}, v{x+2*i+1}")
    a("ds_write_b128 v230, v[200:203]")
    unpack8(a, pk, x)
    ln_stats(a, x, t)
    a(f"v_mov_b32 v232, v{m}\nv_mov_b32 v234, 0\nv_mov_b32 v233, v{r}")
    a(f"s_lshl_b32 s57, s56, 3\ns_add_u32 s57, s57, {STAT}")
    a("s_mov_b64 s[72:73], exec\ns_mov_b64 exec, 1")
    a(f"buffer_store_dwordx2 v[232:233], v234, s[{SWS}:{SWS+3}], s57 offen{ST}")
    a("s_mov_b64 exec, s[72:73]")

def ln_store_f(a):
    t = 204
    a(f"v_and_b32 v{t}, 7, v{vLANE}\nv_mul_u32_u24 v{t+1}, 1040, v{t}\nv_lshrrev_b32 v{t+2}, 3, v{vLANE}\nv_lshl_add_u32 v{t+1}, v{t+2}, 4, v{t+1}")
    a(f"s_lshl_b32 s57, s{sW}, 7\ns_add_u32 s57, s57, 131072\nv_add_u32 v{t+1}, s57, v{t+1}")
    a(f"ds_read_b128 v[200:203], v{t+1}")
    a(f"v_lshlrev_b32 v{t+2}, 8, v{t+2}\nv_lshl_add_u32 v{t+2}, v{t}, 4, v{t+2}")
    a(f"s_lshr_b32 s57, s{sF}, 1\ns_lshl_b32 s57, s57, 14\ns_lshl_b32 s58, s{sW}, 11\ns_add_u32 s57, s57, s58\ns_and_b32 s58, s{sF}, 1\ns_lshl_b32 s58, s58, 7\ns_add_u32 s57, s57, s58")
    a("s_waitcnt lgkmcnt(0)")
    a(f"buffer_store_dwordx4 v[200:203], v{t+2}, s[{SWS}:{SWS+3}], s57 offen{ST}")

def accP1(isV, kt, dt):
    return (((kt >> 1)*4 + dt)*2 + (kt & 1))*4 if isV else (kt*4 + dt)*4

def p1_adv():
    return (f"s_add_u32 s{sStg}, s{sStg}, 1\ns_and_b32 s{sStg}, s{sStg}, 7\ns_lshl_b32 s{sT}, s{sStg}, 7\ns_add_u32 s{sAoff}, s{sAb}, s{sT}\n"
            f"s_lshl_b32 s{sT}, s{sStg}, 19\ns_add_u32 s{sWoff}, s{sWb}, s{sT}\n"
            f"s_xor_b32 s{sLdsA}, s{sLdsA}, 0x10000\ns_xor_b32 s{sLdsW}, s{sLdsW}, 0x10000")

def wq_dma(i, half):
    return (f"s_add_u32 m0, s{sNlds}, {half*65536 + i*1024}\ns_add_u32 s{sT}, s{sJ}, {(half*256 + i*4)*8192}\n"
            f"buffer_load_dwordx4 v{vDW+((i>>1)&1)}, s[{SWQ}:{SWQ+3}], s{sT} offen lds")

def touches(tag):
    t = ""
    t += f"s_add_u32 s56, s{sCnt}, 1\ns_lshr_b32 s56, s56, 1\ns_add_u32 s56, s56, s80\ns_and_b32 s56, s56, 3\ns_lshl_b32 s56, s56, 16\ns_add_u32 s56, s56, s81\n"
    t += f"s_and_b32 s57, s{sCnt}, 1\ns_lshl_b32 s57, s57, 10\ns_add_u32 s56, s56, s57\n"
    t += f"buffer_store_dwordx4 v[240:243], v{vL16}, s[{SWS}:{SWS+3}], s56 offen sc1\n"
    def ld(v, srdn, extra=""): return f"buffer_load_dword v229, v{v}, s[{srdn}:{srdn+3}], s57 offen{extra}\ns_branch L_tz{tag}\n"
    t += f"s_cmp_eq_u32 s{sCnt}, s83\ns_cbranch_scc1 L_tx{tag}\n"
    t += f"s_cmp_eq_u32 s{sW}, 0\ns_cbranch_scc1 L_t0{tag}\ns_cmp_lt_u32 s{sCnt}, 4\ns_cbranch_scc1 L_td{tag}\n"
    t += f"s_cmp_eq_u32 s{sW}, 1\ns_cbranch_scc1 L_t1{tag}\ns_cmp_eq_u32 s{sW}, 2\ns_cbranch_scc1 L_t2{tag}\n"
    t += f"L_td{tag}:\ns_mov_b32 s57, 0x40000000\n" + ld(226, SWS)
    t += f"L_t0{tag}:\ns_lshl_b32 s57, s{sP}, 2\ns_and_b32 s58, s{sH}, 3\ns_add_u32 s57, s57, s58\ns_lshl_b32 s57, s57, 16\ns_sub_u32 s58, 9, s{sCnt}\ns_lshl_b32 s58, s58, 7\ns_add_u32 s57, s57, s58\n" + ld(227, SCKV)
    t += f"L_t1{tag}:\ns_cmp_eq_u32 s{sCnt}, 4\ns_cbranch_scc1 L_t1b{tag}\n"
    t += f"s_and_b32 s57, s{sCnt}, 1\ns_lshl_b32 s57, s57, 21\ns_lshl_b32 s58, s{sP}, 16\ns_add_u32 s57, s57, s58\ns_lshl_b32 s58, s{sH}, 8\ns_add_u32 s57, s57, s58\n" + ld(228, SWQ)
    t += f"L_t1b{tag}:\ns_lshl_b32 s57, s2, 13\n" + ld(226, SW1)
    t += f"L_t2{tag}:\ns_cmp_eq_u32 s{sCnt}, 4\ns_cbranch_scc1 L_t2b{tag}\n"
    t += f"s_lshl_b32 s57, s2, 1\ns_and_b32 s58, s{sCnt}, 1\ns_add_u32 s57, s57, s58\ns_lshl_b32 s57, s57, 13\n" + ld(226, SWO)
    t += f"L_t2b{tag}:\ns_lshl_b32 s57, s2, 13\n" + ld(226, SW2)
    t += f"L_tx{tag}:\ns_lshr_b32 s57, s2, 3\ns_lshl_b32 s57, s57, 16\ns_lshl_b32 s58, s{sW}, 13\ns_add_u32 s57, s57, s58\n"
    t += f"buffer_load_dword v229, v226, s[{SWS}:{SWS+3}], s57 offen sc1\n"
    t += f"L_tz{tag}:"
    return t

def p1_main_f(a, isV, tag):
    S = Sched(lookahead=24, per_slot=1)
    for st in range(8):
        for ks in range(2):
            for kt in range(8):
                for dt in range(4):
                    acc = accP1(isV, kt, dt)
                    wf = P1_W + ((st*2+ks) & 1) * 16 + dt * 4
                    af = P1_A + ((st*16 + ks*8 + kt) % P1_NA) * 4
                    S.add_slot(mfma(acc, af, wf) if isV else mfma(acc, wf, af), [('W', st, ks, dt), ('A', st, ks, kt)])
    x = "\n".join(f"v_xor_b32 v{r}, 0x10000, v{r}" for r in list(range(vAr, vAr+2)) + list(range(vWr, vWr+4)))
    pub1 = publish(1)
    for st in range(9):
        dmas = []
        if st > 0:
            sy = "s_waitcnt vmcnt(2)\n" if st < 8 else "s_waitcnt vmcnt(0)\n"
            if st < 7:
                if not isV: sy += f"s_lshl_b32 s{sT}, s{sW}, 4\ns_add_u32 s{sT}, s{sT}, s{sCnt}\ns_cmp_eq_u32 s{sT}, 3\ns_cbranch_scc0 L_p1a_{tag}\n" + poll2_check(tag) + f"\nL_p1a_{tag}:\n"
            sy += "s_barrier\n"
            sy += stamp_txt(sCnt, 22) if st < 7 else stamp_txt(None, 15 + st)
            if st < 7:
                dmas = [p1_dma(i) for i in range(8)]
                dmas[7] += ("\n" + p1_adv() +
                            f"\ns_cmp_eq_u32 s{sCnt}, 6\ns_cbranch_scc0 L_p1b_{tag}\n" + pub1 + f"\nL_p1b_{tag}:\n"
                            f"s_lshl_b32 s{sT}, s{sW}, 4\ns_add_u32 s{sT}, s{sT}, s{sCnt}\ns_cmp_eq_u32 s{sT}, 4\ns_cbranch_scc0 L_p1c_{tag}\n" + poll2_issue() + f"\nL_p1c_{tag}:\n"
                            + touches(tag))
            else:
                dmas = [wq_dma(i, st - 7) for i in range(8)] if wq_dma_override is None else [wq_dma_override(i, st - 7) for i in range(6)]
            if isV or st == 8:
                sy += "\n".join(dmas) + "\n"; dmas = []
            S.add_sync(sy + (x if st < 8 else ""), drain=True, delay=3)
        if st == 8: break
        for ks in range(2):
            order = [('W', 0), ('W', 1), ('A', 0), ('W', 2), ('W', 3)] + [('A', k) for k in range(1, 8)]
            for (kind, i) in order:
                if kind == 'W':
                    wf = P1_W + ((st*2+ks) & 1) * 16 + i * 4
                    S.add_load(('W', st, ks, i),
                               [f"ds_read_b64_tr_b16 v[{wf}:{wf+1}], v{vWr+i} offset:{ks*8192}",
                                f"ds_read_b64_tr_b16 v[{wf+2}:{wf+3}], v{vWr+i} offset:{ks*8192+1024}"], wf)
                else:
                    af = P1_A + ((st*16 + ks*8 + i) % P1_NA) * 4
                    S.add_load(('A', st, ks, i), [f"ds_read_b128 v[{af}:{af+3}], v{vAr+ks} offset:{i*2048}"], af)
                if dmas and ks == 0:
                    S.add_sync(dmas.pop(0), drain=False)
                    if kind == 'W' and dmas: S.add_sync(dmas.pop(0), drain=False)
    S.ops[-1]['force_at'] = 64*7 + 44
    segs = S.build(cuts=[64*s for s in range(8)])
    body = segs[2]
    for k in range(3, 7):
        assert body == segs[k], "p1 not periodic"
    bi = [i for i, l in enumerate(body) if "s_barrier" in l][0]
    for l in body[bi+1:]:
        if l.startswith("ds_read"): a(l)
    a(f"s_mov_b32 s{sCnt}, 6")
    a.label(f"L_p1_{tag}")
    for l in body: a(l)
    a(f"s_sub_u32 s{sCnt}, s{sCnt}, 1\ns_cmp_lg_u32 s{sCnt}, 0\ns_cbranch_scc1 L_p1_{tag}")
    for l in segs[7] + segs[8]: a(l)

def phase1_f(a):
    stamp(a, 0)
    ln_issue(a)
    a("s_mov_b32 s7, s56")
    t = 236
    a(f"v_lshrrev_b32 v{t}, 3, v{vLANE}\nv_lshlrev_b32 v{t}, 10, v{t}")
    a(f"v_and_b32 v{t+1}, 7, v{vLANE}\nv_lshrrev_b32 v{t+2}, 4, v{vLANE}\nv_xor_b32 v{t+1}, v{t+1}, v{t+2}\nv_lshlrev_b32 v{t+1}, 4, v{t+1}")
    a(f"v_add_u32 v{vDA}, v{t}, v{t+1}\nv_xor_b32 v{t+1}, 64, v{t+1}\nv_add_u32 v{vDA+1}, v{t}, v{t+1}")
    w_dma_voff(a, vDW, 8192, t)
    a(f"s_lshl_b32 s{sAb}, s{sP}, 8\ns_lshl_b32 s{sT}, s{sW}, 5\ns_add_u32 s{sAb}, s{sAb}, s{sT}\ns_lshl_b32 s{sAb}, s{sAb}, 10")
    a(f"s_and_b32 s{sT}, s{sW}, 3\ns_lshl_b32 s{sWb}, s{sT}, 17\ns_lshl_b32 s{sT}, s{sH}, 8\ns_add_u32 s{sWb}, s{sWb}, s{sT}")
    a(f"s_lshl_b32 s{sLdsA}, s{sW}, 12\ns_add_u32 s{sLdsA}, s{sLdsA}, 0x10000\ns_add_u32 s{sLdsW}, s{sLdsA}, 32768")
    a(f"s_mov_b32 s{sStg}, 7")
    a(p1_adv())
    for i in range(8): a(p1_dma(i))
    a(p1_adv())
    stamp(a, 4)
    p1_addr(a)
    att_ids(a)
    a(f"s_lshl_b32 s{sXn}, s{sRt0}, 14")
    a(f"s_lshl_b32 s{sJ}, s{sW}, 18\ns_lshl_b32 s{sT}, s{sH}, 8\ns_add_u32 s{sJ}, s{sJ}, s{sT}")
    a(f"s_lshl_b32 s{sNlds}, s{sW}, 13")
    a(f"s_lshr_b32 s{sC1}, s{sH}, 2\ns_add_u32 s{sC1}, s{sC1}, s{sP}\ns_and_b32 s{sC1}, s{sC1}, 7\ns_and_b32 s{sT}, s{sH}, 3\ns_lshl_b32 s{sT}, s{sT}, 3\ns_add_u32 s{sC1}, s{sC1}, s{sT}")
    a(f"s_cmp_lt_u32 s{sC1}, 22\ns_cselect_b32 s{sHasM}, 1, 0")
    if p1_extra: p1_extra(a)
    a(f"v_lshlrev_b32 v{vPA}, 2, v{vLANE}")
    a(f"v_lshlrev_b32 v226, 7, v{vLANE}\nv_lshlrev_b32 v227, 10, v{vLANE}")
    a(f"v_lshrrev_b32 v{t+1}, 4, v{vLANE}\nv_lshlrev_b32 v{t+1}, 6, v{t+1}\nv_bfe_u32 v{t+2}, v{vLANE}, 1, 3\nv_add_u32 v{t+1}, v{t+1}, v{t+2}\nv_lshlrev_b32 v{t+1}, 13, v{t+1}")
    a(f"v_and_b32 v{t+2}, 1, v{vLANE}\nv_lshl_add_u32 v228, v{t+2}, 7, v{t+1}")
    a("s_mov_b32 s56, s7")
    a("s_waitcnt vmcnt(8)")
    stamp(a, 14)
    ln_compute_f(a)
    stamp(a, 15)
    for i in range(8): a(p1_dma(i))
    a(p1_adv())
    a("s_waitcnt vmcnt(9) lgkmcnt(0)\ns_barrier")
    ln_store_f(a)
    a(publish(0))
    a(f"s_and_b32 s57, s{sW}, 1\ns_lshl_b32 s57, s57, 21\ns_lshl_b32 s58, s{sP}, 16\ns_add_u32 s57, s57, s58\ns_lshl_b32 s58, s{sH}, 8\ns_add_u32 s57, s57, s58")
    a(f"s_bitcmp1_b32 s{sW}, 1\ns_cselect_b32 s57, s57, s82")
    a(f"buffer_load_dword v229, v228, s[{SWKV}:{SWKV+3}], s57 offen")
    a(f"s_lshl_b32 s57, s{sP}, 2\ns_and_b32 s58, s{sH}, 3\ns_add_u32 s57, s57, s58\ns_lshl_b32 s57, s57, 16\ns_add_u32 s57, s57, 256")
    a(f"s_cmp_eq_u32 s{sW}, 0\ns_cselect_b32 s57, s57, s82")
    a(f"buffer_load_dword v229, v227, s[{SCKV}:{SCKV+3}], s57 offen")
    stamp(a, 1)
    a(f"s_cmp_ge_u32 s{sW}, 4\ns_cbranch_scc1 L_p1v")
    p1_main_f(a, False, "k")
    a("s_branch L_p1_done")
    a.label("L_p1v")
    p1_main_f(a, True, "v")
    a.label("L_p1_done")
    stamp(a, 2)

def x_load(rt, ks):
    r = rX(rt, ks)
    return (f"s_add_u32 s{sT}, s{sXn}, {rt*16384 + (ks//4)*4096}\n"
            f"buffer_load_dwordx4 v[{r}:{r+3}], v{vL16}, s[{SWS}:{SWS+3}], s{sT} offen offset:{(ks%4)*1024}{LD} ;@vm x{ks}")

def kv_store(j):
    base = 65 if j & 2 else 64
    return (f"s_add_u32 s{sT}, s{base}, {(j>>2)*8192}\n"
            f"buffer_store_dwordx4 v[{4*j}:{4*j+3}], v{vL16}, s[{SWS}:{SWS+3}], s{sT} offen offset:{(j&1)*1024}{ST} ;@vm st")

def att_scalars(a):
    att_ids(a)
    a(f"s_lshl_b32 s{sN}, s{sBlk}, 1\ns_lshr_b32 s{sT}, s{sRQ}, 1\ns_add_u32 s{sN}, s{sN}, s{sT}\ns_add_u32 s{sN}, s{sN}, 1")
    a(f"s_lshl_b32 s{sT}, s{sP}, 1\ns_sub_u32 s{sNW}, 32, s{sT}")
    a(f"s_lshl_b32 s92, s{sRQ}, 12")
    a(f"s_lshl_b32 s{sKs}, s{sH}, 19\ns_add_u32 s{sKs}, s{sKs}, s92\ns_add_u32 s{sVs}, s{sKs}, {VF}\ns_add_u32 s{sKs}, s{sKs}, {KF}")

def kv_dma(src, t, slot_expr):
    s = f"s_add_u32 m0, s92, {slot_expr}\ns_add_u32 s{sT}, s{src}, {t*16384}\n"
    for i in range(4):
        s += f"buffer_load_dwordx4 v{vL16}, s[{SWS}:{SWS+3}], s{sT} offen offset:{i*1024}{LD} lds\n"
    return s
def kv_first(tag):
    return (f"s_cmp_eq_u32 s{sG}, 0\ns_cbranch_scc1 L_kvf{tag}\n" +
            kv_dma(sKs, 0, 0) + kv_dma(sKs, 1, 16384) + kv_dma(sVs, 0, 32768) + f"L_kvf{tag}:")
def kv_second(tag):
    return (f"s_cmp_eq_u32 s{sG}, 0\ns_cbranch_scc1 L_kvs{tag}\ns_xor_b32 s92, s92, 0x10000\n" +
            kv_dma(sKs, 2, 0) + f"s_xor_b32 s92, s92, 0x10000\nL_kvs{tag}:")

def qproj_f(a):
    a(f"s_lshl_b32 s64, s{sH}, 19\ns_lshl_b32 s{sT}, s{sP}, 16\ns_add_u32 s64, s64, s{sT}\ns_and_b32 s{sT}, s{sW}, 1\ns_lshl_b32 s{sT}, s{sT}, 15\ns_add_u32 s64, s64, s{sT}")
    a(f"s_bfe_u32 s66, s{sW}, 0x10001\ns_lshl_b32 s67, s66, 12\ns_lshl_b32 s66, s66, 11\ns_add_u32 s66, s66, {KF}\ns_add_u32 s67, s67, {VF}")
    a(f"s_cmp_lt_u32 s{sW}, 4\ns_cselect_b32 s66, s66, s67\ns_cselect_b32 s65, 2, 1\ns_lshl_b32 s65, s65, 11\ns_add_u32 s64, s64, s66\ns_add_u32 s65, s65, s64")
    for j in range(16):
        for i in range(4): a(f"v_cvt_pk_bf16_f32 v{4*j+i}, v{8*j+2*i}, v{8*j+2*i+1}")
    lines = []
    for ks in range(4):
        for rt in range(2): lines.append(x_load(rt, ks))
    b = Asm()
    att_scalars(b)
    b(f"s_lshl_b32 s84, s{sHasM}, 16\ns_add_u32 s92, s92, s84\ns_mov_b32 s100, 0")
    w_read_addr(b, vW2, 8, 100, 100, 236)
    b(f"v_and_b32 v{vPA}, 7, v{vLANE}\nv_max_u32 v{vPA}, 1, v{vPA}\nv_add_u32 v{vPA}, s{sP}, v{vPA}\nv_and_b32 v{vPA}, 7, v{vPA}\ns_lshl_b32 s{sT}, s{sH}, 3\nv_add_u32 v{vPA}, s{sT}, v{vPA}")
    t = 236
    b(f"v_lshrrev_b32 v{t}, 3, v{vLANE}\nv_mul_u32_u24 v{t}, 2752, v{t}\nv_bfe_u32 v{t+1}, v{vLANE}, 1, 2\nv_bfe_u32 v{t+2}, v{vLANE}, 4, 1")
    b(f"v_xor_b32 v{t+1}, v{t+1}, v{t+2}\nv_lshlrev_b32 v{t+1}, 5, v{t+1}\nv_and_b32 v{t+2}, 1, v{vLANE}\nv_lshl_add_u32 v{t+1}, v{t+2}, 4, v{t+1}")
    b(f"v_add_u32 v240, v{t}, v{t+1}\nv_xor_b32 v{t+1}, 64, v{t+1}\nv_add_u32 v241, v{t}, v{t+1}")
    b(f"s_mul_i32 s88, s{sW}, {64*2752}\ns_lshl_b32 s{sT}, s{sC1}, 7\ns_add_u32 s88, s88, s{sT}\ns_cmp_lg_u32 s{sHasM}, 0\ns_cselect_b32 s88, s88, 0x40000000")
    b(f"s_cmp_lg_u32 s{sFast}, 0\ns_cselect_b64 vcc, -1, 0")
    lines += [l.strip() for l in b.lines]
    lines += stamp_txt(None, 24).split("\n")
    fills = {}
    for ks in range(12):
        fills.setdefault(16*ks + 9, []).append(x_load(0, 4+ks)); fills.setdefault(16*ks + 13, []).append(x_load(1, 4+ks))
    for i in range(16):
        fills.setdefault(int(i*11.3) + 1, []).append(kv_store(i))
    for j in range(8): assert int((2*j+1)*11.3) + 1 + 2 <= 16*(4+j) + 9
    for i in range(8):
        u = uid()
        fills.setdefault(16*12 + 1 + 4*i, []).append(
            f"s_add_u32 m0, s{sNlds}, {i*1024}\ns_add_u32 s{sT}, s88, {i*8*2752}\n"
            f"buffer_load_dwordx4 v{240+(i&1)}, s[{SW1}:{SW1+3}], s{sT} offen lds ;@vm w1")
    S = Sched(lookahead=14, per_slot=2)
    n = 0
    for ks in range(16):
        if ks == 8:
            x = "\n".join(f"v_xor_b32 v{r}, 0x10000, v{r}" for r in range(vW2, vW2+8))
            S.add_sync(stamp_txt(None, 25) + "s_barrier\n" + stamp_txt(None, 27) + x, drain=True, delay=3)
        for ct in range(8):
            wf = WR2 + (n % NWR2)*4; n += 1
            S.add_load((ks, ct), [f"ds_read_b64_tr_b16 v[{wf}:{wf+1}], v{vW2+ct} offset:{(ks%8)*8192}",
                                  f"ds_read_b64_tr_b16 v[{wf+2}:{wf+3}], v{vW2+ct} offset:{(ks%8)*8192+1024}"], wf)
            for rt in range(2):
                sl = S.add_slot(mfma(ACC2 + (rt*8 + ct)*4, wf, rX(rt, ks), "0" if ks == 0 else None), [(ks, ct)])
                if ct == 0 and rt == 0: S.add_pre(sl, f"@vmwait x{ks}")
                for f in fills.get(sl, []): S.add_fill(sl, f)
    sy = "s_waitcnt vmcnt(0)\ns_barrier\n" + publish(2)
    S.add_sync(stamp_txt(None, 28) + sy + "\n" + stamp_txt(None, 29), drain=True, delay=3)
    S.ops[-1]['force_at'] = 256 - 4
    lines += S.build()[0]
    for l in resolve_vm(lines): a(l)
    a("s_mov_b32 s100, 0x3e0293ee")
    a("s_nop 7")
    for j in range(8):
        s, d = ACC2 + 8*j, ACC2 + 4*j
        for i in range(8): a(f"v_mul_f32 v{s+i}, s100, v{s+i}")
        for i in range(4): a(f"v_cvt_pk_bf16_f32 v{d+i}, v{s+2*i}, v{s+2*i+1}")

MACC, MCS, MONE = 160, 232, 236
def mlp1_f(a):
    a(f"s_cmp_lg_u32 s{sHasM}, 0\ns_cbranch_scc1 L_mlp1_go")
    a(poll_one(2) + "\ns_barrier\n" + kv_first("a") + "\n" + kv_second("a") + "\ns_waitcnt vmcnt(12)\ns_barrier\ns_branch L_mlp1_done\nL_mlp1_go:")
    t = 240
    a(f"v_lshrrev_b32 v{t}, 4, v{vLANE}\nv_bfe_u32 v{t+1}, v{vLANE}, 2, 2\nv_lshl_add_u32 v{t+2}, v{t}, 3, v{t+1}\nv_lshlrev_b32 v{t+2}, 7, v{t+2}")
    a(f"v_and_b32 v{t+3}, 3, v{vLANE}\nv_lshl_add_u32 v{t+2}, v{t+3}, 3, v{t+2}")
    a(f"v_and_b32 v{t}, 1, v{t}\nv_lshrrev_b32 v{t+1}, 1, v{t+1}\nv_lshl_or_b32 v{t}, v{t}, 1, v{t+1}")
    for ct in range(4):
        a(f"v_xor_b32 v{t+3}, {ct}, v{t}\nv_lshl_add_u32 v{vW2+ct}, v{t+3}, 5, v{t+2}")
    for r in range(MCS, MCS+4): a(f"v_mov_b32 v{r}, 0")
    for r in range(MONE, MONE+4): a(f"v_mov_b32 v{r}, 0x3f803f80")
    S = Sched(lookahead=14, per_slot=2)
    n = 0
    for ks in range(16):
        for ct in range(4):
            wf = WR2 + (n % NWR2)*4; n += 1
            S.add_load((ks, ct), [f"ds_read_b64_tr_b16 v[{wf}:{wf+1}], v{vW2+ct} offset:{ks*4096}",
                                  f"ds_read_b64_tr_b16 v[{wf+2}:{wf+3}], v{vW2+ct} offset:{ks*4096+512}"], wf)
            u = uid()
            cs = f"s_cmp_eq_u32 s{sW}, {(ks>>3)*4+ct}\ns_cbranch_scc0 L_cs{u}\n" + mfma(MCS, wf, MONE) + f"\nL_cs{u}:\n"
            for rt in range(2):
                sl = S.add_slot((cs if rt == 1 else "") + mfma(MACC + (rt*4 + ct)*4, wf, rX(rt, ks), "0" if ks == 0 else None), [(ks, ct)])
                if ks == 5 and ct == 0 and rt == 0: S.add_fill(sl, poll_issue())
                if ks == 9 and ct == 0 and rt == 0:
                    S.add_pre(sl, f"s_cmp_lg_u32 s{sW}, 0\ns_cbranch_scc1 L_m_np\ns_waitcnt vmcnt(0)\n" + poll_check(2) + "\nL_m_np:\ns_barrier\n" + kv_first("b"))
                if ks == 1 and ct == 0:
                    r = rX(rt, 0)
                    S.add_fill(sl, f"v_and_b32 v{t}, 15, v{vLANE}\nv_lshlrev_b32 v{t}, 3, v{t}\ns_lshl_b32 s{sT}, s{sRt0}, 7\ns_add_u32 s{sT}, s{sT}, {STAT}\n"
                                   f"buffer_load_dwordx2 v[{r}:{r+1}], v{t}, s[{SWS}:{SWS+3}], s{sT} offen offset:{rt*128}{LD}")
                if ks == 2 and rt == 0:
                    r = rX(0, 1) + 2*ct
                    S.add_fill(sl, f"v_lshrrev_b32 v{t+1}, 4, v{vLANE}\nv_lshlrev_b32 v{t+1}, 3, v{t+1}\ns_lshl_b32 s{sT}, s{sC1}, 7\n"
                                   f"buffer_load_dwordx2 v[{r}:{r+1}], v{t+1}, s[{SB1}:{SB1+3}], s{sT} offen offset:{ct*32}")
    for l in S.build()[0]: a(l)
    a(f"v_lshrrev_b32 v{t}, 4, v{vLANE}\nv_lshlrev_b32 v{t}, 4, v{t}\ns_lshl_b32 s{sT}, s{sW}, 6\ns_add_u32 s{sT}, s{sT}, 131072\nv_add_u32 v{t+1}, s{sT}, v{t}\nv_add_u32 v{t}, 131072, v{t}")
    a("s_nop 3")
    a(f"ds_write_b128 v{t+1}, v[{MCS}:{MCS+3}]")
    a(f"s_cmp_eq_u32 s{sG}, 0\ns_cbranch_scc1 L_m_w0\ns_waitcnt vmcnt(8)\ns_branch L_m_w1\nL_m_w0:\ns_waitcnt vmcnt(0)\nL_m_w1:")
    a("s_waitcnt lgkmcnt(0)\ns_barrier")
    a(kv_second("b"))
    C = 96
    for i in range(8): a(f"ds_read_b128 v[{C+4*i}:{C+4*i+3}], v{t} offset:{i*64}")
    k = -2.0 * 0.7978845608028654 * 1.4426950408889634
    a(f"s_mov_b32 s100, {fb(k*0.044715)}\nv_mov_b32 v{t+2}, {fb(k)}")
    Bq = rX(0, 1); Bf = 80
    for ct in range(4):
        a(f"v_lshlrev_b32 v{Bf+4*ct}, 16, v{Bq+2*ct}\nv_and_b32 v{Bf+1+4*ct}, 0xffff0000, v{Bq+2*ct}")
        a(f"v_lshlrev_b32 v{Bf+2+4*ct}, 16, v{Bq+1+2*ct}\nv_and_b32 v{Bf+3+4*ct}, 0xffff0000, v{Bq+1+2*ct}")
    a("s_waitcnt lgkmcnt(0)")
    for i in range(16): a(f"v_add_f32 v{C+i}, v{C+i}, v{C+16+i}")
    for q in range(8):
        rt, ct = q >> 2, q & 3
        r0 = MACC + 4*q; T = 0 + (q & 1)*4; m2 = rX(rt, 0); r2 = m2 + 1
        for j in range(4): a(f"v_fma_f32 v{r0+j}, -v{m2}, v{C+4*ct+j}, v{r0+j}")
        for j in range(4): a(f"v_fma_f32 v{r0+j}, v{r0+j}, v{r2}, v{Bf+4*ct+j}")
        for j in range(4): a(f"v_mul_f32 v{T+j}, v{r0+j}, v{r0+j}")
        for j in range(4): a(f"v_fma_f32 v{T+j}, v{T+j}, s100, v{t+2}")
        for j in range(4): a(f"v_mul_f32 v{T+j}, v{T+j}, v{r0+j}")
        for j in range(4): a(f"v_exp_f32 v{T+j}, v{T+j}")
        for j in range(4): a(f"v_add_f32 v{T+j}, 1.0, v{T+j}")
        for j in range(4): a(f"v_rcp_f32 v{T+j}, v{T+j}")
        for j in range(4): a(f"v_mul_f32 v{r0+j}, v{r0+j}, v{T+j}")
    a(f"s_mul_i32 s100, s{sRt0}, {AFS}\ns_lshl_b32 s{sT}, s{sC1}, 11\ns_add_u32 s100, s100, s{sT}\ns_add_u32 s100, s100, {AF + 128*1024}")
    a(f"s_add_u32 s101, s100, {AFS}")
    pack_store(a, MACC, MACC+4, 192, SWS, 100, 0, ST)
    pack_store(a, MACC+16, MACC+20, 196, SWS, 101, 0, ST)
    a(f"s_cmp_ge_u32 s{sC1}, 21\ns_cbranch_scc1 L_mlp1_done")
    pack_store(a, MACC+8, MACC+12, 200, SWS, 100, 1024, ST)
    pack_store(a, MACC+24, MACC+28, 204, SWS, 101, 1024, ST)
    a.label("L_mlp1_done")

def late_touch():
    t = f"s_cmp_eq_u32 s{sG}, 0\ns_cbranch_scc1 L_lt9\ns_cmp_lg_u32 s79, 0\ns_cbranch_scc1 L_lt9\ns_add_u32 s{sT}, s{sIt}, 6\ns_cmp_lt_u32 s{sT}, s{sNW}\ns_cbranch_scc1 L_lt9\n"
    t += f"s_mov_b32 s79, 1\nv_lshlrev_b32 v0, 7, v{vLANE}\n"
    t += f"s_and_b32 s64, s2, 3\ns_lshr_b32 s65, s2, 3\ns_lshl_b32 s66, s64, 20\ns_lshl_b32 s67, s65, 15\ns_add_u32 s66, s66, s67\ns_lshl_b32 s67, s{sRQ}, 13\ns_add_u32 s66, s66, s67\n"
    t += f"buffer_load_dword v1, v0, s[{SWO}:{SWO+3}], s66 offen\n"
    t += f"s_cmp_ge_u32 s{sRQ}, 2\ns_cbranch_scc1 L_lt9\n"
    t += f"s_mul_i32 s66, s64, {11*32768}\ns_lshl_b32 s67, s65, 1\ns_add_u32 s67, s67, s{sRQ}\ns_cmp_ge_u32 s67, 44\ns_cbranch_scc1 L_lt9\ns_lshl_b32 s67, s67, 13\ns_add_u32 s66, s66, s67\n"
    t += f"buffer_load_dword v2, v0, s[{SW2}:{SW2+3}], s66 offen\n"
    t += "L_lt9:"
    return t

def fused(a):
    phase1_f(a)
    qproj_f(a)
    stamp(a, 5)
    mlp1_f(a)
    stamp(a, 6)
    import phc
    phc.prefill(a)
    import att2
    att2.attention2(a, ST, LD, hook0=publish(3), idle_hook=late_touch())
    a("s_waitcnt vmcnt(0)\ns_barrier")
    a(publish(4))
    stamp(a, 10)
    import phc
    phc.phase_c(a, dict(publish=publish, poll_one=poll_one, vPA=vPA, stamp_txt=lambda x, i: stamp_txt(x, i, True)))

def build1(fn):
    head = open("cdna_kernels/" + NAME + ".s.ref").read().split("; Override launch")[0]
    name = NAME + "_kernel"
    out = head + "; @launch grid=(256,1,1) block=(512,1,1) lds=163840\n"
    out += '.amdgcn_target "amdgcn-amd-amdhsa--gfx950"\n.text\n'
    a = Asm()
    kernel_header(a, name)
    setup(a, "L_end")
    fn(a)
    a.label("L_end")
    a("s_endpgm")
    t = a.text()
    for p in lint(t): print("LINT", p, file=sys.stderr)
    out += t + '.section .rodata,"a"\n.p2align 6\n' + descriptor(name)
    return out

if __name__ == "__main__":
    open(sys.argv[1], "w").write(build1(fused))
```

```python
from gen3 import *
EX = 64*MB
def prefill(a, sIt):
    a(f"s_and_b32 s64, s2, 3\ns_bfe_u32 s65, s2, 0x10002\ns_lshl_b32 s65, s65, 3\ns_bfe_u32 s{sT}, s2, 0x30003\ns_add_u32 s65, s65, s{sT}\ns_lshr_b32 s66, s2, 6")
    a(f"s_lshl_b32 s65, s65, 2\ns_add_u32 s65, s65, s66\ns_lshl_b32 s65, s65, 18\ns_add_u32 s65, s65, {EX}")
    a(f"s_lshl_b32 s66, s64, 14\ns_add_u32 s65, s65, s66\ns_and_b32 s66, s{sW}, 3\ns_lshl_b32 s66, s66, 12\ns_add_u32 s65, s65, s66")
    for r in range(248, 252): a(f"v_mov_b32 v{r}, -1")
    a(f"s_lshr_b32 s{sT}, s{sIt}, 1\ns_add_u32 s{sT}, s{sT}, s64\ns_add_u32 s{sT}, s{sT}, 3\ns_and_b32 s{sT}, s{sT}, 3\ns_lshl_b32 s{sT}, s{sT}, 16\ns_add_u32 s{sT}, s{sT}, s65")
    for j in range(4):
        a(f"buffer_store_dwordx4 v[248:251], v{vL16}, s[{SWS}:{SWS+3}], s{sT} offen offset:{j*1024} sc1")

def phase_c(a, F):
    LD, ST = " sc1", " sc1"
    publish, poll_one, vPA = F['publish'], F['poll_one'], F['vPA']
    sSig, sRb, sCb, sAs, sWs, sSlot, sLw, sIdx, sRd = 56, 57, 58, 59, 60, 61, 62, 63, 96
    ACC, FA, NA, FW, NW = 0, 32, 8, 64, 4
    vA0, vWb, vAa, vWa, vDq = 224, 225, 228, 229, 232
    t = 236
    stamp(a, 11)
    a(f"s_and_b32 s{sSig}, s2, 3\ns_bfe_u32 s{sRb}, s2, 0x10002\ns_lshl_b32 s{sRb}, s{sRb}, 3\ns_bfe_u32 s{sT}, s2, 0x30003\ns_add_u32 s{sRb}, s{sRb}, s{sT}\ns_lshr_b32 s{sCb}, s2, 6")
    a(f"s_sub_u32 s100, 15, s{sRb}\ns_min_u32 s100, s100, s{sRb}")
    a(f"v_and_b32 v{t}, 31, v{vLANE}\nv_lshl_add_u32 v{vPA}, v{t}, 3, s100")
    a(f"s_and_b32 s101, s2, 4\ns_lshl_b32 s101, s101, 5\ns_bfe_u32 s{sT}, s2, 0x20003\ns_lshl_b32 s{sT}, s{sT}, 3\ns_add_u32 s101, s101, s{sT}\ns_lshr_b32 s{sT}, s2, 5\ns_add_u32 s101, s101, s{sT}")
    a(f"v_and_b32 v{t}, 3, v{vLANE}\nv_lshl_add_u32 v{t}, v{t}, 5, s101\nv_cmp_gt_u32 vcc, 32, v{vLANE}\ns_nop 1\nv_cndmask_b32 v{vPA}, v{t}, v{vPA}, vcc\n" + F['flag_addr']())
    a(poll_one(3))
    w_dma_voff(a, vDq, 1024, t)
    a(f"s_and_b32 s{sT}, s{sW}, 1\ns_lshl_b32 s{sT}, s{sT}, 13\nv_add_u32 v{vA0}, s{sT}, v{vL16}")
    a(f"v_lshrrev_b32 v{t}, 2, v{vLANE}\nv_lshlrev_b32 v{t+1}, 8, v{t}\nv_and_b32 v{t+2}, 3, v{vLANE}\nv_lshl_add_u32 v{t+1}, v{t+2}, 3, v{t+1}\nv_add_u32 v{t+1}, 16384, v{t+1}")
    a(f"v_and_b32 v{t}, 7, v{t}\ns_and_b32 s{sT}, s{sW}, 6")
    a(f"v_xor_b32 v{t+2}, s{sT}, v{t}\nv_lshl_add_u32 v{vWb}, v{t+2}, 5, v{t+1}\nv_xor_b32 v{vWb+1}, 32, v{vWb}")
    a(f"s_lshl_b32 s97, s{sRb}, 3\ns_add_u32 s97, s97, s{sW}\ns_mul_i32 s97, s97, {AFS}\ns_add_u32 s97, s97, {AF}")
    a(f"s_lshl_b32 s98, s{sW}, 13\ns_lshl_b32 s{sT}, s{sCb}, 8\ns_add_u32 s98, s98, s{sT}")
    a(f"s_lshl_b32 s{sLw}, s{sW}, 11")
    a(f"s_mul_i32 s99, s{sSig}, 11")
    NST = 22
    def dma(st):
        sl = (st % 5) * 32768
        o = []
        if st < 6:
            pre = (f"s_add_u32 s{sIdx}, s99, {2*st}\ns_lshl_b32 s{sAs}, s{sIdx}, 10\ns_add_u32 s{sAs}, s{sAs}, s97\ns_add_u32 s{sAs}, s{sAs}, {128*1024}\n"
                   f"s_lshl_b32 s{sWs}, s{sIdx}, 15\ns_add_u32 s{sWs}, s{sWs}, s98\n")
            srdw = SW2
        else:
            pre = (f"s_lshl_b32 s{sIdx}, s{sCb}, 3\ns_add_u32 s{sIdx}, s{sIdx}, {2*(st-6)}\ns_and_b32 s{sIdx}, s{sIdx}, 31\ns_lshl_b32 s{sAs}, s{sSig}, 5\ns_add_u32 s{sIdx}, s{sIdx}, s{sAs}\ns_lshl_b32 s{sAs}, s{sIdx}, 10\ns_add_u32 s{sAs}, s{sAs}, s97\n"
                   f"s_lshl_b32 s{sWs}, s{sIdx}, 15\ns_add_u32 s{sWs}, s{sWs}, s98\n")
            srdw = SWO
        o.append(pre + f"s_add_u32 m0, s{sLw}, {sl + 16384}\ns_add_u32 s{sT}, s{sWs}, {4096 - 1024}\n"
                 f"buffer_load_dwordx4 v{vDq}, s[{srdw}:{srdw+3}], s{sWs} offen lds")
        o.append(f"buffer_load_dwordx4 v{vDq+1}, s[{srdw}:{srdw+3}], s{sT} offen offset:1024 lds")
        if st == 5:
            o.append(f"s_cmp_lt_u32 s{sSig}, 3\ns_cselect_b32 s{sAs}, s{sAs}, 0x40000000\ns_add_u32 m0, s{sLw}, {sl}\ns_mov_b32 s{sT}, 0x40000000\n"
                     f"buffer_load_dwordx4 v{vL16}, s[{SWS}:{SWS+3}], s{sAs} offen{LD} lds")
            o.append(f"buffer_load_dwordx4 v{vL16}, s[{SWS}:{SWS+3}], s{sT} offen offset:1024{LD} lds")
        else:
            pl = ""
            o.append(pl + f"s_add_u32 m0, s{sLw}, {sl}\ns_nop 0\n"
                     f"buffer_load_dwordx4 v{vL16}, s[{SWS}:{SWS+3}], s{sAs} offen{LD} lds")
            o.append(f"buffer_load_dwordx4 v{vL16}, s[{SWS}:{SWS+3}], s{sAs} offen offset:1024{LD} lds")
        return o
    a("s_barrier")
    for st in range(4):
        for o in dma(st): a(o)
    a("s_waitcnt vmcnt(12)\ns_barrier")
    S = Sched(lookahead=10, per_slot=2)
    na = nw = 0
    for st in range(NST):
        sl = (st % 5) * 32768
        S.add_sync(f"v_add_u32 v{vAa}, {sl}, v{vA0}\nv_add_u32 v{vWa}, {sl}, v{vWb}\nv_add_u32 v{vWa+1}, {sl}, v{vWb+1}", drain=False)
        base = len(S.slots)
        for ks in range(2):
            wf = []; af = []
            for ct in range(2):
                f = FW + (nw % NW)*4; nw += 1; wf.append(f)
            for rt in range(4):
                f = FA + (na % NA)*4; na += 1; af.append(f)
            def ldw(ct):
                S.add_load(('W', st, ks, ct), [f"ds_read_b64_tr_b16 v[{wf[ct]}:{wf[ct]+1}], v{vWa+ct} offset:{ks*8192}",
                                               f"ds_read_b64_tr_b16 v[{wf[ct]+2}:{wf[ct]+3}], v{vWa+ct} offset:{ks*8192+4096}"], wf[ct])
            def lda(rt):
                S.add_load(('A', st, ks, rt), [f"ds_read_b128 v[{af[rt]}:{af[rt]+3}], v{vAa} offset:{(rt*2+ks)*1024}"], af[rt])
            ldw(0); lda(0); ldw(1); lda(1); lda(2); lda(3)
            for rt in range(4):
                for ct in range(2):
                    S.add_slot(mfma(ACC + (rt*2+ct)*4, wf[ct], af[rt], "0" if st == 0 and ks == 0 else None), [('W', st, ks, ct), ('A', st, ks, rt)])
        if st + 1 < NST:
            left = min(NST - 1, st + 3) - (st + 1)
            pl = ""
            if st == 2:
                pl = (f"s_lshl_b32 s{sT}, s{sSig}, 6\ns_add_u32 s{sT}, s{sT}, s100\nv_and_b32 v{vPA}, 7, v{vLANE}\nv_lshl_add_u32 v{vPA}, v{vPA}, 3, s{sT}\n" + F['flag_addr']() + "\n" +
                      poll_one(4) + "\n")
            stx = F['stamp_txt'](None, 16 + st // 2) if (PROF == 5 and st % 2 == 0) else ""
            S.add_pre(base + 2, pl + f"s_waitcnt vmcnt({4*left})\ns_barrier\n" + stx)
            if st + 4 < NST:
                for i, o in enumerate(dma(st + 4)):
                    S.add_fill(base + 2 + i, o)
    for l in S.build()[0]: a(l)
    stamp(a, 12)
    a(publish(5))
    a(f"s_lshl_b32 s97, s{sRb}, 2\ns_add_u32 s97, s97, s{sCb}\ns_lshl_b32 s97, s97, 18\ns_add_u32 s97, s97, {EX}")
    a(f"s_lshr_b32 s98, s{sW}, 1\ns_cmp_eq_u32 s98, s{sSig}\ns_cbranch_scc1 L_c_own")
    a(f"s_lshl_b32 s{sT}, s{sSig}, 16\ns_add_u32 s99, s97, s{sT}\ns_lshl_b32 s{sT}, s{sW}, 13\ns_add_u32 s99, s99, s{sT}\ns_add_u32 s101, s99, 4096")
    for q in range(8):
        a(f"buffer_store_dwordx4 v[{ACC+4*q}:{ACC+4*q+3}], v{vL16}, s[{SWS}:{SWS+3}], s{99 if q < 4 else 101} offen offset:{(q&3)*1024}{ST}")
    a("s_branch L_c_st")
    a.label("L_c_own")
    a(f"v_add_u32 v{t}, {4*32768}, v{vA0}\ns_nop 3")
    for q in range(8):
        a(f"ds_write_b128 v{t}, v[{ACC+4*q}:{ACC+4*q+3}] offset:{q*1024}")
    a.label("L_c_st")
    a(f"v_and_b32 v{t}, 15, v{vLANE}\nv_lshrrev_b32 v{t+1}, 4, v{vLANE}\nv_lshlrev_b32 v{t+2}, 9, v{t+1}\nv_lshl_add_u32 v{t+2}, v{t}, 4, v{t+2}")
    a(f"v_lshlrev_b32 v{t+3}, 10, v{t}\nv_lshl_add_u32 v{t+3}, v{t+1}, 4, v{t+3}\nv_lshlrev_b32 v{t+1}, 4, v{t+1}")
    a(f"s_lshl_b32 s98, s{sRb}, 7\ns_lshl_b32 s{sT}, s{sW}, 4\ns_add_u32 s98, s98, s{sT}\ns_lshl_b32 s98, s98, 10\ns_lshl_b32 s99, s{sCb}, 8\ns_lshl_b32 s{sT}, s{sSig}, 6\ns_add_u32 s99, s99, s{sT}\ns_add_u32 s98, s98, s99")
    a(f"buffer_load_dwordx4 v[100:103], v{t+3}, s[{SX}:{SX+3}], s98 offen")
    a(f"buffer_load_dwordx4 v[104:107], v{t+1}, s[{SB2}:{SB2+3}], s99 offen")
    a(f"s_and_b32 s101, s2, 4\ns_lshl_b32 s101, s101, 5\ns_bfe_u32 s{sT}, s2, 0x20003\ns_lshl_b32 s{sT}, s{sT}, 3\ns_add_u32 s101, s101, s{sT}\ns_lshr_b32 s{sT}, s2, 5\ns_add_u32 s101, s101, s{sT}")
    a(f"v_and_b32 v{vPA}, 3, v{vLANE}\nv_max_u32 v{vPA}, 1, v{vPA}\nv_add_u32 v{vPA}, s{sSig}, v{vPA}\nv_and_b32 v{vPA}, 3, v{vPA}\nv_lshl_add_u32 v{vPA}, v{vPA}, 5, s101\n" + F['flag_addr']())
    a(f"s_lshl_b32 s99, s{sSig}, 14\ns_lshl_b32 s{sT}, s{sW}, 11\ns_add_u32 s99, s99, s{sT}\ns_add_u32 s97, s97, s99")
    a(f"s_add_u32 s{sT}, s{sT}, {4*32768}\nv_add_u32 v{t}, s{sT}, v{t+2}")
    a(f"s_lshl_b32 s99, s{sSig}, 1\ns_add_u32 s99, s99, 1")
    a(poll_one(5, "s99") + "\ns_waitcnt lgkmcnt(0)\ns_barrier")
    if PROF == 5: a(F['stamp_txt'](None, 29))
    a(f"ds_read_b128 v[32:35], v{t}\nds_read_b128 v[36:39], v{t} offset:256")
    a("s_mov_b32 s101, 0")
    a.label("L_c_rd")
    for i in range(1, 4):
        a(f"s_add_u32 s{sT}, s{sSig}, {i}\ns_and_b32 s{sT}, s{sT}, 3\ns_lshl_b32 s{sT}, s{sT}, 16\ns_add_u32 s{sT}, s{sT}, s97")
        a(f"buffer_load_dwordx4 v[{32+8*i}:{35+8*i}], v{t+2}, s[{SWS}:{SWS+3}], s{sT} offen{LD}")
        a(f"buffer_load_dwordx4 v[{36+8*i}:{39+8*i}], v{t+2}, s[{SWS}:{SWS+3}], s{sT} offen offset:256{LD}")
    a("s_waitcnt vmcnt(0)")
    a("v_max_u32 v64, v40, v41")
    for i in range(42, 64, 2): a(f"v_max3_u32 v64, v64, v{i}, v{i+1}")
    a("v_cmp_eq_u32 vcc, -1, v64\ns_cbranch_vccz L_c_ok")
    a("s_add_u32 s101, s101, 1\ns_cmp_gt_u32 s101, 0x20000\ns_cbranch_scc1 L_c_ok\ns_sleep 8\ns_branch L_c_rd")
    a.label("L_c_ok")
    unpack8(a, 100, 108); unpack8(a, 104, 116)
    for i in range(8): a(f"v_add_f32 v{108+i}, v{108+i}, v{116+i}")
    a("s_waitcnt lgkmcnt(0)")
    for k in range(4):
        for i in range(8): a(f"v_add_f32 v{108+i}, v{108+i}, v{32+8*k+i}")
    for i in range(4): a(f"v_cvt_pk_bf16_f32 v{100+i}, v{108+2*i}, v{109+2*i}")
    a(f"buffer_store_dwordx4 v[100:103], v{t+3}, s[{SOUT}:{SOUT+3}], s98 offen")
    if PROF: a("s_waitcnt vmcnt(0)")
    stamp(a, 13)
```

```python
import fused2
from fused2 import *
import att2, att3, phc

SLOT = [0, 65536, 114688, 0]
def rXm(rt, ks): return 64 + ((ks % 6)*2 + rt)*4
AQ, A1, CS, WR, NWR, vD1, ONE = 112, 120, 124, 224, 5, 246, 248
QACC, MACC3 = 128, 192

def p2_dma(stg, i):
    if i < 4:
        return (f"s_add_u32 m0, s{sNlds}, {SLOT[stg] + i*1024}\ns_add_u32 s{sT}, s{sJ}, {(stg*128 + i*4)*8192}\n"
                f"buffer_load_dwordx4 v{vDW+((i>>1)&1)}, s[{SWQ}:{SWQ+3}], s{sT} offen lds ;@vm d{stg}")
    j = i - 4
    return (f"s_add_u32 m0, s85, {SLOT[stg] + 32768 + j*1024}\ns_add_u32 s{sT}, s88, {(stg*128 + j*8)*2752}\n"
            f"buffer_load_dwordx4 v{vD1+j}, s[{SW1}:{SW1+3}], s{sT} offen lds ;@vm d{stg}")

def x_load3(rt, ks):
    r = rXm(rt, ks)
    return (f"s_add_u32 s{sT}, s{sXn}, {rt*16384 + (ks//4)*4096}\n"
            f"buffer_load_dwordx4 v[{r}:{r+3}], v{vL16}, s[{SWS}:{SWS+3}], s{sT} offen offset:{(ks%4)*1024}{LD} ;@vm x{ks}")

def with_regs(txt, m):
    for k, v in m.items(): txt = re.sub(rf"\bv{k}\b", f"v{v}", txt)
    return txt
LOW = {248: 0, 249: 1, 250: 2, 251: 3}

def p2_merged(a):
    a(f"s_lshl_b32 s64, s{sH}, 19\ns_lshl_b32 s{sT}, s{sP}, 16\ns_add_u32 s64, s64, s{sT}\ns_and_b32 s{sT}, s{sW}, 1\ns_lshl_b32 s{sT}, s{sT}, 15\ns_add_u32 s64, s64, s{sT}")
    a(f"s_bfe_u32 s66, s{sW}, 0x10001\ns_lshl_b32 s67, s66, 12\ns_lshl_b32 s66, s66, 11\ns_add_u32 s66, s66, {KF}\ns_add_u32 s67, s67, {VF}")
    a(f"s_cmp_lt_u32 s{sW}, 4\ns_cselect_b32 s66, s66, s67\ns_cselect_b32 s65, 2, 1\ns_lshl_b32 s65, s65, 11\ns_add_u32 s64, s64, s66\ns_add_u32 s65, s65, s64")
    for j in range(16):
        for i in range(4): a(f"v_cvt_pk_bf16_f32 v{4*j+i}, v{8*j+2*i}, v{8*j+2*i+1}")
    lines = []
    for ks in range(5):
        for rt in range(2): lines.append(x_load3(rt, ks))
    b = Asm()
    att_scalars(b)
    b("s_mov_b32 s84, 0x10000\ns_add_u32 s92, s92, s84\ns_mov_b32 s100, 0")
    t = 192
    w_read_addr(b, AQ, 8, 100, 100, t)
    b(f"v_lshrrev_b32 v{t}, 4, v{vLANE}\nv_bfe_u32 v{t+1}, v{vLANE}, 2, 2\nv_lshl_add_u32 v{t+2}, v{t}, 3, v{t+1}\nv_lshlrev_b32 v{t+2}, 7, v{t+2}")
    b(f"v_and_b32 v{t+3}, 3, v{vLANE}\nv_lshl_add_u32 v{t+2}, v{t+3}, 3, v{t+2}\nv_add_u32 v{t+2}, 32768, v{t+2}")
    b(f"v_and_b32 v{t}, 1, v{t}\nv_lshrrev_b32 v{t+1}, 1, v{t+1}\nv_lshl_or_b32 v{t}, v{t}, 1, v{t+1}")
    for ct in range(4):
        b(f"v_xor_b32 v{t+3}, {ct}, v{t}\nv_lshl_add_u32 v{A1+ct}, v{t+3}, 5, v{t+2}")
    for r in range(CS, CS+4): b(f"v_mov_b32 v{r}, 0")
    for r in range(ONE, ONE+4): b(f"v_mov_b32 v{r}, 0x3f803f80")
    lines += [l.strip() for l in b.lines]
    lines += stamp_txt(None, 24).split("\n")
    K = 24
    fills = {}
    def F(sl, txt): fills.setdefault(sl, []).append(txt)
    for ks in range(11):
        F(K*ks + 5, x_load3(0, ks+5)); F(K*ks + 17, x_load3(1, ks+5))
    for i in range(16): F(int(i*16.2) + 2, kv_store(i))
    for i in range(6): F(1 + 8*i + 3, p2_dma(2, i))
    ST_, BI_ = 8, 12
    F(K*6 + 1, f"v_and_b32 v4, 15, v{vLANE}\nv_lshlrev_b32 v4, 3, v4\ns_lshl_b32 s{sT}, s{sRt0}, 7\ns_add_u32 s{sT}, s{sT}, {STAT}\n"
               f"buffer_load_dwordx2 v[{ST_}:{ST_+1}], v4, s[{SWS}:{SWS+3}], s{sT} offen{LD} ;@vm m\n"
               f"buffer_load_dwordx2 v[{ST_+2}:{ST_+3}], v4, s[{SWS}:{SWS+3}], s{sT} offen offset:128{LD} ;@vm m")
    F(K*7 + 1, f"v_lshrrev_b32 v5, 4, v{vLANE}\nv_lshlrev_b32 v5, 3, v5\ns_lshl_b32 s{sT}, s{sC1}, 7\n" +
               "\n".join(f"buffer_load_dwordx2 v[{BI_+2*ct}:{BI_+2*ct+1}], v5, s[{SB1}:{SB1+3}], s{sT} offen offset:{ct*32} ;@vm m" for ct in range(4)))
    F(K*13 + 1, with_regs(f"v_and_b32 v{vPA}, 7, v{vLANE}\nv_max_u32 v{vPA}, 1, v{vPA}\nv_add_u32 v{vPA}, s{sP}, v{vPA}\nv_and_b32 v{vPA}, 7, v{vPA}\ns_lshl_b32 s{sT}, s{sH}, 3\nv_add_u32 v{vPA}, s{sT}, v{vPA}\n" + flag_addr(), LOW))
    F(K*15 + 1, with_regs(f"s_cmp_lg_u32 s{sW}, 0\ns_cbranch_scc1 L_p2_ni\n" + poll_issue() + "\nL_p2_ni:", LOW))
    S = Sched(lookahead=8, per_slot=2)
    n = 0
    for ks in range(16):
        stg, kk = ks // 4, ks % 4
        if kk == 0 and stg > 0:
            d = SLOT[stg] - SLOT[stg-1]
            upd = "\n".join(f"v_add_u32 v{r}, {d & 0xffffffff}, v{r}" for r in range(AQ, AQ+12))
            sy = {1: "s_barrier\n", 2: "@vmwait d2\ns_barrier\n", 3: "@vmwait st\ns_barrier\n" + with_regs(publish(2), LOW) + "\n"}[stg]
            S.add_sync(stamp_txt(None, 24 + stg) + sy + upd, drain=True, delay=2)
            if stg == 1:
                for i in range(6): F(K*4 + 2 + 4*i, p2_dma(3, i))
        for c in range(12):
            wf = WR + (n % NWR)*4; n += 1
            if c < 8:
                S.add_load((ks, c), [f"ds_read_b64_tr_b16 v[{wf}:{wf+1}], v{AQ+c} offset:{kk*8192}",
                                     f"ds_read_b64_tr_b16 v[{wf+2}:{wf+3}], v{AQ+c} offset:{kk*8192+1024}"], wf)
            else:
                S.add_load((ks, c), [f"ds_read_b64_tr_b16 v[{wf}:{wf+1}], v{A1+c-8} offset:{kk*4096}",
                                     f"ds_read_b64_tr_b16 v[{wf+2}:{wf+3}], v{A1+c-8} offset:{kk*4096+512}"], wf)
            for rt in range(2):
                acc = QACC + (rt*8 + c)*4 if c < 8 else MACC3 + (rt*4 + c-8)*4
                pre = ""
                if c >= 8 and rt == 1:
                    u = uid()
                    pre = f"s_cmp_eq_u32 s{sW}, {(ks>>3)*4+c-8}\ns_cbranch_scc0 L_cs{u}\n" + mfma(CS, wf, ONE) + f"\nL_cs{u}:\n"
                sl = S.add_slot(pre + mfma(acc, wf, rXm(rt, ks), "0" if ks == 0 else None), [(ks, c)])
                if c == 0 and rt == 0: S.add_pre(sl, f"@vmwait x{ks}")
    for sl, fl in fills.items():
        for f in fl: S.add_fill(sl, f)
    lines += S.build()[0]
    for l in resolve_vm(lines): a(l)
    a(stamp_txt(None, 28))
    t = 20
    a(f"v_lshrrev_b32 v{t}, 4, v{vLANE}\nv_lshlrev_b32 v{t}, 4, v{t}\ns_lshl_b32 s{sT}, s{sW}, 6\ns_add_u32 s{sT}, s{sT}, 131072\nv_add_u32 v{t+1}, s{sT}, v{t}\nv_add_u32 v{t}, 131072, v{t}")
    a("s_nop 3")
    a(f"ds_write_b128 v{t+1}, v[{CS}:{CS+3}]")
    a(f"s_waitcnt vmcnt(0) lgkmcnt(0)\ns_cmp_lg_u32 s{sW}, 0\ns_cbranch_scc1 L_p2_np\n" + with_regs(poll_check(2), LOW) + "\nL_p2_np:\ns_barrier")
    a(stamp_txt(None, 29))
    a(kv_first("a") + "\n" + kv_second("a"))
    C = 64
    for i in range(8): a(f"ds_read_b128 v[{C+4*i}:{C+4*i+3}], v{t} offset:{i*64}")
    a("s_mov_b32 s100, 0x3e0293ee")
    for j in range(8):
        s, d = QACC + 8*j, QACC + 4*j
        for i in range(8): a(f"v_mul_f32 v{s+i}, s100, v{s+i}")
        for i in range(4): a(f"v_cvt_pk_bf16_f32 v{d+i}, v{s+2*i}, v{s+2*i+1}")
    stamp(a, 5)
    a(f"s_cmp_eq_u32 s{sHasM}, 0\ns_cbranch_scc1 L_p2_nm")
    k = -2.0 * 0.7978845608028654 * 1.4426950408889634
    a(f"s_mov_b32 s100, {fb(k*0.044715)}\nv_mov_b32 v{t+2}, {fb(k)}")
    Bf = 96
    for ct in range(4):
        a(f"v_lshlrev_b32 v{Bf+4*ct}, 16, v{BI_+2*ct}\nv_and_b32 v{Bf+1+4*ct}, 0xffff0000, v{BI_+2*ct}")
        a(f"v_lshlrev_b32 v{Bf+2+4*ct}, 16, v{BI_+1+2*ct}\nv_and_b32 v{Bf+3+4*ct}, 0xffff0000, v{BI_+1+2*ct}")
    a("s_waitcnt lgkmcnt(0)")
    for i in range(16): a(f"v_add_f32 v{C+i}, v{C+i}, v{C+16+i}")
    for q in range(8):
        rt, ct = q >> 2, q & 3
        r0 = MACC3 + 4*q; T = 24 + (q & 1)*4; m2 = ST_ + 2*rt; r2 = m2 + 1
        for j in range(4): a(f"v_fma_f32 v{r0+j}, -v{m2}, v{C+4*ct+j}, v{r0+j}")
        for j in range(4): a(f"v_fma_f32 v{r0+j}, v{r0+j}, v{r2}, v{Bf+4*ct+j}")
        for j in range(4): a(f"v_mul_f32 v{T+j}, v{r0+j}, v{r0+j}")
        for j in range(4): a(f"v_fma_f32 v{T+j}, v{T+j}, s100, v{t+2}")
        for j in range(4): a(f"v_mul_f32 v{T+j}, v{T+j}, v{r0+j}")
        for j in range(4): a(f"v_exp_f32 v{T+j}, v{T+j}")
        for j in range(4): a(f"v_add_f32 v{T+j}, 1.0, v{T+j}")
        for j in range(4): a(f"v_rcp_f32 v{T+j}, v{T+j}")
        for j in range(4): a(f"v_mul_f32 v{r0+j}, v{r0+j}, v{T+j}")
    for i, (x, y) in enumerate(((0, 4), (16, 20), (8, 12), (24, 28))):
        tq = 176 + 4*i
        a(f"v_cvt_pk_bf16_f32 v{tq}, v{MACC3+x}, v{MACC3+x+1}\nv_cvt_pk_bf16_f32 v{tq+1}, v{MACC3+x+2}, v{MACC3+x+3}")
        a(f"v_cvt_pk_bf16_f32 v{tq+2}, v{MACC3+y}, v{MACC3+y+1}\nv_cvt_pk_bf16_f32 v{tq+3}, v{MACC3+y+2}, v{MACC3+y+3}")
    a.label("L_p2_nm")
    a(f"s_mul_i32 s66, s{sRt0}, {AFS}\ns_lshl_b32 s{sT}, s{sC1}, 11\ns_add_u32 s66, s66, s{sT}\ns_add_u32 s66, s66, {AF + 128*1024}")
    a(f"s_add_u32 s67, s66, {AFS}\ns_cmp_lt_u32 s{sC1}, 21\ns_cselect_b32 s68, s66, 0x40000000\ns_cselect_b32 s69, s67, 0x40000000")
    a(f"s_cmp_lt_u32 s{sC1}, 22\ns_cselect_b32 s66, s66, 0x40000000\ns_cselect_b32 s67, s67, 0x40000000")
    a("s_waitcnt vmcnt(12) lgkmcnt(0)\ns_barrier")

def h_stores():
    o = []
    for i, (sb, off) in enumerate(((66, 0), (67, 0), (68, 1024), (69, 1024))):
        o.append(f"buffer_store_dwordx4 v[{176+4*i}:{179+4*i}], v{vL16}, s[{SWS}:{SWS+3}], s{sb} offen offset:{off}{ST}")
    return o

def idle_post():
    b = Asm()
    b(f"s_cmp_eq_u32 s{sG}, 0\ns_cbranch_scc1 L_ip9")
    b(f"s_cmp_lg_u32 s78, 0\ns_cbranch_scc1 L_ip1\ns_cmp_lt_u32 s{sIt}, 5\ns_cbranch_scc1 L_ip1\ns_mov_b32 s78, 1")
    b(publish(3, 4))
    b.label("L_ip1")
    b(f"s_cmp_ge_u32 s{sP}, 4\ns_cbranch_scc1 L_ip9\ns_add_u32 s{sT}, s{sIt}, 9\ns_cmp_lg_u32 s{sT}, s{sNW}\ns_cbranch_scc1 L_ip9")
    b(f"v_lshlrev_b32 v0, 7, v{vLANE}")
    b(f"s_and_b32 s64, s2, 3\ns_lshr_b32 s65, s2, 3\ns_lshl_b32 s66, s64, 20\ns_lshl_b32 s67, s65, 16\ns_add_u32 s66, s66, s67\ns_lshl_b32 s67, s{sRQ}, 14\ns_add_u32 s66, s66, s67\ns_add_u32 s67, s66, 8192")
    b(f"buffer_load_dword v1, v0, s[{SWO}:{SWO+3}], s66 offen\nbuffer_load_dword v2, v0, s[{SWO}:{SWO+3}], s67 offen")
    b(f"s_mul_i32 s66, s64, {11*32768}\ns_lshl_b32 s67, s65, 2\ns_add_u32 s67, s67, s{sRQ}\ns_cmp_ge_u32 s67, 44\ns_cbranch_scc1 L_ip9\ns_lshl_b32 s67, s67, 13\ns_add_u32 s66, s66, s67")
    b(f"buffer_load_dword v3, v0, s[{SW2}:{SW2+3}], s66 offen")
    b.label("L_ip9")
    return b.text()

def fused3(a):
    fused2.wq_dma_override = lambda i, half: p2_dma(half, i).replace(" ;@vm", " ;") if i < 6 else None
    def extra(a):
        t = 236
        a(f"s_lshl_b32 s{sJ}, s{sW}, 17\ns_lshl_b32 s{sT}, s{sH}, 8\ns_add_u32 s{sJ}, s{sJ}, s{sT}")
        a(f"s_lshl_b32 s{sNlds}, s{sW}, 12\ns_lshl_b32 s85, s{sW}, 11")
        a(f"v_lshrrev_b32 v{t}, 3, v{vLANE}\nv_mul_u32_u24 v{t}, 2752, v{t}\nv_bfe_u32 v{t+1}, v{vLANE}, 1, 2\nv_bfe_u32 v{t+2}, v{vLANE}, 4, 1")
        a(f"v_xor_b32 v{t+1}, v{t+1}, v{t+2}\nv_lshlrev_b32 v{t+1}, 5, v{t+1}\nv_and_b32 v{t+2}, 1, v{vLANE}\nv_lshl_add_u32 v{t+1}, v{t+2}, 4, v{t+1}")
        a(f"v_add_u32 v{vD1}, v{t}, v{t+1}\nv_xor_b32 v{t+1}, 64, v{t+1}\nv_add_u32 v{vD1+1}, v{t}, v{t+1}")
        a(f"s_mul_i32 s88, s{sW}, {16*2752}\ns_lshl_b32 s{sT}, s{sC1}, 7\ns_add_u32 s88, s88, s{sT}\ns_cmp_lg_u32 s{sHasM}, 0\ns_cselect_b32 s88, s88, 0x40000000")
    def extra2(a):
        extra(a)
        a(f"s_and_b32 s80, s2, 3\ns_bfe_u32 s81, s2, 0x10002\ns_lshl_b32 s81, s81, 3\ns_bfe_u32 s{sT}, s2, 0x30003\ns_add_u32 s81, s81, s{sT}\ns_lshr_b32 s{sT}, s2, 6")
        a(f"s_lshl_b32 s81, s81, 2\ns_add_u32 s81, s81, s{sT}\ns_lshl_b32 s81, s81, 18\ns_add_u32 s81, s81, {phc.EX}")
        a(f"s_lshl_b32 s{sT}, s80, 14\ns_add_u32 s81, s81, s{sT}\ns_lshl_b32 s{sT}, s{sW}, 11\ns_add_u32 s81, s81, s{sT}")
        for r in range(240, 244): a(f"v_mov_b32 v{r}, -1")
        a("s_mov_b32 s82, 0x40000000")
        a(f"s_lshl_b32 s{sT}, s{sW}, 2\ns_lshr_b32 s83, 0x22223331, s{sT}\ns_and_b32 s83, s83, 15")
    fused2.p1_extra = extra2
    phase1_f(a)
    p2_merged(a)
    stamp(a, 6)
    att3.attention3(a, ST, LD, post_b=h_stores(), idle_post=idle_post())
    a("s_waitcnt vmcnt(0)\ns_barrier")
    a(publish(4))
    stamp(a, 10)
    phc.phase_c(a, dict(publish=publish, poll_one=poll_one, vPA=vPA, flag_addr=flag_addr, stamp_txt=lambda x, i: stamp_txt(x, i, True)))

if __name__ == "__main__":
    open(sys.argv[1], "w").write(build1(fused3))
```

```python
import sys, re, os, struct
from asmlib import *

NAME = "parallel_sum__compressed_kv_cla__mixer_channel_mlp__prompt"
MB = 1 << 20
XNF, STAT, FLG, KF, VF, AF, EX, STAMP = 0, 2*MB, 3*MB, 4*MB, 20*MB, 36*MB, 64*MB, 96*MB
AFS = 171 * 1024
WS_BYTES = 268435456
OOB = 0x40000000
PROF = int(os.environ.get("PROF", "0"))
SC = " sc1"
XE = int(os.environ.get("XE", "2"))
CHAIN = int(os.environ.get("CHAIN", "0"))
VB = int(os.environ.get("VB", "1"))
P1PRIO = int(os.environ.get("P1PRIO", "0"))
CSP = int(os.environ.get("CSP", "4"))
ASP = int(os.environ.get("ASP", "10"))
TW = int(os.environ.get("TW", "13"))
LATE = int(os.environ.get("LATE", "8"))
LIN = int(os.environ.get("LIN", "0"))
EARLY = int(os.environ.get("EARLY", "0"))
def fb(x): return "0x%08x" % struct.unpack("<I", struct.pack("<f", x))[0]

sW, sH, sP, sF = 3, 4, 5, 6
SX, SCKV, SWQ, SWKV, SWO, SW1, SW2, SB1, SB2, SOUT, SDBG, SWS = 8, 12, 16, 20, 24, 28, 32, 36, 40, 44, 48, 52
sCnt, sT, sRet, sSpin = 92, 93, 94, 90
vLANE, vL16 = 255, 254
vPA, vPV = 250, 249
_u = [0]
def uid():
    _u[0] += 1; return _u[0]

def stamp_txt(idx, level=1, dyn=None):
    if PROF == 0 or (level > 1 and PROF != level): return ""
    return ("s_memrealtime s[72:73]\ns_memtime s[74:75]\ns_waitcnt lgkmcnt(0)\nv_mov_b32 v252, s72\nv_mov_b32 v253, s74\n"
            f"s_lshl_b32 s75, s2, 3\ns_add_u32 s75, s75, s{sW}\ns_lshl_b32 s75, s75, 8\ns_add_u32 s75, s75, {STAMP + idx*8}\n"
            + (f"s_lshl_b32 s74, s{dyn}, 3\ns_sub_u32 s75, s75, s74\n" if dyn else "") +
            f"s_mov_b64 s[72:73], exec\ns_mov_b64 exec, 1\nbuffer_store_dwordx2 v[252:253], v{vLANE}, s[{SWS}:{SWS+3}], s75 offen\ns_mov_b64 exec, s[72:73]\n")
def stamp(a, idx, level=1): a(stamp_txt(idx, level))

def srd(a, d, ptr, nbytes):
    a(f"s_mov_b32 s{d}, s{ptr}\ns_and_b32 s{d+1}, s{ptr+1}, 0xffff\ns_mov_b32 s{d+2}, {nbytes}\ns_mov_b32 s{d+3}, 0x20000")

def resolve_vm(lines):
    out = []; ops = []
    for l in lines:
        for s in l.split("\n"):
            s = s.strip()
            if s.startswith("@vmwait"):
                tag = s.split()[1]
                idx = max(i for i, t in enumerate(ops) if t == tag)
                n = len(ops) - 1 - idx
                assert n <= 63
                out.append(f"s_waitcnt vmcnt({n})")
            else:
                m = re.search(r";@vm (\S+)", s)
                if m: ops.append(m.group(1))
                out.append(s)
    return out

def publish(val, wave=0):
    u = uid()
    if val == 1:
        st = f"v_mov_b32 v251, s{sF}\n", f"buffer_store_byte v248, v251, s[{SDBG}:{SDBG+3}], 0 offen sc1\n"
    else:
        st = f"s_lshl_b32 s{sT}, s{sF}, 7\ns_add_u32 s{sT}, s{sT}, {FLG}\nv_mov_b32 v251, s{sT}\n", f"buffer_store_dword v248, v251, s[{SWS}:{SWS+3}], 0 offen sc1\n"
    return (f"s_cmp_lg_u32 s{sW}, {wave}\ns_cbranch_scc1 L_pub{u}\nv_mov_b32 v248, {val}\n" + st[0] +
            "s_mov_b64 s[72:73], exec\ns_mov_b64 exec, 1\n" + st[1] + f"s_mov_b64 exec, s[72:73]\nL_pub{u}:")
def flag_addr(): return f"v_lshlrev_b32 v{vPA}, 7, v{vPA}\nv_add_u32 v{vPA}, {FLG}, v{vPA}"
def poll_issue(): return f"buffer_load_dword v{vPV}, v{vPA}, s[{SWS}:{SWS+3}], 0 offen sc1"
def poll_check(thr):
    u = uid()
    return (f"s_mov_b32 s{sSpin}, 0\nL_pl{u}:\nv_cmp_gt_u32 vcc, {thr}, v{vPV}\ns_cbranch_vccz L_pd{u}\n"
            f"s_add_u32 s{sSpin}, s{sSpin}, 1\ns_cmp_gt_u32 s{sSpin}, 0x40000\ns_cbranch_scc1 L_pd{u}\n"
            f"s_sleep 4\n{poll_issue()}\ns_waitcnt vmcnt(0)\ns_branch L_pl{u}\nL_pd{u}:")
def poll_one(thr, wave=0):
    u = uid()
    return (f"s_cmp_lg_u32 s{sW}, {wave}\ns_cbranch_scc1 L_po{u}\n" + poll_issue() + "\ns_waitcnt vmcnt(0)\n" + poll_check(thr) + f"\nL_po{u}:")
def poll2_issue(): return f"buffer_load_dword v{vPV}, v{vPA}, s[{SDBG}:{SDBG+3}], 0 offen sc1"
def poll2_check():
    u = uid()
    return (f"s_mov_b32 s{sSpin}, 0\nL_pl{u}:\nv_cmp_ne_u32 vcc, 0x01010101, v{vPV}\ns_cbranch_vccz L_pd{u}\n"
            f"s_add_u32 s{sSpin}, s{sSpin}, 1\ns_cmp_gt_u32 s{sSpin}, 0x40000\ns_cbranch_scc1 L_pd{u}\n"
            f"s_sleep 8\n{poll2_issue()}\ns_waitcnt vmcnt(0)\ns_branch L_pl{u}\nL_pd{u}:")
def with_regs(txt, m):
    for k, v in m.items(): txt = re.sub(rf"\bv{k}\b", f"v{v}", txt)
    return txt

def unpack8(a, src, dst):
    for i in range(4):
        a(f"v_lshlrev_b32 v{dst+2*i}, 16, v{src+i}\nv_and_b32 v{dst+2*i+1}, 0xffff0000, v{src+i}")
def w_dma_voff(a, v, stride, t):
    a(f"v_lshrrev_b32 v{t}, 4, v{vLANE}\nv_bfe_u32 v{t+1}, v{vLANE}, 1, 3\nv_xor_b32 v{t+1}, v{t+1}, v{t}\nv_lshlrev_b32 v{t+1}, 5, v{t+1}")
    a(f"v_and_b32 v{t+2}, 1, v{vLANE}\nv_lshl_add_u32 v{t+1}, v{t+2}, 4, v{t+1}\nv_mul_u32_u24 v{t}, {stride}, v{t}")
    a(f"v_add_u32 v{v}, v{t}, v{t+1}\nv_xor_b32 v{t+1}, 128, v{t+1}\nv_add_u32 v{v+1}, v{t}, v{t+1}")
def w_read_addr(a, v, n, base_s, dt0_s, t):
    a(f"v_lshrrev_b32 v{t}, 4, v{vLANE}\nv_bfe_u32 v{t+1}, v{vLANE}, 2, 2")
    a(f"v_lshl_add_u32 v{t+2}, v{t}, 3, v{t+1}\nv_lshlrev_b32 v{t+2}, 8, v{t+2}")
    a(f"v_and_b32 v{t+3}, 3, v{vLANE}\nv_lshl_add_u32 v{t+2}, v{t+3}, 3, v{t+2}\nv_add_u32 v{t+2}, s{base_s}, v{t+2}")
    a(f"v_and_b32 v{t}, 1, v{t}\nv_lshl_or_b32 v{t}, v{t}, 2, v{t+1}")
    for i in range(n):
        a(f"s_add_u32 s{sT}, s{dt0_s}, {i}\nv_xor_b32 v{t+3}, s{sT}, v{t}\nv_lshl_add_u32 v{v+i}, v{t+3}, 5, v{t+2}")
def interleave(x, y):
    out = []
    for i in range(max(len(x), len(y))):
        if i < len(x): out.append(x[i])
        if i < len(y): out.append(y[i])
    return out

def ln_row(B, nop=0):
    a = Asm()
    pk, x, t = B, B+4, B+12
    m, s, u, r, d = t, t+1, t+2, t+3, t+4
    def allreduce(v):
        for mode in ("quad_perm:[1,0,3,2]", "quad_perm:[2,3,0,1]", "row_half_mirror", "row_mirror"):
            a(f"s_nop {nop}\nv_add_f32_dpp v{v}, v{v}, v{v} {mode} row_mask:0xf bank_mask:0xf")
        for sw in ("v_permlane16_swap_b32", "v_permlane32_swap_b32"):
            a(f"v_mov_b32 v{u}, v{v}\ns_nop {nop}\n{sw} v{v}, v{u}\nv_add_f32 v{v}, v{v}, v{u}")
    def rbf(v): a(f"v_cvt_pk_bf16_f32 v{v}, v{v}, v{v}\nv_lshlrev_b32 v{v}, 16, v{v}")
    def stats():
        a(f"v_add_f32 v{m}, v{x}, v{x+1}\nv_add_f32 v{s}, v{x+2}, v{x+3}\nv_add_f32 v{u}, v{x+4}, v{x+5}\nv_add_f32 v{r}, v{x+6}, v{x+7}")
        a(f"v_add_f32 v{m}, v{m}, v{s}\nv_add_f32 v{u}, v{u}, v{r}\nv_add_f32 v{m}, v{m}, v{u}")
        allreduce(m)
        a(f"v_mul_f32 v{m}, 0x3b000000, v{m}")
        for i in range(8): a(f"v_sub_f32 v{d+i}, v{x+i}, v{m}")
        a(f"v_mul_f32 v{s}, v{d}, v{d}\nv_mul_f32 v{r}, v{d+1}, v{d+1}")
        for i in range(2, 8, 2): a(f"v_fmac_f32 v{s}, v{d+i}, v{d+i}\nv_fmac_f32 v{r}, v{d+i+1}, v{d+i+1}")
        a(f"v_add_f32 v{s}, v{s}, v{r}")
        allreduce(s)
        a(f"v_mul_f32 v{s}, 0x3b000000, v{s}")
        rbf(m); rbf(s)
        a(f"v_add_f32 v{s}, 0x3727c5ac, v{s}")
        rbf(s)
        a(f"v_sqrt_f32 v{s}, v{s}\ns_nop 0")
        rbf(s)
        a(f"v_rcp_f32 v{r}, v{s}")
    unpack8(a, pk, x)
    stats()
    for i in range(8): a(f"v_sub_f32 v{d+i}, v{x+i}, v{m}")
    for i in range(4): a(f"v_cvt_pk_bf16_f32 v{pk+i}, v{d+2*i}, v{d+2*i+1}")
    unpack8(a, pk, d)
    for i in range(8):
        a(f"v_mul_f32 v{x+i}, v{d+i}, v{r}\nv_fma_f32 v{d+i}, -v{x+i}, v{s}, v{d+i}\nv_fmac_f32 v{x+i}, v{d+i}, v{r}")
    for i in range(4): a(f"v_cvt_pk_bf16_f32 v{pk+i}, v{x+2*i}, v{x+2*i+1}")
    unpack8(a, pk, x)
    stats()
    a(f"v_mov_b32 v{B+26}, v{m}\nv_mov_b32 v{B+27}, v{r}")
    return [l.strip() for l in a.lines]

sG, sRQ, sBlk, sN, sNW, sIt, sKs, sVs, sThr, sFloor, sMask, sRt0 = 56, 57, 58, 59, 60, 61, 62, 63, 96, 97, 98, 99
def att_ids(a):
    a(f"s_lshr_b32 s{sG}, s{sW}, 2\ns_and_b32 s{sRQ}, s{sW}, 3")
    a(f"s_sub_u32 s{sBlk}, 15, s{sP}\ns_cmp_eq_u32 s{sG}, 0\ns_cselect_b32 s{sBlk}, s{sBlk}, s{sP}")
    a(f"s_lshl_b32 s{sRt0}, s{sBlk}, 3\ns_lshl_b32 s{sT}, s{sRQ}, 1\ns_add_u32 s{sRt0}, s{sRt0}, s{sT}")

P1_W, P1_A, P1_NA = 128, 160, 8
vAr, vWr, vDA, vDW, vD1 = 192, 194, 198, 244, 246
sAoff, sWoff, sLdsA, sLdsW = 60, 61, 62, 63
sNlds, sHasM, sOOB, sXit, sL1, sC1, sXn, sW1b, sJ = 70, 71, 82, 83, 85, 86, 87, 88, 89
SLOT = [0, 65536, 114688, 0]

def p1_dma(i, srdw=SWKV, dA=0, dL=0):
    if i < 4:
        return (f"s_add_u32 m0, s{sLdsA}, {(i*1024 + dL) & 0xffffffff}\ns_add_u32 s{sT}, s{sAoff}, {(i*8192 + dA) & 0xffffffff}\n"
                f"buffer_load_dwordx4 v{vDA+(i&1)}, s[{SCKV}:{SCKV+3}], s{sT} offen lds")
    j = i - 4
    return (f"s_add_u32 m0, s{sLdsW}, {(j*1024 + dL) & 0xffffffff}\ns_add_u32 s{sT}, s{sWoff}, {j*4*8192}\n"
            f"buffer_load_dwordx4 v{vDW+(j>>1)}, s[{srdw}:{srdw+3}], s{sT} offen lds")
def p1_adv():
    return (f"s_add_u32 s{sAoff}, s{sAoff}, 128\ns_add_u32 s{sWoff}, s{sWoff}, {64*8192}\n"
            f"s_xor_b32 s{sLdsA}, s{sLdsA}, 0x10000\ns_xor_b32 s{sLdsW}, s{sLdsW}, 0x10000")
def p2_dma(stg, i, tag=True):
    tg = f" ;@vm d{stg}" if tag else ""
    if i < 4:
        return (f"s_add_u32 m0, s{sNlds}, {SLOT[stg] + i*1024}\ns_add_u32 s{sT}, s{sJ}, {(stg*128 + i*4)*8192}\n"
                f"buffer_load_dwordx4 v{vDW+((i>>1)&1)}, s[{SWQ}:{SWQ+3}], s{sT} offen lds{tg}")
    j = i - 4
    return (f"s_add_u32 m0, s{sL1}, {SLOT[stg] + 32768 + j*1024}\ns_add_u32 s{sT}, s{sW1b}, {(stg*128 + j*8)*2752}\n"
            f"buffer_load_dwordx4 v{vD1+j}, s[{SW1}:{SW1+3}], s{sT} offen lds{tg}")
def accP1(isV, kt, dt):
    return (((kt >> 1)*4 + dt)*2 + (kt & 1))*4 if isV else (kt*4 + dt)*4

vT128, vT1K, vTW, vLNr, vLNs = 232, 233, 234, 235, 240
sPre, sPost = 80, 81
def side_pre(tag, isV):
    if isV: return ""
    return (f"L_pre{tag}:\ns_cmp_lg_u32 s{sCnt}, 6\ns_cbranch_scc1 L_pre1{tag}\ns_call_b64 s[{sRet}:{sRet+1}], L_ln\ns_branch L_preb{tag}\n"
            f"L_pre1{tag}:\ns_waitcnt vmcnt(0)\n" + poll2_check() + f"\ns_branch L_preb{tag}")
def side_post(tag, isV):
    def ld(v, srdn, x=""): return f"s_mov_b32 s64, s{srdn}\ns_mov_b32 s65, s{srdn+1}\ns_mov_b32 s66, s{srdn+2}\nv_mov_b32 v230, v{v}\n"
    t = f"L_post{tag}:\ns_cmp_lg_u32 s{sCnt}, s{sXit}\ns_cbranch_scc1 L_q1{tag}\n"
    t += f"s_lshr_b32 s57, s2, 3\ns_lshl_b32 s57, s57, 16\ns_lshl_b32 s58, s{sW}, 13\ns_add_u32 s57, s57, s58\n" + ld(vT128, SWS, " sc1") + f"s_branch L_postb{tag}\n"
    t += f"L_q1{tag}:\ns_and_b32 s57, s{sW}, 3\ns_cmp_lg_u32 s57, 2\ns_cbranch_scc1 L_q0{tag}\n"
    t += f"s_sub_u32 s57, 8, s{sCnt}\ns_lshl_b32 s57, s57, 20\ns_lshl_b32 s58, s{sP}, 16\ns_add_u32 s57, s57, s58\ns_lshl_b32 s58, s{sH}, 8\ns_add_u32 s57, s57, s58\n" + ld(241, SWKV) + f"s_branch L_postb{tag}\n"
    t += f"L_q0{tag}:\n"
    if isV:
        t += f"s_cmp_lg_u32 s{sW}, 4\ns_cbranch_scc1 L_q2{tag}\n"
        t += f"s_lshl_b32 s57, s{sP}, 2\ns_and_b32 s58, s{sH}, 3\ns_add_u32 s57, s57, s58\ns_lshl_b32 s57, s57, 16\ns_sub_u32 s58, 9, s{sCnt}\ns_lshl_b32 s58, s58, 7\ns_add_u32 s57, s57, s58\n" + ld(vT1K, SCKV) + f"s_branch L_postb{tag}\n"
        t += f"L_q2{tag}:\ns_cmp_eq_u32 s{sCnt}, 3\ns_cbranch_scc1 L_q3{tag}\n"
        t += f"s_and_b32 s57, s{sCnt}, 1\ns_lshl_b32 s57, s57, 21\ns_lshl_b32 s58, s{sP}, 16\ns_add_u32 s57, s57, s58\ns_lshl_b32 s58, s{sH}, 8\ns_add_u32 s57, s57, s58\n" + ld(vTW, SWQ) + f"s_branch L_postb{tag}\n"
        t += f"L_q3{tag}:\ns_lshl_b32 s57, s2, 13\n" + ld(vT128, SW1) + f"s_branch L_postb{tag}"
    else:
        t += f"s_cmp_eq_u32 s{sCnt}, 5\ns_cbranch_scc0 L_q2{tag}\n" + publish(1) + f"\ns_branch L_postb{tag}\n"
        t += f"L_q2{tag}:\n" + poll2_issue() + f"\ns_branch L_postb{tag}"
    return t
def ln_sub(a):
    a.label("L_ln")
    for l in ln_row(200, 1): a(l)
    a(f"s_mul_i32 s57, s{sW}, 1040\ns_add_u32 s57, s57, 131072\nv_add_u32 v204, s57, v{vL16}")
    a("ds_write_b128 v204, v[200:203]")
    a("s_waitcnt lgkmcnt(0)")
    a(f"s_setpc_b64 s[{sRet}:{sRet+1}]")
def ln_store_txt(tag):
    return (f"s_cmp_lg_u32 s{sCnt}, 6\ns_cbranch_scc1 L_lns{tag}\nds_read_b128 v[200:203], v{vLNr}\ns_waitcnt lgkmcnt(0)\n"
            f"buffer_store_dwordx4 v[200:203], v{vLNs}, s[{SWS}:{SWS+3}], s7 offen{SC}\nL_lns{tag}:\n")

def p1_main(a, isV, tag):
    S = Sched(lookahead=24, per_slot=1)
    for st in range(8):
        for ks in range(2):
            for kt in range(8):
                for dt in range(4):
                    acc = accP1(isV, kt, dt)
                    wf = P1_W + ((st*2+ks) & 1) * 16 + dt * 4
                    af = P1_A + ((st*16 + ks*8 + kt) % P1_NA) * 4
                    S.add_slot(mfma(acc, af, wf) if isV else mfma(acc, wf, af), [('W', st, ks, dt), ('A', st, ks, kt)])
    x = "\n".join(f"v_xor_b32 v{r}, 0x10000, v{r}" for r in list(range(vAr, vAr+2)) + list(range(vWr, vWr+4)))
    for st in range(9):
        dmas = []
        if st > 0:
            sy = ""
            if st < 7 and not isV: sy += f"s_bitcmp1_b32 s{sPre}, s{sCnt}\ns_cbranch_scc1 L_pre{tag}\nL_preb{tag}:\n"
            sy += f"s_waitcnt vmcnt({1 if st < 8 else 0})\ns_barrier\n" + (stamp_txt(22, 4, sCnt) if st < 7 else stamp_txt(15 + st, 4))
            if st < 7:
                sy += f"s_cmp_eq_u32 s{sCnt}, 6\ns_cbranch_scc1 L_lns{tag}\nL_lnsb{tag}:\n"
                dmas = [p1_dma(i) for i in range(8)]
                dmas[7] += ("\n" + p1_adv() + f"\ns_mov_b32 s57, s{sOOB}\ns_bitcmp1_b32 s{sPost}, s{sCnt}\ns_cbranch_scc1 L_post{tag}\nL_postb{tag}:\n"
                            "buffer_load_dword v229, v230, s[64:67], s57 offen sc1")
            else:
                dmas = [p2_dma(st - 7, i, False) for i in range(6)]
            if (isV and VB) or st == 8:
                sy += "\n".join(dmas) + "\n"; dmas = []
            S.add_sync(sy + (x if st < 8 else ""), drain=True, delay=3)
        if st == 8: break
        for ks in range(2):
            order = [('W', 0), ('W', 1), ('A', 0), ('W', 2), ('W', 3)] + [('A', k) for k in range(1, 8)]
            for (kind, i) in order:
                if kind == 'W':
                    wf = P1_W + ((st*2+ks) & 1) * 16 + i * 4
                    S.add_load(('W', st, ks, i),
                               [f"ds_read_b64_tr_b16 v[{wf}:{wf+1}], v{vWr+i} offset:{ks*8192}",
                                f"ds_read_b64_tr_b16 v[{wf+2}:{wf+3}], v{vWr+i} offset:{ks*8192+1024}"], wf)
                else:
                    af = P1_A + ((st*16 + ks*8 + i) % P1_NA) * 4
                    S.add_load(('A', st, ks, i), [f"ds_read_b128 v[{af}:{af+3}], v{vAr+ks} offset:{i*2048}"], af)
                if dmas and ks == 0:
                    S.add_sync(dmas.pop(0), drain=False)
                    if kind == 'W' and dmas: S.add_sync(dmas.pop(0), drain=False)
    S.ops[-1]['force_at'] = 64*7 + 44
    for i in range(10): S.add_fill(64*7 + XE + 3*i, x_load(i & 1, i >> 1).replace(";@vm", ";"))
    segs = S.build(cuts=[64*s for s in range(8)])
    body = segs[2]
    for k in range(3, 7): assert body == segs[k], "p1 not periodic"
    bi = [i for i, l in enumerate(body) if "s_barrier" in l][0]
    for l in body[bi+1:]:
        if l.startswith("ds_read"): a(l)
    a(f"s_mov_b32 s{sCnt}, 6")
    a.label(f"L_p1_{tag}")
    for l in body: a(l)
    a(f"s_sub_u32 s{sCnt}, s{sCnt}, 1\ns_cmp_lg_u32 s{sCnt}, 0\ns_cbranch_scc1 L_p1_{tag}")
    for l in segs[7] + segs[8]: a(l)
    a("s_branch L_p1_done")
    a(side_pre(tag, isV)); a(side_post(tag, isV))
    a(f"L_lns{tag}:\nds_read_b128 v[200:203], v{vLNr}\n"
      f"s_lshl_b32 s57, s{sF}, 3\ns_add_u32 s57, s57, s{sW}\ns_lshl_b32 s57, s57, 3\ns_add_u32 s57, s57, {STAT}\n"
      "s_mov_b64 s[72:73], exec\ns_mov_b64 exec, 1\n"
      f"buffer_store_dwordx2 v[226:227], v{vLANE}, s[{SWS}:{SWS+3}], s57 offen{SC}\ns_mov_b64 exec, s[72:73]\ns_waitcnt lgkmcnt(0)\n"
      f"buffer_store_dwordx4 v[200:203], v{vLNs}, s[{SWS}:{SWS+3}], s7 offen{SC}\ns_branch L_lnsb{tag}")

def phase1(a):
    a("s_cmp_ge_u32 s2, 256\ns_cbranch_scc1 L_end")
    a("s_load_dwordx16 s[64:79], s[0:1], 0\ns_load_dwordx8 s[80:87], s[0:1], 64\ns_load_dwordx4 s[88:91], s[0:1], 96")
    a(f"v_lshrrev_b32 v1, 6, v0\nv_and_b32 v{vLANE}, 63, v0\nv_readfirstlane_b32 s{sW}, v1\nv_lshlrev_b32 v{vL16}, 4, v{vLANE}")
    a(f"s_and_b32 s56, s2, 7\ns_lshl_b32 s56, s56, 2\ns_lshr_b32 s57, s2, 3\ns_and_b32 s57, s57, 3\ns_add_u32 s{sH}, s56, s57")
    a(f"s_lshr_b32 s{sP}, s2, 5\ns_lshl_b32 s{sF}, s{sH}, 3\ns_add_u32 s{sF}, s{sF}, s{sP}")
    t = 236
    a(f"v_lshrrev_b32 v{t}, 3, v{vLANE}\nv_lshlrev_b32 v{t}, 10, v{t}")
    a(f"v_and_b32 v{t+1}, 7, v{vLANE}\nv_lshrrev_b32 v{t+2}, 4, v{vLANE}\nv_xor_b32 v{t+1}, v{t+1}, v{t+2}\nv_lshlrev_b32 v{t+1}, 4, v{t+1}")
    a(f"v_add_u32 v{vDA}, v{t}, v{t+1}\nv_xor_b32 v{t+1}, 64, v{t+1}\nv_add_u32 v{vDA+1}, v{t}, v{t+1}")
    w_dma_voff(a, vDW, 8192, t)
    a(f"s_lshl_b32 s{sAoff}, s{sP}, 8\ns_lshl_b32 s{sT}, s{sW}, 5\ns_add_u32 s{sAoff}, s{sAoff}, s{sT}\ns_lshl_b32 s{sAoff}, s{sAoff}, 10")
    a(f"s_and_b32 s{sT}, s{sW}, 3\ns_lshl_b32 s{sWoff}, s{sT}, 17\ns_lshl_b32 s{sT}, s{sH}, 8\ns_add_u32 s{sWoff}, s{sWoff}, s{sT}")
    a(f"s_lshl_b32 s{sLdsA}, s{sW}, 12\ns_add_u32 s{sLdsW}, s{sLdsA}, 32768")
    a("s_waitcnt lgkmcnt(0)")
    srd(a, SX, 64, 2*MB); srd(a, SCKV, 66, 2*MB); srd(a, SWO, 70, 4*MB)
    a("s_mov_b32 s100, s74\ns_mov_b32 s101, s75\ns_mov_b32 s96, s72\ns_mov_b32 s97, s73")
    a(f"s_cmp_lt_u32 s{sW}, 4\ns_cselect_b32 s56, s70, s72\ns_cselect_b32 s57, s71, s73")
    srd(a, SWKV, 56, 4*MB); srd(a, SWS, 90, WS_BYTES)
    stamp(a, 0)
    if LIN:
        a(f"v_lshlrev_b32 v{vT128}, 7, v{vLANE}")
        a(f"s_and_b32 s57, s{sW}, 3\ns_cmp_ge_u32 s57, 2\ns_cbranch_scc1 L_l1")
        a(f"s_lshl_b32 s58, s2, 1\ns_add_u32 s57, s57, s58\ns_lshl_b32 s57, s57, 13")
        a(f"buffer_load_dword v229, v{vT128}, s[{SWKV}:{SWKV+3}], s57 offen\ns_branch L_l2")
        a.label("L_l1")
        a(f"s_cmp_lg_u32 s{sW}, 2\ns_cbranch_scc1 L_l2\ns_lshl_b32 s57, s2, 13")
        a(f"buffer_load_dword v229, v{vT128}, s[{SCKV}:{SCKV+3}], s57 offen")
        a.label("L_l2")
    a(f"s_lshl_b32 s56, s{sF}, 3\ns_add_u32 s56, s56, s{sW}\ns_lshl_b32 s57, s56, 10")
    for i in range(8): a(p1_dma(i))
    a(p1_adv())
    a(f"buffer_load_dwordx4 v[200:203], v{vL16}, s[{SX}:{SX+3}], s57 offen")
    a(publish(0))
    a.label("L_st_j")
    stamp(a, 4)
    srd(a, SWQ, 68, 4*MB); srd(a, SWO, 100, 4*MB); srd(a, SW1, 78, 512*1376*2); srd(a, SB1, 80, 1376*2); srd(a, SW2, 82, 512*1376*2)
    srd(a, SB2, 84, 1024); srd(a, SOUT, 86, 2*MB); srd(a, SDBG, 88, 256)
    a(f"s_and_b32 s{sT}, s{sW}, 1\ns_lshl_b32 s{sT}, s{sT}, 14")
    a(f"v_and_b32 v{t}, 15, v{vLANE}\nv_lshlrev_b32 v{t+1}, 7, v{t}\nv_add_u32 v{t+1}, s{sT}, v{t+1}")
    a(f"v_lshrrev_b32 v{t}, 1, v{t}\nv_lshrrev_b32 v{t+2}, 4, v{vLANE}\nv_xor_b32 v{t}, v{t}, v{t+2}")
    a(f"v_lshl_add_u32 v{vAr}, v{t}, 4, v{t+1}\nv_xor_b32 v{vAr+1}, 64, v{vAr}")
    a(f"s_lshr_b32 s56, s{sW}, 2\ns_lshl_b32 s56, s56, 14\ns_add_u32 s56, s56, 32768\ns_bfe_u32 s57, s{sW}, 0x10001\ns_lshl_b32 s57, s57, 2")
    w_read_addr(a, vWr, 4, 56, 57, t)
    att_ids(a)
    a(f"s_lshl_b32 s{sXn}, s{sRt0}, 14")
    a(f"s_lshr_b32 s{sC1}, s{sH}, 2\ns_add_u32 s{sC1}, s{sC1}, s{sP}\ns_and_b32 s{sC1}, s{sC1}, 7\ns_and_b32 s{sT}, s{sH}, 3\ns_lshl_b32 s{sT}, s{sT}, 3\ns_add_u32 s{sC1}, s{sC1}, s{sT}")
    a(f"s_cmp_lt_u32 s{sC1}, 22\ns_cselect_b32 s{sHasM}, 1, 0")
    a(f"s_lshl_b32 s{sJ}, s{sW}, 17\ns_lshl_b32 s{sT}, s{sH}, 8\ns_add_u32 s{sJ}, s{sJ}, s{sT}")
    a(f"s_lshl_b32 s{sNlds}, s{sW}, 12\ns_lshl_b32 s{sL1}, s{sW}, 11\ns_mov_b32 s{sOOB}, {OOB}")
    a(f"v_lshrrev_b32 v{t}, 3, v{vLANE}\nv_mul_u32_u24 v{t}, 2752, v{t}\nv_bfe_u32 v{t+1}, v{vLANE}, 1, 2\nv_bfe_u32 v{t+2}, v{vLANE}, 4, 1")
    a(f"v_xor_b32 v{t+1}, v{t+1}, v{t+2}\nv_lshlrev_b32 v{t+1}, 5, v{t+1}\nv_and_b32 v{t+2}, 1, v{vLANE}\nv_lshl_add_u32 v{t+1}, v{t+2}, 4, v{t+1}")
    a(f"v_add_u32 v{vD1}, v{t}, v{t+1}\nv_xor_b32 v{t+1}, 64, v{t+1}\nv_add_u32 v{vD1+1}, v{t}, v{t+1}")
    a(f"s_mul_i32 s{sW1b}, s{sW}, {16*2752}\ns_lshl_b32 s{sT}, s{sC1}, 7\ns_add_u32 s{sW1b}, s{sW1b}, s{sT}\ns_cmp_lg_u32 s{sHasM}, 0\ns_cselect_b32 s{sW1b}, s{sW1b}, s{sOOB}")
    a(f"s_lshl_b32 s{sT}, s{sW}, 2\ns_lshr_b32 s{sXit}, 0x22211221, s{sT}\ns_and_b32 s{sXit}, s{sXit}, 15")
    a(f"s_lshl_b32 s{sPost}, 1, s{sXit}\ns_mov_b32 s{sPre}, 0x40")
    a(f"s_cmp_eq_u32 s{sW}, 0\ns_cselect_b32 s{sT}, 0x28, 0\ns_or_b32 s{sPost}, s{sPost}, s{sT}\ns_cmp_eq_u32 s{sW}, 0\ns_cselect_b32 s{sT}, 4, 0\ns_or_b32 s{sPre}, s{sPre}, s{sT}")
    a(f"s_cmp_eq_u32 s{sW}, 4\ns_cselect_b32 s{sT}, 0x7c, 0\ns_or_b32 s{sPost}, s{sPost}, s{sT}\ns_cmp_eq_u32 s{sW}, 5\ns_cselect_b32 s{sT}, 0x38, 0\ns_or_b32 s{sPost}, s{sPost}, s{sT}")
    a(f"s_and_b32 s{sT}, s{sW}, 3\ns_cmp_eq_u32 s{sT}, 2\ns_cselect_b32 s{sT}, 0x60, 0\ns_or_b32 s{sPost}, s{sPost}, s{sT}")
    a(f"v_lshlrev_b32 v{vPA}, 2, v{vLANE}\nv_lshlrev_b32 v{vT128}, 7, v{vLANE}\nv_lshlrev_b32 v{vT1K}, 10, v{vLANE}")
    a(f"v_lshrrev_b32 v{t+1}, 4, v{vLANE}\nv_lshlrev_b32 v{t+1}, 6, v{t+1}\nv_bfe_u32 v{t+2}, v{vLANE}, 1, 3\nv_add_u32 v{t+1}, v{t+1}, v{t+2}\nv_lshlrev_b32 v{t+1}, 13, v{t+1}")
    a(f"v_and_b32 v{t+2}, 1, v{vLANE}\nv_lshl_add_u32 v{vTW}, v{t+2}, 7, v{t+1}")
    a(f"v_and_b32 v241, 0xfffff, v{vTW}")
    a(f"v_and_b32 v{t}, 7, v{vLANE}\nv_mul_u32_u24 v{vLNr}, 1040, v{t}\nv_lshrrev_b32 v{t+2}, 3, v{vLANE}\nv_lshl_add_u32 v{vLNr}, v{t+2}, 4, v{vLNr}")
    a(f"s_lshl_b32 s57, s{sW}, 7\ns_add_u32 s57, s57, 131072\nv_add_u32 v{vLNr}, s57, v{vLNr}")
    a(f"v_lshlrev_b32 v{vLNs}, 8, v{t+2}\nv_lshl_add_u32 v{vLNs}, v{t}, 4, v{vLNs}")
    a(f"s_lshr_b32 s7, s{sF}, 1\ns_lshl_b32 s7, s7, 14\ns_lshl_b32 s58, s{sW}, 11\ns_add_u32 s7, s7, s58\ns_and_b32 s58, s{sF}, 1\ns_lshl_b32 s58, s58, 7\ns_add_u32 s7, s7, s58")
    for r in range(128): a(f"v_mov_b32 v{r}, 0")
    for i in range(4): a(p1_dma(i))
    a("s_waitcnt vmcnt(4)\ns_barrier")
    stamp(a, 1)
    for i in range(4, 8): a(p1_dma(i))
    a(p1_adv())
    srd(a, 64, SWS, WS_BYTES)
    a(f"v_mov_b32 v230, v{vT128}")
    a(f"s_cmp_eq_u32 s{sW}, 4\ns_cbranch_scc1 L_st_c")
    a(f"s_lshl_b32 s57, s{sP}, 16\ns_lshl_b32 s58, s{sH}, 8\ns_add_u32 s57, s57, s58\ns_add_u32 s57, s57, {1 << 20}")
    a(f"s_and_b32 s58, s{sW}, 3\ns_cmp_eq_u32 s58, 2\ns_cselect_b32 s57, s57, s{sOOB}")
    a(f"buffer_load_dword v229, v241, s[{SWKV}:{SWKV+3}], s57 offen\ns_branch L_st_a")
    a.label("L_st_c")
    a(f"s_lshl_b32 s57, s{sP}, 2\ns_and_b32 s58, s{sH}, 3\ns_add_u32 s57, s57, s58\ns_lshl_b32 s57, s57, 16\ns_add_u32 s57, s57, 256")
    a(f"buffer_load_dword v229, v{vT1K}, s[{SCKV}:{SCKV+3}], s57 offen")
    a.label("L_st_a")
    a(f"s_cmp_ge_u32 s{sW}, 4\ns_cbranch_scc1 L_p1v")
    p1_main(a, False, "k")
    ln_sub(a)
    a.label("L_p1v")
    a(f"s_call_b64 s[{sRet}:{sRet+1}], L_ln")
    if P1PRIO: a("s_setprio 1")
    p1_main(a, True, "v")
    for t in stubs: a(t)
    a.label("L_p1_done")
    if P1PRIO == 1: a("s_setprio 0")
    stamp(a, 2)

def rXm(rt, ks): return (200 + 8*(ks % 6) if ks % 6 < 5 else 64) + 4*rt
AQ, A1, CS, WR, NWR, ONE = 192, 240, 124, 104, 5, 248
QACC, MACC = 128, 72
LOW = {248: 0, 249: 1, 250: 2, 251: 3}
stubs = []
P2LA, P2WG = int(os.environ.get('P2LA', '8')), int(os.environ.get('P2WG', '1'))
def x_load(rt, ks):
    r = rXm(rt, ks)
    return (f"s_add_u32 s{sT}, s{sXn}, {rt*16384 + (ks//4)*4096}\n"
            f"buffer_load_dwordx4 v[{r}:{r+3}], v{vL16}, s[{SWS}:{SWS+3}], s{sT} offen offset:{(ks%4)*1024}{SC} ;@vm x{ks}")
def kv_store(j):
    base = 65 if j & 2 else 64
    return (f"s_add_u32 s{sT}, s{base}, {(j>>2)*8192}\n"
            f"buffer_store_dwordx4 v[{4*j}:{4*j+3}], v{vL16}, s[{SWS}:{SWS+3}], s{sT} offen offset:{(j&1)*1024}{SC} ;@vm st")
def att_scalars(a):
    att_ids(a)
    a(f"s_lshl_b32 s{sN}, s{sBlk}, 1\ns_lshr_b32 s{sT}, s{sRQ}, 1\ns_add_u32 s{sN}, s{sN}, s{sT}\ns_add_u32 s{sN}, s{sN}, 1")
    a(f"s_lshl_b32 s{sT}, s{sP}, 1\ns_sub_u32 s{sNW}, 32, s{sT}\ns_lshl_b32 s92, s{sRQ}, 12")
    a(f"s_lshl_b32 s{sKs}, s{sH}, 19\ns_add_u32 s{sKs}, s{sKs}, s92\ns_add_u32 s{sVs}, s{sKs}, {VF}\ns_add_u32 s{sKs}, s{sKs}, {KF}")
def kv_dma(src, t, lds):
    s = f"s_add_u32 m0, s92, {lds}\ns_add_u32 s{sT}, s{src}, {t*16384}\n"
    for i in range(4):
        s += f"buffer_load_dwordx4 v{vL16}, s[{SWS}:{SWS+3}], s{sT} offen offset:{i*1024}{SC} lds\n"
    return s
def pk(op, d, x, y, mods=""): return f"v_pk_{op}_f32 v[{d}:{d+1}], {x}, {y}{mods}"

def p2_merged(a):
    a(f"s_lshl_b32 s64, s{sH}, 19\ns_lshl_b32 s{sT}, s{sP}, 16\ns_add_u32 s64, s64, s{sT}\ns_and_b32 s{sT}, s{sW}, 1\ns_lshl_b32 s{sT}, s{sT}, 15\ns_add_u32 s64, s64, s{sT}")
    a(f"s_bfe_u32 s66, s{sW}, 0x10001\ns_lshl_b32 s67, s66, 12\ns_lshl_b32 s66, s66, 11\ns_add_u32 s66, s66, {KF}\ns_add_u32 s67, s67, {VF}")
    a(f"s_cmp_lt_u32 s{sW}, 4\ns_cselect_b32 s66, s66, s67\ns_cselect_b32 s65, 2, 1\ns_lshl_b32 s65, s65, 11\ns_add_u32 s64, s64, s66\ns_add_u32 s65, s65, s64")
    for j in range(16):
        for i in range(4): a(f"v_cvt_pk_bf16_f32 v{4*j+i}, v{8*j+2*i}, v{8*j+2*i+1}")
    lines = []
    for ks in range(5):
        for rt in range(2): lines.append(f"; issued in P1 ;@vm x{ks}")
    for i in range(6): lines.append("; issued in P1 ;@vm d1")
    b = Asm()
    att_scalars(b)
    b("s_mov_b32 s100, 0")
    t = 72
    w_read_addr(b, AQ, 8, 100, 100, t)
    b(f"v_lshrrev_b32 v{t}, 4, v{vLANE}\nv_bfe_u32 v{t+1}, v{vLANE}, 2, 2\nv_lshl_add_u32 v{t+2}, v{t}, 3, v{t+1}\nv_lshlrev_b32 v{t+2}, 7, v{t+2}")
    b(f"v_and_b32 v{t+3}, 3, v{vLANE}\nv_lshl_add_u32 v{t+2}, v{t+3}, 3, v{t+2}\nv_add_u32 v{t+2}, 32768, v{t+2}")
    b(f"v_and_b32 v{t}, 1, v{t}\nv_lshrrev_b32 v{t+1}, 1, v{t+1}\nv_lshl_or_b32 v{t}, v{t}, 1, v{t+1}")
    for ct in range(4): b(f"v_xor_b32 v{t+3}, {ct}, v{t}\nv_lshl_add_u32 v{A1+ct}, v{t+3}, 5, v{t+2}")
    for r in range(CS, CS+4): b(f"v_mov_b32 v{r}, 0")
    for r in range(ONE, ONE+4): b(f"v_mov_b32 v{r}, 0x3f803f80")
    lines += [l.strip() for l in b.lines]
    lines += stamp_txt(24, 4).split("\n")
    K = 24
    fills = {}
    def F(sl, txt): fills.setdefault(sl, []).append(txt)
    for ks in range(11):
        F(K*ks + 5, x_load(0, ks+5)); F(K*ks + 17, x_load(1, ks+5))
    for i in range(16): F(int(i*16.2) + 2, kv_store(i))
    for i in range(6): F(1 + 8*i + 3, p2_dma(2, i))
    ST_, BI_ = 8, 12
    F(K*6 + 1, f"v_and_b32 v4, 15, v{vLANE}\nv_lshlrev_b32 v4, 3, v4\ns_lshl_b32 s{sT}, s{sRt0}, 7\ns_add_u32 s{sT}, s{sT}, {STAT}\n"
               f"buffer_load_dwordx2 v[{ST_}:{ST_+1}], v4, s[{SWS}:{SWS+3}], s{sT} offen{SC} ;@vm m\n"
               f"buffer_load_dwordx2 v[{ST_+2}:{ST_+3}], v4, s[{SWS}:{SWS+3}], s{sT} offen offset:128{SC} ;@vm m")
    F(K*7 + 1, f"v_lshrrev_b32 v5, 4, v{vLANE}\nv_lshlrev_b32 v5, 3, v5\ns_lshl_b32 s{sT}, s{sC1}, 7\n" +
               "\n".join(f"buffer_load_dwordx2 v[{BI_+2*ct}:{BI_+2*ct+1}], v5, s[{SB1}:{SB1+3}], s{sT} offen offset:{ct*32} ;@vm m" for ct in range(4)))
    F(K*13 + 1, with_regs(f"v_and_b32 v{vPA}, 7, v{vLANE}\nv_max_u32 v{vPA}, 1, v{vPA}\nv_add_u32 v{vPA}, s{sP}, v{vPA}\nv_and_b32 v{vPA}, 7, v{vPA}\ns_lshl_b32 s{sT}, s{sH}, 3\nv_add_u32 v{vPA}, s{sT}, v{vPA}\n" + flag_addr(), LOW))
    F(K*15 + 1, with_regs(f"s_cmp_lg_u32 s{sW}, 0\ns_cbranch_scc1 L_p2_ni\n" + poll_issue() + "\nL_p2_ni:", LOW))
    Bf, t = 32, 20
    for ct in range(4):
        F(K*14 + 2 + 4*ct, f"v_lshlrev_b32 v{Bf+4*ct}, 16, v{BI_+2*ct}\nv_and_b32 v{Bf+1+4*ct}, 0xffff0000, v{BI_+2*ct}\n"
                           f"v_lshlrev_b32 v{Bf+2+4*ct}, 16, v{BI_+1+2*ct}\nv_and_b32 v{Bf+3+4*ct}, 0xffff0000, v{BI_+1+2*ct}")
    F(K*14 + 20, f"v_lshrrev_b32 v{t}, 4, v{vLANE}\nv_lshlrev_b32 v{t}, 4, v{t}\ns_lshl_b32 s{sT}, s{sW}, 6\ns_add_u32 s{sT}, s{sT}, 131072\nv_add_u32 v{t+1}, s{sT}, v{t}\nv_add_u32 v{t}, 131072, v{t}")
    S = Sched(lookahead=P2LA, per_slot=2, wait_group=P2WG)
    n = 0
    for ks in range(16):
        stg, kk = ks // 4, ks % 4
        if kk == 0 and stg > 0:
            d = SLOT[stg] - SLOT[stg-1]
            upd = "\n".join(f"v_add_u32 v{r}, {d & 0xffffffff}, v{r}" for r in list(range(AQ, AQ+8)) + list(range(A1, A1+4)))
            sy = {1: "@vmwait d1\ns_barrier\n", 2: "@vmwait d2\ns_barrier\n", 3: "@vmwait st\ns_barrier\n" + with_regs(publish(2), LOW) + "\n"}[stg]
            S.add_sync(stamp_txt(24 + stg, 4) + sy + upd, drain=False)
            if stg == 2:
                for i in range(6): F(K*8 + 1 + 3*i, p2_dma(3, i))
        order = list(range(8, 12)) + list(range(8)) if ks == 15 else list(range(12))
        firstslot = True
        for c in order:
            wf = WR + (n % NWR)*4; n += 1
            if c < 8:
                S.add_load((ks, c), [f"ds_read_b64_tr_b16 v[{wf}:{wf+1}], v{AQ+c} offset:{kk*8192}",
                                     f"ds_read_b64_tr_b16 v[{wf+2}:{wf+3}], v{AQ+c} offset:{kk*8192+1024}"], wf)
            else:
                S.add_load((ks, c), [f"ds_read_b64_tr_b16 v[{wf}:{wf+1}], v{A1+c-8} offset:{kk*4096}",
                                     f"ds_read_b64_tr_b16 v[{wf+2}:{wf+3}], v{A1+c-8} offset:{kk*4096+512}"], wf)
            for rt in range(2):
                acc = QACC + (rt*8 + c)*4 if c < 8 else MACC + (rt*4 + c-8)*4
                pre = ""
                if c >= 8 and rt == 1:
                    u = uid()
                    pre = f"s_cmp_eq_u32 s{sW}, {(ks>>3)*4+c-8}\ns_cbranch_scc1 L_cs{u}\nL_cb{u}:\n"
                    stubs.append(f"L_cs{u}:\n" + mfma(CS, wf, ONE) + f"\ns_branch L_cb{u}")
                sl = S.add_slot(pre + mfma(acc, wf, rXm(rt, ks), "0" if ks == 0 else None), [(ks, c)])
                if firstslot: S.add_pre(sl, f"@vmwait x{ks}"); firstslot = False
    for sl, fl in fills.items():
        for f in fl: S.add_fill(sl, f)
    lines += S.build()[0]
    for l in resolve_vm(lines): a(l)
    stamp(a, 28, 4)
    a(f"ds_write_b128 v{t+1}, v[{CS}:{CS+3}]")
    a(f"s_waitcnt vmcnt(0) lgkmcnt(0)\ns_cmp_lg_u32 s{sW}, 0\ns_cbranch_scc1 L_p2_np\n" + with_regs(poll_check(2), LOW) + "\nL_p2_np:\ns_barrier")
    stamp(a, 29, 4)
    def g1(txt):
        u = uid(); return f"s_cmp_eq_u32 s{sG}, 0\ns_cbranch_scc1 L_g{u}\n" + txt + f"L_g{u}:"
    a(g1(kv_dma(sKs, 0, 0)))
    C = 200
    for i in range(8): a(f"ds_read_b128 v[{C+4*i}:{C+4*i+3}], v{t} offset:{i*64}")
    a("v_mov_b32 v22, 0x3e0293ee")
    for j in range(8):
        s, d = QACC + 8*j, QACC + 4*j
        for i in range(0, 8, 2): a(pk("mul", s+i, f"v[{s+i}:{s+i+1}]", "v[22:23]", " op_sel_hi:[1,0]"))
        for i in range(4): a(f"v_cvt_pk_bf16_f32 v{d+i}, v{s+2*i}, v{s+2*i+1}")
    stamp(a, 5)
    a(g1(kv_dma(sKs, 1, 16384)))
    a(f"s_cmp_eq_u32 s{sHasM}, 0\ns_cbranch_scc1 L_p2_nm")
    k = -2.0 * 0.7978845608028654 * 1.4426950408889634
    a(f"v_mov_b32 v22, {fb(k*0.044715)}\nv_mov_b32 v23, {fb(k)}\nv_mov_b32 v48, 1.0")
    a("s_waitcnt lgkmcnt(0)")
    for i in range(0, 16, 2): a(pk("add", C+i, f"v[{C+i}:{C+i+1}]", f"v[{C+16+i}:{C+17+i}]"))
    for q in range(8):
        rt, ct = q >> 2, q & 3
        r0 = MACC + 4*q; T = 24 + (q & 1)*4; mr = f"v[{ST_+2*rt}:{ST_+2*rt+1}]"
        R = lambda j: f"v[{r0+j}:{r0+j+1}]"
        TT = lambda j: f"v[{T+j}:{T+j+1}]"
        for j in (0, 2): a(f"v_pk_fma_f32 {R(j)}, {mr}, v[{C+4*ct+j}:{C+4*ct+j+1}], {R(j)} op_sel_hi:[0,1,1] neg_lo:[1,0,0] neg_hi:[1,0,0]")
        for j in (0, 2): a(f"v_pk_fma_f32 {R(j)}, {R(j)}, {mr}, v[{Bf+4*ct+j}:{Bf+4*ct+j+1}] op_sel:[0,1,0] op_sel_hi:[1,1,1]")
        for j in (0, 2): a(f"v_pk_mul_f32 {TT(j)}, {R(j)}, {R(j)}")
        for j in (0, 2): a(f"v_pk_fma_f32 {TT(j)}, {TT(j)}, v[22:23], v[22:23] op_sel:[0,0,1] op_sel_hi:[1,0,1]")
        for j in (0, 2): a(f"v_pk_mul_f32 {TT(j)}, {TT(j)}, {R(j)}")
        for j in range(4): a(f"v_exp_f32 v{T+j}, v{T+j}")
        for j in (0, 2): a(f"v_pk_add_f32 {TT(j)}, {TT(j)}, v[48:49] op_sel_hi:[1,0]")
        for j in range(4): a(f"v_rcp_f32 v{T+j}, v{T+j}")
        for j in (0, 2): a(f"v_pk_mul_f32 {R(j)}, {R(j)}, {TT(j)}")
    for i, (x, y) in enumerate(((0, 4), (16, 20), (8, 12), (24, 28))):
        tq = 176 + 4*i
        a(f"v_cvt_pk_bf16_f32 v{tq}, v{MACC+x}, v{MACC+x+1}\nv_cvt_pk_bf16_f32 v{tq+1}, v{MACC+x+2}, v{MACC+x+3}")
        a(f"v_cvt_pk_bf16_f32 v{tq+2}, v{MACC+y}, v{MACC+y+1}\nv_cvt_pk_bf16_f32 v{tq+3}, v{MACC+y+2}, v{MACC+y+3}")
    a.label("L_p2_nm")
    a(g1(kv_dma(sVs, 0, 65536) + kv_dma(sKs, 2, 32768)))
    a(f"s_mul_i32 s66, s{sRt0}, {AFS}\ns_lshl_b32 s{sT}, s{sC1}, 11\ns_add_u32 s66, s66, s{sT}\ns_add_u32 s66, s66, {AF + 128*1024}")
    a(f"s_add_u32 s67, s66, {AFS}\ns_cmp_lt_u32 s{sC1}, 21\ns_cselect_b32 s68, s66, s{sOOB}\ns_cselect_b32 s69, s67, s{sOOB}")
    a(f"s_cmp_lt_u32 s{sC1}, 22\ns_cselect_b32 s66, s66, s{sOOB}\ns_cselect_b32 s67, s67, s{sOOB}")

def h_stores():
    return [f"buffer_store_dwordx4 v[{176+4*i}:{179+4*i}], v{vL16}, s[{SWS}:{SWS+3}], s{sb} offen offset:{off}{SC}"
            for i, (sb, off) in enumerate(((66, 0), (67, 0), (68, 1024), (69, 1024)))]

vO, vS, vQ, vP, vF, NF, vCm, vT, vL, vTS, vK, vV, vDm, vNEG = 0, 64, 128, 160, 192, 8, 224, 232, 240, 242, 244, 245, 246, 247
sMk, sVr, sVw = 80, 88, 89
def rS(b, kt, qt): return vS + b*32 + (kt*2 + qt)*4
def rP(b, ks, qt): return vP + b*16 + (ks*2 + qt)*4
def rO(dt, qt): return vO + (dt*2 + qt)*4
def rQ(qt, ds): return vQ + (qt*4 + ds)*4
def rL(b, qt): return (vL if b == 0 else 238) + qt
def v_next(s):
    return f"s_add_u32 s{s}, s{s}, 16384\ns_cmp_eq_u32 s{s}, {144*1024}\ns_cselect_b32 s{s}, {64*1024}, s{s}"
def dma_block(first=False):
    o = []
    for add in (4, 5):
        pre = (f"s_add_u32 s{sT}, s{sIt}, {add}\ns_and_b32 s100, s{sT}, 3\ns_lshl_b32 s100, s100, 14\n"
               f"s_add_u32 m0, s100, s92\ns_lshl_b32 s101, s{sT}, 14\ns_add_u32 s101, s101, s{sKs}\ns_cmp_lt_i32 s{sT}, s{sNW}\ns_cselect_b32 s101, s101, {OOB}\n")
        for i in range(4):
            o.append((pre if i == 0 else "") + f"buffer_load_dwordx4 v{vL16}, s[{SWS}:{SWS+3}], s101 offen offset:{i*1024}{SC} lds")
    for add in (2, 3):
        pre = (v_next(sVw) + f"\ns_add_u32 s{sT}, s{sIt}, {add}\ns_add_u32 m0, s92, s{sVw}\n"
               f"s_lshl_b32 s101, s{sT}, 14\ns_add_u32 s101, s101, s{sVs}\ns_cmp_lt_i32 s{sT}, s{sNW}\ns_cselect_b32 s101, s101, {OOB}\n")
        for i in range(4):
            o.append((pre if i == 0 else "") + f"buffer_load_dwordx4 v{vL16}, s[{SWS}:{SWS+3}], s101 offen offset:{i*1024}{SC} lds")
    if not first: o.append(f"s_cmp_eq_u32 s{sIt}, 3\ns_cselect_b32 s100, s76, {OOB}\nbuffer_load_dword v249, v251, s[{SWO}:{SWO+3}], s100 offen")
    else: o.append(f"buffer_load_dword v249, v251, s[{SW2}:{SW2+3}], s7 offen")
    return o
def sync_odd(first=False):
    u = uid()
    return (f"s_cmp_eq_u32 s{sG}, 0\ns_cbranch_scc1 L_sa{u}\ns_waitcnt vmcnt(0)\ns_barrier\n" +
            f"s_add_u32 s{sT}, s{sIt}, 2\ns_cmp_ge_i32 s{sT}, s{sNW}\ns_cbranch_scc1 L_sb{u}\n" + "\n".join(dma_block(first) if first else dma_block()[:-1]) +
            f"\ns_branch L_sb{u}\nL_sa{u}:\ns_barrier\nL_sb{u}:")
def add_qk(S, tile, cnt, tagn="", c0=None):
    b = tile & 1
    if b == 0: S.add_sync(f"v_xor_b32 v{vK}, 0x8000, v{vK}{tagn}", drain=False)
    for kt in range(4):
        fr = []
        for ds in range(4):
            f = vF + (cnt[0] % NF)*4; cnt[0] += 1; fr.append(f)
            S.add_load(('K', tile, kt, ds), [f"ds_read_b128 v[{f}:{f+3}], v{vK} offset:{b*16384 + (kt*4+ds)*1024}{tagn}"], f)
        order = [(ds, qt) for qt in range(2) for ds in range(4)] if CHAIN else [(ds, qt) for ds in range(4) for qt in range(2)]
        for ds, qt in order:
            S.add_slot(mfma(rS(b, kt, qt), fr[ds], rQ(qt, ds), (c0 or vCm + 4*qt) if ds == 0 else None), [('K', tile, kt, ds)])
def add_pv(S, tile, cnt, nks=2):
    b = tile & 1
    S.add_sync(v_next(sVr) + f"\nv_add_u32 v{vV}, s{sVr}, v{vL16}", drain=False)
    if CHAIN:
        for dt in range(8):
            fr = []
            for ks in range(nks):
                f = vF + (cnt[0] % NF)*4; cnt[0] += 1; fr.append(f)
                S.add_load(('V', tile, ks, dt), [f"ds_read_b128 v[{f}:{f+3}], v{vV} offset:{(ks*8+dt)*1024}"], f)
            for qt in range(2):
                for ks in range(nks):
                    S.add_slot(mfma(rO(dt, qt), fr[ks], rP(b, ks, qt)), [('V', tile, ks, dt)])
        return
    for ks in range(nks):
        for dt in range(8):
            f = vF + (cnt[0] % NF)*4; cnt[0] += 1
            S.add_load(('V', tile, ks, dt), [f"ds_read_b128 v[{f}:{f+3}], v{vV} offset:{(ks*8+dt)*1024}"], f)
            for qt in range(2):
                S.add_slot(mfma(rO(dt, qt), f, rP(b, ks, qt)), [('V', tile, ks, dt)])
def sm_pairs(b):
    out = []
    for qt in range(2):
        for ks in range(2):
            for h in range(2):
                kt = 2*ks + h
                for j in range(2):
                    s = rS(b, kt, qt) + 2*j
                    out.append((s, s+1, rP(b, ks, qt) + 2*h + j, qt, ks == 0 and h == 0 and j == 0))
    return out
def row_max(a, b, D, U):
    for qt in range(2):
        regs = [rS(b, kt, qt) + r for kt in range(4) for r in range(4)]
        a(f"v_max3_f32 v{D+qt}, v{regs[0]}, v{regs[1]}, v{regs[2]}")
        for i in range(3, 15, 2): a(f"v_max3_f32 v{D+qt}, v{D+qt}, v{regs[i]}, v{regs[i+1]}")
        a(f"v_max_f32 v{D+qt}, v{D+qt}, v{regs[15]}")
    for sw in ("v_permlane16_swap_b32", "v_permlane32_swap_b32"):
        a(f"v_mov_b32 v{U}, v{D}\nv_mov_b32 v{U+1}, v{D+1}\ns_nop 1")
        a(f"{sw} v{D}, v{U}\n{sw} v{D+1}, v{U+1}")
        a(f"v_max_f32 v{D}, v{D}, v{U}\nv_max_f32 v{D+1}, v{D+1}, v{U+1}")
def exact(a, b):
    a.label(f"L_exact{b}")
    a("s_nop 7")
    a(f"s_cmp_eq_u32 s{sMask}, 0\ns_cbranch_scc1 L_exact_nm{b}")
    els = [(kt, qt, r) for kt in range(4) for qt in range(2) for r in range(4)]
    prs = [64, 66, 68, 70]
    for i in range(len(els) + 3):
        if i < len(els):
            kt, qt, r = els[i]
            a(f"v_cmp_ge_i32 s[{prs[i%4]}:{prs[i%4]+1}], v{vDm}, {16*(kt-qt)+r}")
        if i >= 3:
            kt, qt, r = els[i-3]; s = rS(b, kt, qt) + r
            if i >= len(els): a("s_nop 0")
            a(f"v_cndmask_b32 v{s}, v{vNEG}, v{s}, s[{prs[(i-3)%4]}:{prs[(i-3)%4]+1}]")
    a.label(f"L_exact_nm{b}")
    D, Fc, U = vT, vT+2, vT+4
    row_max(a, b, D, U)
    for qt in range(2):
        a(f"v_max_f32 v{D+qt}, s{sFloor}, v{D+qt}\nv_max_f32 v{Fc+qt}, 0, v{D+qt}\nv_exp_f32 v{Fc+qt}, -v{Fc+qt}")
    for (s0, s1, dp, qt, first) in sm_pairs(b):
        a(f"v_sub_f32 v{U}, v{s0}, v{D+qt}\nv_sub_f32 v{U+1}, v{s1}, v{D+qt}")
        a(f"v_exp_f32 v{U}, v{U}\nv_exp_f32 v{U+1}, v{U+1}\ns_nop 0")
        if first: a(f"v_add_f32 v{vTS+qt}, v{U}, v{U+1}")
        else: a(f"v_add_f32 v{vTS+qt}, v{vTS+qt}, v{U}\nv_add_f32 v{vTS+qt}, v{vTS+qt}, v{U+1}")
        a(f"v_cvt_pk_bf16_f32 v{dp}, v{U}, v{U+1}")
    for qt in range(2): a(f"v_fma_f32 v{rL(b^1,qt)}, v{rL(b,qt)}, v{Fc+qt}, v{vTS+qt}")
    a(f"s_cmp_lg_u32 s{sFloor}, 0\ns_cbranch_scc1 L_exact_no{b}")
    for dt in range(8):
        for qt in range(2):
            for r in range(4): a(f"v_mul_f32 v{rO(dt,qt)+r}, v{rO(dt,qt)+r}, v{Fc+qt}")
    a.label(f"L_exact_no{b}")
    a(f"s_cmp_lg_u32 s{sMask}, 0\ns_cbranch_scc1 L_exact_ns{b}")
    for kt in range(4):
        for qt in range(2):
            for r in range(4): a(f"v_sub_f32 v{rS(b^1,kt,qt)+r}, v{rS(b^1,kt,qt)+r}, v{D+qt}")
    for qt in range(2):
        for r in range(4): a(f"v_sub_f32 v{vCm+4*qt+r}, v{vCm+4*qt+r}, v{D+qt}")
    a.label(f"L_exact_ns{b}")
    a(f"s_mov_b32 s{sFloor}, 0\ns_nop 1\ns_setpc_b64 s[{sRet}:{sRet+1}]")
def first_block(a, extra):
    D, U = vT + 4, vT
    a("s_nop 3")
    row_max(a, 0, D, U)
    for qt in range(2):
        for r in range(4): a(f"v_sub_f32 v{vCm+4*qt+r}, 0, v{D+qt}")
    a(f"s_mov_b32 s{sFloor}, 0")
    S = Sched(lookahead=14, per_slot=1, wait_group=4)
    add_qk(S, 1, [0])
    for i, (s0, s1, dp, qt, first) in enumerate(sm_pairs(0)):
        t0 = vT + (i & 1)*2; acc = rL(1, qt)
        S.add_fill(2*i, f"v_sub_f32 v{t0}, v{s0}, v{D+qt}\nv_sub_f32 v{t0+1}, v{s1}, v{D+qt}\nv_exp_f32 v{t0}, v{t0}\nv_exp_f32 v{t0+1}, v{t0+1}")
        S.add_fill(2*i+1, (f"v_add_f32 v{acc}, v{t0}, v{t0+1}" if first else f"v_add_f32 v{acc}, v{acc}, v{t0}\nv_add_f32 v{acc}, v{acc}, v{t0+1}") +
                   f"\nv_cvt_pk_bf16_f32 v{dp}, v{t0}, v{t0+1}")
    for i, t in enumerate(extra): S.add_fill(5 + 7*i, t)
    for l in S.build()[0]: a(l)
def tail_block(a, b, odd):
    S = Sched(lookahead=14, per_slot=1, wait_group=4)
    add_pv(S, b ^ 1, [0])
    k0 = 2 if odd else 0
    items = []
    for (kt, qt) in ((k0, 0), (k0+1, 1)):
        for r in range(4):
            x = rS(b, kt, qt) + r
            items.append(f"v_cndmask_b32 v{x}, v{vNEG}, v{x}, s[{sMk+2*r}:{sMk+2*r+1}]")
    started = [False, False]; i = 0
    for qt in range(2):
        for kt in range(4):
            for j in range(2):
                dp = rP(b, kt >> 1, qt) + 2*(kt & 1) + j
                if kt > k0 + qt:
                    if kt <= k0 + 1: items.append(f"v_mov_b32 v{dp}, 0")
                    continue
                s0 = rS(b, kt, qt) + 2*j; t0 = vT + (i & 1)*2; i += 1
                items.append(f"v_exp_f32 v{t0}, v{s0}\nv_exp_f32 v{t0+1}, v{s0+1}")
                items.append((f"v_add_f32 v{vTS+qt}, v{vTS+qt}, v{t0}\nv_add_f32 v{vTS+qt}, v{vTS+qt}, v{t0+1}" if started[qt] else f"v_add_f32 v{vTS+qt}, v{t0}, v{t0+1}")
                             + f"\nv_cvt_pk_bf16_f32 v{dp}, v{t0}, v{t0+1}")
                started[qt] = True
    items.append(f"v_add_f32 v{vT+4}, v{vTS}, v{vTS+1}\nv_add_f32 v{rL(b^1,0)}, v{rL(b,0)}, v{vTS}")
    items.append(f"v_cmp_nge_f32 vcc, s{sThr}, v{vT+4}\nv_add_f32 v{rL(b^1,1)}, v{rL(b,1)}, v{vTS+1}")
    n = len(items)
    for i2, t in enumerate(items):
        if n <= 30: S.add_fill(i2, t)
        else: S.add_fill(min(31, i2 * 31 // n), ("s_nop 0\n" if t.startswith("v_add") else "") + t)
    for l in S.build()[0]: a(l)
def blk(a, fn, *args, fill=()):
    S = Sched(lookahead=14, per_slot=1, wait_group=4)
    fn(S, *args)
    for i, t in enumerate(fill): S.add_fill(i * 32 // len(fill), t)
    for l in S.build()[0]: a(l)

def attention(a, events, ev_mask, idle_post):
    a(f"v_xor_b32 v{vK}, 0x8000, v{vL16}")
    a(f"s_mov_b32 s{sVr}, {48*1024}\ns_mov_b32 s{sVw}, {64*1024}")
    a(f"s_mov_b32 s{sThr}, 0x53800000\ns_mov_b32 s{sFloor}, 0xff7fffff\ns_mov_b32 s{sMask}, 0\ns_mov_b32 s{sIt}, -1\ns_mov_b32 s79, 0")
    a(ev_mask)
    a(f"v_lshlrev_b32 v251, 7, v{vLANE}\ns_bfe_u32 s64, s2, 0x40003\ns_lshl_b32 s64, s64, 3\ns_and_b32 s65, s2, 7\ns_add_u32 s64, s64, s65")
    a(f"s_lshl_b32 s76, s64, 2\ns_add_u32 s76, s76, s{sRQ}\ns_lshl_b32 s76, s76, 13\ns_lshl_b32 s7, s64, 1\ns_add_u32 s7, s7, s{sRQ}\ns_lshl_b32 s7, s7, 13")
    a(f"s_cmp_lt_u32 s{sRQ}, 2\ns_cselect_b32 s7, s7, {OOB}\ns_cmp_ge_u32 s{sP}, 4\ns_cselect_b32 s7, s7, {OOB}\ns_cselect_b32 s76, s76, {OOB}")
    a("s_waitcnt vmcnt(12) lgkmcnt(0)\ns_barrier")
    stamp(a, 7)
    b = Asm()
    b(f"v_mov_b32 v{vNEG}, 0xf149f2ca")
    b(f"s_and_b32 s{sT}, s{sRQ}, 1\ns_lshl_b32 s{sT}, s{sT}, 5")
    b(f"v_and_b32 v{vT+1}, 15, v{vLANE}\nv_lshrrev_b32 v{vT}, 4, v{vLANE}\nv_lshlrev_b32 v{vT}, 2, v{vT}\nv_sub_u32 v{vT+1}, v{vT+1}, v{vT}\nv_add_u32 v{vDm}, s{sT}, v{vT+1}")
    for r in range(4): b(f"v_cmp_ge_i32 s[{sMk+2*r}:{sMk+2*r+1}], v{vT+1}, {r}")
    for r in list(range(vO, vO+64)) + [rL(0,0), rL(0,1)]: b(f"v_mov_b32 v{r}, 0")
    blk(a, add_qk, 0, [0], "", "0", fill=[l.strip() for l in b.lines])
    a(sync_odd(True))
    a(f"s_mov_b32 s{sIt}, 0")
    a(f"s_cmp_eq_u32 s{sN}, 1\ns_cbranch_scc1 L_att_n1")
    first_block(a, h_stores())
    a("s_branch L_att_i0")
    a.label("L_att_n1")
    for t in h_stores(): a(t)
    a(f"s_mov_b32 s{sMask}, 1\ns_call_b64 s[{sRet}:{sRet+1}], L_exact0")
    a.label("L_att_i0")
    a(f"s_mov_b32 s{sIt}, 1")
    a(f"s_cmp_eq_u32 s{sN}, 1\ns_cbranch_scc1 L_att_last0")
    a(f"s_cmp_eq_u32 s{sN}, 2\ns_cbranch_scc1 L_att_tail1")
    slow = []
    def steady_loop(g):
        S = Sched(lookahead=14, per_slot=1, wait_group=8)
        cnt = [0]
        its = list(range(1, 8))
        for it in its:
            base = len(S.slots); b = it & 1
            add_qk(S, it+1, cnt, " ;@k")
            add_pv(S, it-1, cnt)
            S.add_pre(base + 32, "; @mid")
            if b == 1:
                if g == 0: S.add_pre(base + 32, "s_barrier")
                else:
                    S.add_pre(base + 32, "s_waitcnt vmcnt(0)\ns_barrier")
                    for i, o in enumerate(dma_block()): S.add_fill(base + 32 + (i*ASP)//10, o)
            pos = [int(round(i * 3.75)) for i in range(17)]
            for i, (s0, s1, dp, qt, first) in enumerate(sm_pairs(b)):
                t0 = vT + (i & 1)*2; p = base + pos[i]; w = pos[i+1] - pos[i]
                S.add_fill(p, f"v_exp_f32 v{t0}, v{s0}")
                S.add_fill(p + 1, f"v_exp_f32 v{t0+1}, v{s1}")
                if first: S.add_fill(p + 2, f"v_add_f32 v{vTS+qt}, v{t0}, v{t0+1}")
                else: S.add_fill(p + 2, f"v_add_f32 v{vTS+qt}, v{vTS+qt}, v{t0}\nv_add_f32 v{vTS+qt}, v{vTS+qt}, v{t0+1}")
                S.add_fill(p + w - 1, f"v_cvt_pk_bf16_f32 v{dp}, v{t0}, v{t0+1}")
            S.add_fill(base + 60, f"v_add_f32 v{vT+4}, v{vTS}, v{vTS+1}\nv_add_f32 v{rL(b^1,0)}, v{rL(b,0)}, v{vTS}")
            S.add_fill(base + 61, f"v_cmp_nge_f32 vcc, s{sThr}, v{vT+4}\nv_add_f32 v{rL(b^1,1)}, v{rL(b,1)}, v{vTS+1}")
            S.add_fill(base + 62, f"s_add_u32 s{sIt}, s{sIt}, 1\ns_cmp_gt_u32 s{sIt}, s{78 if b == 0 else 77}")
        segs = S.build(cuts=[64*i for i in range(len(its))])
        body1, body0 = segs[3], segs[4]
        assert body1 == segs[5] and body0 == segs[6], "attention not periodic"
        si = [i for i, l in enumerate(body0) if "@mid" in l][0]
        for l in body0[si:]:
            if ";@k" in l: a(l)
        a.raw(".p2align 6")
        a.label(f"L_att_loop{g}")
        for body, b in ((body1, 1), (body0, 0)):
            for l in body: a(l)
            a(f"s_cbranch_vccnz L_att_sl{g}{b}")
            a.label(f"L_att_bk{g}{b}")
            a("s_cbranch_scc1 L_att_tail0" if b == 1 else f"s_cbranch_scc0 L_att_loop{g}")
            slow.append(f"L_att_sl{g}{b}:\ns_call_b64 s[{sRet}:{sRet+1}], L_exact{b}\ns_cmp_gt_u32 s{sIt}, s{78 if b == 0 else 77}\ns_branch L_att_bk{g}{b}")
        if g == 0:
            a(f"s_cmp_gt_u32 s{sIt}, s77\ns_cbranch_scc1 L_att_tail1")
            a(events)
            a("s_branch L_att_loop0")
        else: a("s_branch L_att_tail1")
    a(f"s_cmp_lg_u32 s{sG}, 0\ns_cbranch_scc1 L_att_g1")
    steady_loop(0)
    a.label("L_att_g1")
    a("s_setprio 1")
    steady_loop(1)
    for t in slow: a(t)
    for b in (1, 0):
        a.label(f"L_att_tail{b}")
        a("s_waitcnt lgkmcnt(0)")
        if b == 1: a(sync_odd())
        a(f"s_mov_b32 s{sMask}, 1\ns_bitcmp1_b32 s{sRQ}, 0\ns_cbranch_scc1 L_att_to{b}")
        tail_block(a, b, False)
        a(f"s_branch L_att_tc{b}")
        a.label(f"L_att_to{b}")
        tail_block(a, b, True)
        a.label(f"L_att_tc{b}")
        a(f"s_cbranch_vccz L_att_tk{b}\ns_call_b64 s[{sRet}:{sRet+1}], L_exact{b}")
        a.label(f"L_att_tk{b}")
        a(f"s_add_u32 s{sIt}, s{sIt}, 1")
        a.label(f"L_att_last{b}")
        if b == 0: a(sync_odd())
        a(f"s_bitcmp1_b32 s{sRQ}, 0\ns_cbranch_scc1 L_att_lo{b}")
        blk(a, add_pv, b, [0], 1)
        a(f"s_branch L_att_le{b}")
        a.label(f"L_att_lo{b}")
        blk(a, add_pv, b, [0], 2)
        a.label(f"L_att_le{b}")
        if b == 0: a(f"v_mov_b32 v{rL(0,0)}, v{rL(1,0)}\nv_mov_b32 v{rL(0,1)}, v{rL(1,1)}\ns_add_u32 s{sIt}, s{sIt}, 1")
        a("s_branch L_att_epi")
    exact(a, 0); exact(a, 1)
    a.label("L_att_epi")
    stamp(a, 8)
    a("s_setprio 0")
    U = vT
    for sw in ("v_permlane16_swap_b32", "v_permlane32_swap_b32"):
        a(f"v_mov_b32 v{U}, v{vL}\nv_mov_b32 v{U+1}, v{vL+1}\ns_nop 1")
        a(f"{sw} v{vL}, v{U}\n{sw} v{vL+1}, v{U+1}")
        a(f"v_add_f32 v{vL}, v{vL}, v{U}\nv_add_f32 v{vL+1}, v{vL+1}, v{U+1}")
    a(f"v_rcp_f32 v{vL}, v{vL}\nv_rcp_f32 v{vL+1}, v{vL+1}")
    a(f"s_mul_i32 s100, s{sRt0}, {AFS}\ns_lshl_b32 s{sT}, s{sH}, 12\ns_add_u32 s100, s100, s{sT}\ns_add_u32 s100, s100, {AF}\ns_add_u32 s101, s100, {AFS}")
    n = 0
    for qt in range(2):
        sel = " op_sel_hi:[1,0]" if qt == 0 else " op_sel:[0,1] op_sel_hi:[1,1]"
        for s in range(4):
            tq = vF + (n % 4)*4; n += 1
            for k, d in enumerate((2*s, 2*s+1)):
                r = rO(d, qt)
                for j in (0, 2): a(pk("mul", r+j, f"v[{r+j}:{r+j+1}]", f"v[{vL}:{vL+1}]", sel))
            for k, d in enumerate((2*s, 2*s+1)):
                r = rO(d, qt)
                a(f"v_cvt_pk_bf16_f32 v{tq+2*k}, v{r}, v{r+1}\nv_cvt_pk_bf16_f32 v{tq+2*k+1}, v{r+2}, v{r+3}")
            a(f"buffer_store_dwordx4 v[{tq}:{tq+3}], v{vL16}, s[{SWS}:{SWS+3}], s{100+qt} offen offset:{s*1024}{SC}")
    stamp(a, 9)
    a(f"s_add_u32 s{sIt}, s{sIt}, 1")
    a.label("L_att_idle")
    a(f"s_cmp_ge_u32 s{sIt}, s{sNW}\ns_cbranch_scc1 L_att_done")
    a(sync_odd())
    a(idle_post)
    a(f"s_add_u32 s{sIt}, s{sIt}, 2\ns_branch L_att_idle")
    a.label("L_att_done")

def c_ids(sig, rb, cb):
    return (f"s_and_b32 s{sig}, s2, 3\ns_bfe_u32 s{rb}, s2, 0x10002\ns_lshl_b32 s{rb}, s{rb}, 3\ns_bfe_u32 s{sT}, s2, 0x30003\ns_add_u32 s{rb}, s{rb}, s{sT}\ns_lshr_b32 s{cb}, s2, 6")
def events():
    b = Asm()
    b(f"s_cmp_lg_u32 s{sIt}, 9\ns_cbranch_scc1 L_ev0\ns_waitcnt vmcnt(0)\ns_mov_b32 s78, s77\ns_branch L_ev9")
    b.label("L_ev0")
    b("s_mov_b32 s78, 8")
    b(c_ids(64, 65, 66))
    b(f"s_lshl_b32 s65, s65, 2\ns_add_u32 s65, s65, s66\ns_lshl_b32 s65, s65, 17\ns_add_u32 s65, s65, {EX}")
    b(f"s_lshl_b32 s66, s64, 13\ns_add_u32 s65, s65, s66\ns_lshl_b32 s66, s{sW}, 11\ns_add_u32 s65, s65, s66")
    for r in range(248, 252): b(f"v_mov_b32 v{r}, -1")
    for i in range(1, 4):
        b(f"s_add_u32 s{sT}, s64, {i}\ns_and_b32 s{sT}, s{sT}, 3\ns_lshl_b32 s{sT}, s{sT}, 15\ns_add_u32 s{sT}, s{sT}, s65")
        for j in range(2): b(f"buffer_store_dwordx4 v[248:251], v{vL16}, s[{SWS}:{SWS+3}], s{sT} offen offset:{j*1024}{SC}")
    b.label("L_ev9")
    return b.text()
def ev_mask(): return f"s_sub_u32 s77, s{sN}, 2\ns_cmp_eq_u32 s{sG}, 0\ns_cselect_b32 s78, 4, s77"
def idle_post():
    return (f"s_cmp_lg_u32 s79, 0\ns_cbranch_scc1 L_ip9\ns_cmp_lt_u32 s{sIt}, 9\ns_cbranch_scc1 L_ip9\ns_mov_b32 s79, 1\n" + with_regs(publish(3, 4), {248: 0, 251: 1}) + "\nL_ip9:")

def phase_c(a):
    sSig, sRb, sCb, sAs, sWs, sLw, sIdx = 56, 57, 58, 59, 60, 62, 63
    ACC, FA, NA, FW, NW = 0, 32, 8, 64, 4
    vA0, vWb, vAa, vWa, vDq = 224, 225, 228, 229, 232
    t = 236
    a(c_ids(sSig, sRb, sCb))
    a(f"s_sub_u32 s100, 15, s{sRb}\ns_min_u32 s100, s100, s{sRb}")
    a(f"v_and_b32 v{t}, 31, v{vLANE}\nv_lshl_add_u32 v{vPA}, v{t}, 3, s100")
    a(f"s_and_b32 s101, s2, 4\ns_lshl_b32 s101, s101, 5\ns_bfe_u32 s{sT}, s2, 0x20003\ns_lshl_b32 s{sT}, s{sT}, 3\ns_add_u32 s101, s101, s{sT}\ns_lshr_b32 s{sT}, s2, 5\ns_add_u32 s101, s101, s{sT}")
    a(f"v_and_b32 v{t}, 3, v{vLANE}\nv_lshl_add_u32 v{t}, v{t}, 5, s101\nv_cmp_gt_u32 vcc, 32, v{vLANE}\ns_nop 1\nv_cndmask_b32 v{vPA}, v{t}, v{vPA}, vcc\n" + flag_addr())
    w_dma_voff(a, vDq, 1024, t)
    a(f"s_and_b32 s{sT}, s{sW}, 1\ns_lshl_b32 s{sT}, s{sT}, 13\nv_add_u32 v{vA0}, s{sT}, v{vL16}")
    a(f"v_lshrrev_b32 v{t}, 2, v{vLANE}\nv_lshlrev_b32 v{t+1}, 8, v{t}\nv_and_b32 v{t+2}, 3, v{vLANE}\nv_lshl_add_u32 v{t+1}, v{t+2}, 3, v{t+1}\nv_add_u32 v{t+1}, 16384, v{t+1}")
    a(f"v_and_b32 v{t}, 7, v{t}\ns_and_b32 s{sT}, s{sW}, 6")
    a(f"v_xor_b32 v{t+2}, s{sT}, v{t}\nv_lshl_add_u32 v{vWb}, v{t+2}, 5, v{t+1}\nv_xor_b32 v{vWb+1}, 32, v{vWb}")
    a(f"s_lshl_b32 s97, s{sRb}, 3\ns_add_u32 s97, s97, s{sW}\ns_mul_i32 s97, s97, {AFS}\ns_add_u32 s97, s97, {AF}")
    a(f"s_lshl_b32 s98, s{sW}, 13\ns_lshl_b32 s{sT}, s{sCb}, 8\ns_add_u32 s98, s98, s{sT}")
    a(f"s_lshl_b32 s{sLw}, s{sW}, 11\ns_mul_i32 s99, s{sSig}, 11")
    NST = 22
    def dma(st):
        sl = (st % 5) * 32768
        o = []
        if st < 6:
            pre = (f"s_add_u32 s{sIdx}, s99, {2*st}\ns_lshl_b32 s{sAs}, s{sIdx}, 10\ns_add_u32 s{sAs}, s{sAs}, s97\ns_add_u32 s{sAs}, s{sAs}, {128*1024}\n"
                   f"s_lshl_b32 s{sWs}, s{sIdx}, 15\ns_add_u32 s{sWs}, s{sWs}, s98\n")
            srdw = SW2
        else:
            pre = (f"s_lshl_b32 s{sIdx}, s{sCb}, 3\ns_add_u32 s{sIdx}, s{sIdx}, {2*(st-6)}\ns_and_b32 s{sIdx}, s{sIdx}, 31\ns_lshl_b32 s{sAs}, s{sSig}, 5\ns_add_u32 s{sIdx}, s{sIdx}, s{sAs}\n"
                   f"s_lshl_b32 s{sAs}, s{sIdx}, 10\ns_add_u32 s{sAs}, s{sAs}, s97\ns_lshl_b32 s{sWs}, s{sIdx}, 15\ns_add_u32 s{sWs}, s{sWs}, s98\n")
            srdw = SWO
        o.append(pre + f"s_add_u32 m0, s{sLw}, {sl + 16384}\ns_add_u32 s{sT}, s{sWs}, {4096 - 1024}\n"
                 f"buffer_load_dwordx4 v{vDq}, s[{srdw}:{srdw+3}], s{sWs} offen lds")
        o.append(f"buffer_load_dwordx4 v{vDq+1}, s[{srdw}:{srdw+3}], s{sT} offen offset:1024 lds")
        if st == 5:
            o.append(f"s_cmp_lt_u32 s{sSig}, 3\ns_cselect_b32 s{sAs}, s{sAs}, {OOB}\ns_add_u32 m0, s{sLw}, {sl}\ns_mov_b32 s{sT}, {OOB}\n"
                     f"buffer_load_dwordx4 v{vL16}, s[{SWS}:{SWS+3}], s{sAs} offen{SC} lds")
            o.append(f"buffer_load_dwordx4 v{vL16}, s[{SWS}:{SWS+3}], s{sT} offen offset:1024{SC} lds")
        else:
            o.append(f"s_add_u32 m0, s{sLw}, {sl}\ns_nop 0\nbuffer_load_dwordx4 v{vL16}, s[{SWS}:{SWS+3}], s{sAs} offen{SC} lds")
            o.append(f"buffer_load_dwordx4 v{vL16}, s[{SWS}:{SWS+3}], s{sAs} offen offset:1024{SC} lds")
        return o
    a(f"s_cmp_lt_u32 s{sW}, 4\ns_cbranch_scc1 L_c_g0")
    a(poll_issue() + "\ns_waitcnt vmcnt(0)\n" + poll_check(3))
    for st in range(2):
        for o in dma(st): a(o)
    a(f"s_sub_u32 s97, s97, {4*AFS}\ns_sub_u32 s98, s98, {4*8192}\ns_sub_u32 s{sLw}, s{sLw}, 8192")
    for st in range(2):
        for o in dma(st): a(o)
    a(f"s_add_u32 s97, s97, {4*AFS}\ns_add_u32 s98, s98, {4*8192}\ns_add_u32 s{sLw}, s{sLw}, 8192")
    a.label("L_c_g0")
    a("s_waitcnt vmcnt(0)\ns_barrier")
    a(publish(4))
    stamp(a, 10)
    for st in range(2, 4):
        for o in dma(st): a(o)
    a(f"s_lshl_b32 s{sT}, s{sSig}, 6\ns_add_u32 s{sT}, s{sT}, s100\nv_and_b32 v{vPA}, 7, v{vLANE}\nv_lshl_add_u32 v{vPA}, v{vPA}, 3, s{sT}\n" + flag_addr())
    S = Sched(lookahead=10, per_slot=2)
    na = nw = 0
    for st in range(NST):
        sl = (st % 5) * 32768
        S.add_sync(f"v_add_u32 v{vAa}, {sl}, v{vA0}\nv_add_u32 v{vWa}, {sl}, v{vWb}\nv_add_u32 v{vWa+1}, {sl}, v{vWb+1}", drain=False)
        base = len(S.slots)
        for ks in range(2):
            wf = [FW + ((nw + i) % NW)*4 for i in range(2)]; nw += 2
            af = [FA + ((na + i) % NA)*4 for i in range(4)]; na += 4
            def ldw(ct):
                S.add_load(('W', st, ks, ct), [f"ds_read_b64_tr_b16 v[{wf[ct]}:{wf[ct]+1}], v{vWa+ct} offset:{ks*8192}",
                                               f"ds_read_b64_tr_b16 v[{wf[ct]+2}:{wf[ct]+3}], v{vWa+ct} offset:{ks*8192+4096}"], wf[ct])
            def lda(rt):
                S.add_load(('A', st, ks, rt), [f"ds_read_b128 v[{af[rt]}:{af[rt]+3}], v{vAa} offset:{(rt*2+ks)*1024}"], af[rt])
            ldw(0); lda(0); ldw(1); lda(1); lda(2); lda(3)
            for rt in range(4):
                for ct in range(2):
                    S.add_slot(mfma(ACC + (rt*2+ct)*4, wf[ct], af[rt], "0" if st == 0 and ks == 0 else None), [('W', st, ks, ct), ('A', st, ks, rt)])
        if st + 1 < NST:
            left = min(NST - 1, st + 3) - (st + 1)
            pl = poll_one(4) + "\n" if st == 2 else ""
            S.add_pre(base + 2, pl + f"s_waitcnt vmcnt({4*left})\ns_barrier\n" + (stamp_txt(16 + st//2, 5) if st % 2 == 0 else ""))
            if st + 4 < NST:
                for i, o in enumerate(dma(st + 4)): S.add_fill(base + 2 + CSP*i, o)
        if st == NST - 2:
            x = Asm()
            x(f"v_and_b32 v{t}, 15, v{vLANE}\nv_lshrrev_b32 v{t+1}, 4, v{vLANE}\nv_lshlrev_b32 v{t+2}, 9, v{t+1}\nv_lshl_add_u32 v{t+2}, v{t}, 4, v{t+2}")
            x(f"v_lshlrev_b32 v{t+3}, 10, v{t}\nv_lshl_add_u32 v{t+3}, v{t+1}, 4, v{t+3}")
            x(f"v_and_b32 v{t+4}, 1, v{t+1}\nv_lshlrev_b32 v{t+4}, 9, v{t+4}\nv_lshl_add_u32 v{t+4}, v{t}, 4, v{t+4}\nv_lshrrev_b32 v{t}, 1, v{t+1}\nv_lshl_add_u32 v{t+4}, v{t}, 3, v{t+4}")
            x(f"v_lshlrev_b32 v{t+1}, 4, v{t+1}")
            x(f"s_lshl_b32 s98, s{sRb}, 7\ns_lshl_b32 s{sT}, s{sW}, 4\ns_add_u32 s98, s98, s{sT}\ns_lshl_b32 s98, s98, 10\ns_lshl_b32 s99, s{sCb}, 8\ns_lshl_b32 s{sT}, s{sSig}, 6\ns_add_u32 s99, s99, s{sT}\ns_add_u32 s98, s98, s99")
            x(f"buffer_load_dwordx4 v[100:103], v{t+3}, s[{SX}:{SX+3}], s98 offen")
            x(f"buffer_load_dwordx4 v[104:107], v{t+1}, s[{SB2}:{SB2+3}], s99 offen")
            x(f"v_and_b32 v{vPA}, 3, v{vLANE}\nv_max_u32 v{vPA}, 1, v{vPA}\nv_add_u32 v{vPA}, s{sSig}, v{vPA}\nv_and_b32 v{vPA}, 3, v{vPA}\nv_lshl_add_u32 v{vPA}, v{vPA}, 5, s101\n" + flag_addr())
            x(f"s_lshl_b32 s97, s{sRb}, 2\ns_add_u32 s97, s97, s{sCb}\ns_lshl_b32 s97, s97, 17\ns_add_u32 s97, s97, {EX}")
            x(f"s_lshl_b32 s{sT}, s{sSig}, 15\ns_add_u32 s99, s97, s{sT}\ns_lshl_b32 s{sT}, s{sW}, 12\ns_add_u32 s99, s99, s{sT}")
            ls = [l.strip() for l in x.lines]
            for i, l in enumerate(ls): S.add_fill(base + 4 + i * 24 // len(ls), l)
    for l in S.build()[0]: a(l)
    stamp(a, 12)
    a(publish(5))
    a(f"s_lshr_b32 s{sT}, s{sW}, 1\ns_cmp_eq_u32 s{sT}, s{sSig}\ns_cbranch_scc1 L_c_own")
    a("s_nop 3")
    for rt in range(4):
        r = ACC + rt*8; q = 80 + rt*4
        for k in range(4): a(f"v_cvt_pk_bf16_f32 v{q+k}, v{r+2*k}, v{r+2*k+1}")
        a(f"buffer_store_dwordx4 v[{q}:{q+3}], v{vL16}, s[{SWS}:{SWS+3}], s99 offen offset:{rt*1024}{SC}")
    a("s_branch L_c_st")
    a.label("L_c_own")
    a(f"v_add_u32 v{t}, {4*32768}, v{vA0}\ns_nop 3")
    for q in range(8): a(f"ds_write_b128 v{t}, v[{ACC+4*q}:{ACC+4*q+3}] offset:{q*1024}")
    a.label("L_c_st")
    a(f"s_lshl_b32 s99, s{sSig}, 13\ns_lshl_b32 s{sT}, s{sW}, 10\ns_add_u32 s99, s99, s{sT}\ns_add_u32 s97, s97, s99")
    a(f"s_lshl_b32 s{sT}, s{sW}, 11\ns_add_u32 s{sT}, s{sT}, {4*32768}\nv_add_u32 v{t}, s{sT}, v{t+2}")
    a(f"s_lshl_b32 s99, s{sSig}, 1\ns_add_u32 s99, s99, 1")
    a(poll_one(5, "s99") + "\ns_waitcnt lgkmcnt(0)\ns_barrier")
    stamp(a, 29, 5)
    a(f"ds_read_b128 v[32:35], v{t}\nds_read_b128 v[36:39], v{t} offset:256")
    a("s_mov_b32 s101, 0")
    a.label("L_c_rd")
    for i in range(1, 4):
        a(f"s_add_u32 s{sT}, s{sSig}, {i}\ns_and_b32 s{sT}, s{sT}, 3\ns_lshl_b32 s{sT}, s{sT}, 15\ns_add_u32 s{sT}, s{sT}, s97")
        a(f"buffer_load_dwordx2 v[{40+4*i}:{41+4*i}], v{t+4}, s[{SWS}:{SWS+3}], s{sT} offen{SC}")
        a(f"buffer_load_dwordx2 v[{42+4*i}:{43+4*i}], v{t+4}, s[{SWS}:{SWS+3}], s{sT} offen offset:256{SC}")
    a("s_waitcnt vmcnt(0)")
    a("v_max_u32 v64, v44, v45")
    for i in range(46, 56, 2): a(f"v_max3_u32 v64, v64, v{i}, v{i+1}")
    a("v_cmp_eq_u32 vcc, -1, v64\ns_cbranch_vccz L_c_ok")
    a("s_add_u32 s101, s101, 1\ns_cmp_gt_u32 s101, 0x20000\ns_cbranch_scc1 L_c_ok\ns_sleep 4\ns_branch L_c_rd")
    a.label("L_c_ok")
    unpack8(a, 100, 108); unpack8(a, 104, 116)
    for i in range(0, 8, 2): a(pk("add", 108+i, f"v[{108+i}:{109+i}]", f"v[{116+i}:{117+i}]"))
    a("s_waitcnt lgkmcnt(0)")
    for i in range(0, 8, 2): a(pk("add", 108+i, f"v[{108+i}:{109+i}]", f"v[{32+i}:{33+i}]"))
    for k in range(1, 4):
        unpack8(a, 40+4*k, 116)
        for i in range(0, 8, 2): a(pk("add", 108+i, f"v[{108+i}:{109+i}]", f"v[{116+i}:{117+i}]"))
    for i in range(4): a(f"v_cvt_pk_bf16_f32 v{100+i}, v{108+2*i}, v{109+2*i}")
    a(f"buffer_store_dwordx4 v[100:103], v{t+3}, s[{SOUT}:{SOUT+3}], s98 offen")
    if PROF: a("s_waitcnt vmcnt(0)")
    stamp(a, 13)
    if os.environ.get("DBGOUT"):
        wg = int(os.environ["DBGOUT"])
        a(f"s_cmp_lg_u32 s2, {wg}\ns_cbranch_scc1 L_end\ns_cmp_lg_u32 s{sW}, 0\ns_cbranch_scc1 L_end")
        a(f"s_waitcnt vmcnt(0)\nv_lshlrev_b32 v1, 3, v{vLANE}\ns_mov_b32 s56, {STAMP + wg*8*256}")
        a(f"buffer_load_dword v2, v1, s[{SWS}:{SWS+3}], s56 offen sc1\ns_waitcnt vmcnt(0)")
        a("v_readfirstlane_b32 s57, v2\ns_nop 3\nv_subrev_u32 v2, s57, v2")
        a(f"v_lshlrev_b32 v1, 2, v{vLANE}\nv_cmp_gt_u32 vcc, 16, v{vLANE}\ns_and_saveexec_b64 s[58:59], vcc")
        a(f"buffer_store_dword v2, v1, s[{SDBG}:{SDBG+3}], 0 offen")

def build():
    head = open("cdna_kernels/" + NAME + ".s.ref").read().split("; Override launch")[0]
    name = NAME + "_kernel"
    out = head + "; @launch grid=(256,1,1) block=(512,1,1) lds=163840\n"
    out += '.amdgcn_target "amdgcn-amd-amdhsa--gfx950"\n.text\n'
    a = Asm()
    a.raw(f".globl {name}\n.p2align 8\n.type {name},@function\n{name}:")
    b = Asm(); p2_merged(b)
    phase1(a)
    a.lines += b.lines
    stamp(a, 6)
    attention(a, events(), ev_mask(), idle_post())
    phase_c(a)
    a.label("L_end")
    a("s_endpgm")
    t = a.text()
    for p in lint(t): print("LINT", p, file=sys.stderr)
    out += t + '.section .rodata,"a"\n.p2align 6\n'
    out += (f".amdhsa_kernel {name}\n  .amdhsa_next_free_vgpr 256\n  .amdhsa_next_free_sgpr 102\n  .amdhsa_accum_offset 256\n"
            "  .amdhsa_group_segment_fixed_size 0\n  .amdhsa_kernarg_size 112\n  .amdhsa_user_sgpr_count 2\n"
            "  .amdhsa_user_sgpr_kernarg_segment_ptr 1\n  .amdhsa_system_sgpr_workgroup_id_x 1\n.end_amdhsa_kernel\n")
    return out

if __name__ == "__main__":
    open(sys.argv[1], "w").write(build())
```

```python
import sys, re, os, struct
from asmlib import *

NAME = "parallel_sum__compressed_kv_cla__mixer_channel_mlp__prompt"
MB = 1 << 20
XNF, STAT, FLG, KF, VF, AF, EX, STAMP = 0, 2*MB, 3*MB, 4*MB, 20*MB, 36*MB, 64*MB, 96*MB
AFS = 171 * 1024
WS_BYTES = 268435456
OOB = 0x40000000
PROF = int(os.environ.get("PROF", "0"))
SC = " sc1"
TLB = int(os.environ.get("TLB", "1"))
T0 = int(os.environ.get("T0", "0"))
CB2 = int(os.environ.get("CB2", "0"))
STG = int(os.environ.get("STG", "0"))
P1WG = int(os.environ.get("P1WG", "4"))
CWG = int(os.environ.get("CWG", "4"))
CCH = int(os.environ.get("CCH", "0"))
XE = int(os.environ.get("XE", "2"))
CHAIN = int(os.environ.get("CHAIN", "0"))
VB = int(os.environ.get("VB", "1"))
P1PRIO = int(os.environ.get("P1PRIO", "0"))
CSP = int(os.environ.get("CSP", "4"))
ASP = int(os.environ.get("ASP", "10"))
TW = int(os.environ.get("TW", "13"))
LATE = int(os.environ.get("LATE", "8"))
LIN = int(os.environ.get("LIN", "0"))
EARLY = int(os.environ.get("EARLY", "0"))
def fb(x): return "0x%08x" % struct.unpack("<I", struct.pack("<f", x))[0]

sW, sH, sP, sF = 3, 4, 5, 6
SX, SCKV, SWQ, SWKV, SWO, SW1, SW2, SB1, SB2, SOUT, SDBG, SWS = 8, 12, 16, 20, 24, 28, 32, 36, 40, 44, 48, 52
sCnt, sT, sRet, sSpin = 92, 93, 94, 90
vLANE, vL16 = 255, 254
vPA, vPV = 250, 249
_u = [0]
def uid():
    _u[0] += 1; return _u[0]

def stamp_txt(idx, level=1, dyn=None):
    if PROF == 0 or (level > 1 and PROF != level): return ""
    return ("s_memrealtime s[72:73]\ns_memtime s[74:75]\ns_waitcnt lgkmcnt(0)\nv_mov_b32 v252, s72\nv_mov_b32 v253, s74\n"
            f"s_lshl_b32 s75, s2, 3\ns_add_u32 s75, s75, s{sW}\ns_lshl_b32 s75, s75, 8\ns_add_u32 s75, s75, {STAMP + idx*8}\n"
            + (f"s_lshl_b32 s74, s{dyn}, 3\ns_sub_u32 s75, s75, s74\n" if dyn else "") +
            f"s_mov_b64 s[72:73], exec\ns_mov_b64 exec, 1\nbuffer_store_dwordx2 v[252:253], v{vLANE}, s[{SWS}:{SWS+3}], s75 offen\ns_mov_b64 exec, s[72:73]\n")
def stamp(a, idx, level=1): a(stamp_txt(idx, level))

def srd(a, d, ptr, nbytes):
    a(f"s_mov_b32 s{d}, s{ptr}\ns_and_b32 s{d+1}, s{ptr+1}, 0xffff\ns_mov_b32 s{d+2}, {nbytes}\ns_mov_b32 s{d+3}, 0x20000")

def resolve_vm(lines):
    out = []; ops = []
    for l in lines:
        for s in l.split("\n"):
            s = s.strip()
            if s.startswith("@vmwait"):
                tag = s.split()[1]
                idx = max(i for i, t in enumerate(ops) if t[0] == tag)
                n = sum(c for _, c in ops[idx+1:])
                assert n <= 63
                out.append(f"s_waitcnt vmcnt({n})")
            else:
                m = re.search(r";@vm (\S+)", s)
                if m: ops.append((m.group(1), 1))
                m = re.search(r";@mk (\S+)", s)
                if m: ops.append((m.group(1), 0))
                out.append(s)
    return out

def publish(val, wave=0):
    u = uid()
    if val == 1:
        st = f"v_mov_b32 v251, s{sF}\n", f"buffer_store_byte v248, v251, s[{SDBG}:{SDBG+3}], 0 offen sc1\n"
    else:
        st = f"s_lshl_b32 s{sT}, s{sF}, 7\ns_add_u32 s{sT}, s{sT}, {FLG}\nv_mov_b32 v251, s{sT}\n", f"buffer_store_dword v248, v251, s[{SWS}:{SWS+3}], 0 offen sc1\n"
    return (f"s_cmp_lg_u32 s{sW}, {wave}\ns_cbranch_scc1 L_pub{u}\nv_mov_b32 v248, {val}\n" + st[0] +
            "s_mov_b64 s[72:73], exec\ns_mov_b64 exec, 1\n" + st[1] + f"s_mov_b64 exec, s[72:73]\nL_pub{u}:")
def flag_addr(): return f"v_lshlrev_b32 v{vPA}, 7, v{vPA}\nv_add_u32 v{vPA}, {FLG}, v{vPA}"
def poll_issue(): return f"buffer_load_dword v{vPV}, v{vPA}, s[{SWS}:{SWS+3}], 0 offen sc1"
def poll_check(thr):
    u = uid()
    return (f"s_mov_b32 s{sSpin}, 0\nL_pl{u}:\nv_cmp_gt_u32 vcc, {thr}, v{vPV}\ns_cbranch_vccz L_pd{u}\n"
            f"s_add_u32 s{sSpin}, s{sSpin}, 1\ns_cmp_gt_u32 s{sSpin}, 0x40000\ns_cbranch_scc1 L_pd{u}\n"
            f"s_sleep 4\n{poll_issue()}\ns_waitcnt vmcnt(0)\ns_branch L_pl{u}\nL_pd{u}:")
def poll_one(thr, wave=0):
    u = uid()
    return (f"s_cmp_lg_u32 s{sW}, {wave}\ns_cbranch_scc1 L_po{u}\n" + poll_issue() + "\ns_waitcnt vmcnt(0)\n" + poll_check(thr) + f"\nL_po{u}:")
def poll2_issue(): return f"buffer_load_dword v{vPV}, v{vPA}, s[{SDBG}:{SDBG+3}], 0 offen sc1"
def poll2_check():
    u = uid()
    return (f"s_mov_b32 s{sSpin}, 0\nL_pl{u}:\nv_cmp_ne_u32 vcc, 0x01010101, v{vPV}\ns_cbranch_vccz L_pd{u}\n"
            f"s_add_u32 s{sSpin}, s{sSpin}, 1\ns_cmp_gt_u32 s{sSpin}, 0x40000\ns_cbranch_scc1 L_pd{u}\n"
            f"s_sleep 8\n{poll2_issue()}\ns_waitcnt vmcnt(0)\ns_branch L_pl{u}\nL_pd{u}:")
def with_regs(txt, m):
    for k, v in m.items(): txt = re.sub(rf"\bv{k}\b", f"v{v}", txt)
    return txt

def unpack8(a, src, dst):
    for i in range(4):
        a(f"v_lshlrev_b32 v{dst+2*i}, 16, v{src+i}\nv_and_b32 v{dst+2*i+1}, 0xffff0000, v{src+i}")
def w_dma_voff(a, v, stride, t):
    a(f"v_lshrrev_b32 v{t}, 4, v{vLANE}\nv_bfe_u32 v{t+1}, v{vLANE}, 1, 3\nv_xor_b32 v{t+1}, v{t+1}, v{t}\nv_lshlrev_b32 v{t+1}, 5, v{t+1}")
    a(f"v_and_b32 v{t+2}, 1, v{vLANE}\nv_lshl_add_u32 v{t+1}, v{t+2}, 4, v{t+1}\nv_mul_u32_u24 v{t}, {stride}, v{t}")
    a(f"v_add_u32 v{v}, v{t}, v{t+1}\nv_xor_b32 v{t+1}, 128, v{t+1}\nv_add_u32 v{v+1}, v{t}, v{t+1}")
def w_read_addr(a, v, n, base_s, dt0_s, t):
    a(f"v_lshrrev_b32 v{t}, 4, v{vLANE}\nv_bfe_u32 v{t+1}, v{vLANE}, 2, 2")
    a(f"v_lshl_add_u32 v{t+2}, v{t}, 3, v{t+1}\nv_lshlrev_b32 v{t+2}, 8, v{t+2}")
    a(f"v_and_b32 v{t+3}, 3, v{vLANE}\nv_lshl_add_u32 v{t+2}, v{t+3}, 3, v{t+2}\nv_add_u32 v{t+2}, s{base_s}, v{t+2}")
    a(f"v_and_b32 v{t}, 1, v{t}\nv_lshl_or_b32 v{t}, v{t}, 2, v{t+1}")
    for i in range(n):
        a(f"s_add_u32 s{sT}, s{dt0_s}, {i}\nv_xor_b32 v{t+3}, s{sT}, v{t}\nv_lshl_add_u32 v{v+i}, v{t+3}, 5, v{t+2}")
def interleave(x, y):
    out = []
    for i in range(max(len(x), len(y))):
        if i < len(x): out.append(x[i])
        if i < len(y): out.append(y[i])
    return out

def ln_row(B, nop=0):
    a = Asm()
    pk, x, t = B, B+4, B+12
    m, s, u, r, d = t, t+1, t+2, t+3, t+4
    def allreduce(v):
        for mode in ("quad_perm:[1,0,3,2]", "quad_perm:[2,3,0,1]", "row_half_mirror", "row_mirror"):
            a(f"s_nop {nop}\nv_add_f32_dpp v{v}, v{v}, v{v} {mode} row_mask:0xf bank_mask:0xf")
        for sw in ("v_permlane16_swap_b32", "v_permlane32_swap_b32"):
            a(f"v_mov_b32 v{u}, v{v}\ns_nop {nop}\n{sw} v{v}, v{u}\nv_add_f32 v{v}, v{v}, v{u}")
    def rbf(v): a(f"v_cvt_pk_bf16_f32 v{v}, v{v}, v{v}\nv_lshlrev_b32 v{v}, 16, v{v}")
    def stats():
        a(f"v_add_f32 v{m}, v{x}, v{x+1}\nv_add_f32 v{s}, v{x+2}, v{x+3}\nv_add_f32 v{u}, v{x+4}, v{x+5}\nv_add_f32 v{r}, v{x+6}, v{x+7}")
        a(f"v_add_f32 v{m}, v{m}, v{s}\nv_add_f32 v{u}, v{u}, v{r}\nv_add_f32 v{m}, v{m}, v{u}")
        allreduce(m)
        a(f"v_mul_f32 v{m}, 0x3b000000, v{m}")
        for i in range(8): a(f"v_sub_f32 v{d+i}, v{x+i}, v{m}")
        a(f"v_mul_f32 v{s}, v{d}, v{d}\nv_mul_f32 v{r}, v{d+1}, v{d+1}")
        for i in range(2, 8, 2): a(f"v_fmac_f32 v{s}, v{d+i}, v{d+i}\nv_fmac_f32 v{r}, v{d+i+1}, v{d+i+1}")
        a(f"v_add_f32 v{s}, v{s}, v{r}")
        allreduce(s)
        a(f"v_mul_f32 v{s}, 0x3b000000, v{s}")
        rbf(m); rbf(s)
        a(f"v_add_f32 v{s}, 0x3727c5ac, v{s}")
        rbf(s)
        a(f"v_sqrt_f32 v{s}, v{s}\ns_nop 0")
        rbf(s)
        a(f"v_rcp_f32 v{r}, v{s}")
    unpack8(a, pk, x)
    stats()
    for i in range(8): a(f"v_sub_f32 v{d+i}, v{x+i}, v{m}")
    for i in range(4): a(f"v_cvt_pk_bf16_f32 v{pk+i}, v{d+2*i}, v{d+2*i+1}")
    unpack8(a, pk, d)
    for i in range(8):
        a(f"v_mul_f32 v{x+i}, v{d+i}, v{r}\nv_fma_f32 v{d+i}, -v{x+i}, v{s}, v{d+i}\nv_fmac_f32 v{x+i}, v{d+i}, v{r}")
    for i in range(4): a(f"v_cvt_pk_bf16_f32 v{pk+i}, v{x+2*i}, v{x+2*i+1}")
    unpack8(a, pk, x)
    stats()
    a(f"v_mov_b32 v{B+26}, v{m}\nv_mov_b32 v{B+27}, v{r}")
    return [l.strip() for l in a.lines]

sG, sRQ, sBlk, sN, sNW, sIt, sKs, sVs, sThr, sFloor, sMask, sRt0 = 56, 57, 58, 59, 60, 61, 62, 63, 96, 97, 98, 99
def att_ids(a):
    a(f"s_lshr_b32 s{sG}, s{sW}, 2\ns_and_b32 s{sRQ}, s{sW}, 3")
    a(f"s_sub_u32 s{sBlk}, 15, s{sP}\ns_cmp_eq_u32 s{sG}, 0\ns_cselect_b32 s{sBlk}, s{sBlk}, s{sP}")
    a(f"s_lshl_b32 s{sRt0}, s{sBlk}, 3\ns_lshl_b32 s{sT}, s{sRQ}, 1\ns_add_u32 s{sRt0}, s{sRt0}, s{sT}")

P1_W, P1_A, P1_NA = 128, 160, 8
vAr, vWr, vDA, vDW, vD1 = 192, 194, 198, 244, 246
sAoff, sWoff, sLdsA, sLdsW = 60, 61, 62, 63
sNlds, sHasM, sOOB, sXit, sL1, sC1, sXn, sW1b, sJ = 70, 71, 82, 83, 85, 86, 87, 88, 89
SLOT = [0, 65536, 114688, 0]

def p1_dma(i, srdw=SWKV, dA=0, dL=0):
    if i < 4:
        return (f"s_add_u32 m0, s{sLdsA}, {(i*1024 + dL) & 0xffffffff}\ns_add_u32 s{sT}, s{sAoff}, {(i*8192 + dA) & 0xffffffff}\n"
                f"buffer_load_dwordx4 v{vDA+(i&1)}, s[{SCKV}:{SCKV+3}], s{sT} offen lds")
    j = i - 4
    return (f"s_add_u32 m0, s{sLdsW}, {(j*1024 + dL) & 0xffffffff}\ns_add_u32 s{sT}, s{sWoff}, {j*4*8192}\n"
            f"buffer_load_dwordx4 v{vDW+(j>>1)}, s[{srdw}:{srdw+3}], s{sT} offen lds")
def p1_adv():
    return (f"s_add_u32 s{sAoff}, s{sAoff}, 128\ns_add_u32 s{sWoff}, s{sWoff}, {64*8192}\n"
            f"s_xor_b32 s{sLdsA}, s{sLdsA}, 0x10000\ns_xor_b32 s{sLdsW}, s{sLdsW}, 0x10000")
def p2_dma(stg, i, tag=True):
    tg = f" ;@vm d{stg}" if tag else ""
    if i < 4:
        return (f"s_add_u32 m0, s{sNlds}, {SLOT[stg] + i*1024}\ns_add_u32 s{sT}, s{sJ}, {(stg*128 + i*4)*8192}\n"
                f"buffer_load_dwordx4 v{vDW+((i>>1)&1)}, s[{SWQ}:{SWQ+3}], s{sT} offen lds{tg}")
    j = i - 4
    return (f"s_add_u32 m0, s{sL1}, {SLOT[stg] + 32768 + j*1024}\ns_add_u32 s{sT}, s{sW1b}, {(stg*128 + j*8)*2752}\n"
            f"buffer_load_dwordx4 v{vD1+j}, s[{SW1}:{SW1+3}], s{sT} offen lds{tg}")
def accP1(isV, kt, dt):
    return (((kt >> 1)*4 + dt)*2 + (kt & 1))*4 if isV else (kt*4 + dt)*4

vT128, vT1K, vTW, vLNr, vLNs = 232, 233, 234, 235, 240
sPre, sPost = 80, 81
def side_pre(tag, isV):
    if isV: return ""
    return (f"L_pre{tag}:\ns_cmp_lg_u32 s{sCnt}, 6\ns_cbranch_scc1 L_pre1{tag}\ns_call_b64 s[{sRet}:{sRet+1}], L_ln\ns_branch L_preb{tag}\n"
            f"L_pre1{tag}:\ns_waitcnt vmcnt(0)\n" + poll2_check() + f"\ns_branch L_preb{tag}")
def side_post(tag, isV):
    def ld(v, srdn, x=""): return f"s_mov_b32 s64, s{srdn}\ns_mov_b32 s65, s{srdn+1}\ns_mov_b32 s66, s{srdn+2}\nv_mov_b32 v230, v{v}\n"
    t = f"L_post{tag}:\ns_cmp_lg_u32 s{sCnt}, s{sXit}\ns_cbranch_scc1 L_q1{tag}\n"
    t += f"s_lshr_b32 s57, s2, 3\ns_lshl_b32 s57, s57, 16\ns_lshl_b32 s58, s{sW}, 13\ns_add_u32 s57, s57, s58\n" + ld(vT128, SWS, " sc1") + f"s_branch L_postb{tag}\n"
    t += f"L_q1{tag}:\ns_and_b32 s57, s{sW}, 3\ns_cmp_lg_u32 s57, 2\ns_cbranch_scc1 L_q0{tag}\n"
    t += f"s_sub_u32 s57, 8, s{sCnt}\ns_lshl_b32 s57, s57, 20\ns_lshl_b32 s58, s{sP}, 16\ns_add_u32 s57, s57, s58\ns_lshl_b32 s58, s{sH}, 8\ns_add_u32 s57, s57, s58\n" + ld(241, SWKV) + f"s_branch L_postb{tag}\n"
    t += f"L_q0{tag}:\n"
    if isV:
        t += f"s_cmp_lg_u32 s{sW}, 4\ns_cbranch_scc1 L_q2{tag}\n"
        t += f"s_lshl_b32 s57, s{sP}, 2\ns_and_b32 s58, s{sH}, 3\ns_add_u32 s57, s57, s58\ns_lshl_b32 s57, s57, 16\ns_sub_u32 s58, 9, s{sCnt}\ns_lshl_b32 s58, s58, 7\ns_add_u32 s57, s57, s58\n" + ld(vT1K, SCKV) + f"s_branch L_postb{tag}\n"
        t += f"L_q2{tag}:\ns_cmp_eq_u32 s{sCnt}, 3\ns_cbranch_scc1 L_q3{tag}\n"
        t += f"s_and_b32 s57, s{sCnt}, 1\ns_lshl_b32 s57, s57, 21\ns_lshl_b32 s58, s{sP}, 16\ns_add_u32 s57, s57, s58\ns_lshl_b32 s58, s{sH}, 8\ns_add_u32 s57, s57, s58\n" + ld(vTW, SWQ) + f"s_branch L_postb{tag}\n"
        t += f"L_q3{tag}:\ns_lshl_b32 s57, s2, 13\n" + ld(vT128, SW1) + f"s_branch L_postb{tag}"
    else:
        t += f"s_cmp_eq_u32 s{sCnt}, 5\ns_cbranch_scc0 L_q2{tag}\n" + publish(1) + f"\ns_branch L_postb{tag}\n"
        t += f"L_q2{tag}:\n" + poll2_issue() + f"\ns_branch L_postb{tag}"
    return t
def ln_sub(a):
    a.label("L_ln")
    for l in ln_row(200, 1): a(l)
    a(f"s_mul_i32 s57, s{sW}, 1040\ns_add_u32 s57, s57, 131072\nv_add_u32 v204, s57, v{vL16}")
    a("ds_write_b128 v204, v[200:203]")
    a("s_waitcnt lgkmcnt(0)")
    a(f"s_setpc_b64 s[{sRet}:{sRet+1}]")
def ln_store_txt(tag):
    return (f"s_cmp_lg_u32 s{sCnt}, 6\ns_cbranch_scc1 L_lns{tag}\nds_read_b128 v[200:203], v{vLNr}\ns_waitcnt lgkmcnt(0)\n"
            f"buffer_store_dwordx4 v[200:203], v{vLNs}, s[{SWS}:{SWS+3}], s7 offen{SC}\nL_lns{tag}:\n")

def p1_main(a, isV, tag):
    S = Sched(lookahead=24, per_slot=1, wait_group=P1WG)
    for st in range(8):
        for ks in range(2):
            for kt in range(8):
                for dt in range(4):
                    acc = accP1(isV, kt, dt)
                    wf = P1_W + ((st*2+ks) & 1) * 16 + dt * 4
                    af = P1_A + ((st*16 + ks*8 + kt) % P1_NA) * 4
                    S.add_slot(mfma(acc, af, wf) if isV else mfma(acc, wf, af), [('W', st, ks, dt), ('A', st, ks, kt)])
    x = "\n".join(f"v_xor_b32 v{r}, 0x10000, v{r}" for r in list(range(vAr, vAr+2)) + list(range(vWr, vWr+4)))
    for st in range(9):
        dmas = []
        if st > 0:
            sy = ""
            if st < 7 and not isV: sy += f"s_bitcmp1_b32 s{sPre}, s{sCnt}\ns_cbranch_scc1 L_pre{tag}\nL_preb{tag}:\n"
            sy += f"s_waitcnt vmcnt({1 if st < 8 else 0})\ns_barrier\n" + (stamp_txt(22, 4, sCnt) if st < 7 else stamp_txt(15 + st, 4))
            if st < 7:
                sy += f"s_cmp_eq_u32 s{sCnt}, 6\ns_cbranch_scc1 L_lns{tag}\nL_lnsb{tag}:\n"
                dmas = [p1_dma(i) for i in range(8)]
                dmas[7] += ("\n" + p1_adv() + f"\ns_mov_b32 s57, s{sOOB}\ns_bitcmp1_b32 s{sPost}, s{sCnt}\ns_cbranch_scc1 L_post{tag}\nL_postb{tag}:\n"
                            "buffer_load_dword v229, v230, s[64:67], s57 offen sc1")
            else:
                dmas = [p2_dma(st - 7, i, False) for i in range(6)]
            if (isV and VB) or st == 8:
                sy += "\n".join(dmas) + "\n"; dmas = []
            S.add_sync(sy + (x if st < 8 else ""), drain=True, delay=3)
        if st == 8: break
        for ks in range(2):
            order = [('W', 0), ('W', 1), ('A', 0), ('W', 2), ('W', 3)] + [('A', k) for k in range(1, 8)]
            for (kind, i) in order:
                if kind == 'W':
                    wf = P1_W + ((st*2+ks) & 1) * 16 + i * 4
                    S.add_load(('W', st, ks, i),
                               [f"ds_read_b64_tr_b16 v[{wf}:{wf+1}], v{vWr+i} offset:{ks*8192}",
                                f"ds_read_b64_tr_b16 v[{wf+2}:{wf+3}], v{vWr+i} offset:{ks*8192+1024}"], wf)
                else:
                    af = P1_A + ((st*16 + ks*8 + i) % P1_NA) * 4
                    S.add_load(('A', st, ks, i), [f"ds_read_b128 v[{af}:{af+3}], v{vAr+ks} offset:{i*2048}"], af)
                if dmas and ks == 0:
                    S.add_sync(dmas.pop(0), drain=False)
                    if kind == 'W' and dmas: S.add_sync(dmas.pop(0), drain=False)
    S.ops[-1]['force_at'] = 64*7 + 44
    for i in range(10): S.add_fill(64*7 + XE + 3*i, x_load(i & 1, i >> 1).replace(";@vm", ";"))
    segs = S.build(cuts=[64*s for s in range(8)])
    body = segs[2]
    for k in range(3, 7): assert body == segs[k], "p1 not periodic"
    bi = [i for i, l in enumerate(body) if "s_barrier" in l][0]
    for l in body[bi+1:]:
        if l.startswith("ds_read"): a(l)
    a(f"s_mov_b32 s{sCnt}, 6")
    a.label(f"L_p1_{tag}")
    for l in body: a(l)
    a(f"s_sub_u32 s{sCnt}, s{sCnt}, 1\ns_cmp_lg_u32 s{sCnt}, 0\ns_cbranch_scc1 L_p1_{tag}")
    for l in segs[7] + segs[8]: a(l)
    a("s_branch L_p1_done")
    a(side_pre(tag, isV)); a(side_post(tag, isV))
    a(f"L_lns{tag}:\nds_read_b128 v[200:203], v{vLNr}\n"
      f"s_lshl_b32 s57, s{sF}, 3\ns_add_u32 s57, s57, s{sW}\ns_lshl_b32 s57, s57, 3\ns_add_u32 s57, s57, {STAT}\n"
      "s_mov_b64 s[72:73], exec\ns_mov_b64 exec, 1\n"
      f"buffer_store_dwordx2 v[226:227], v{vLANE}, s[{SWS}:{SWS+3}], s57 offen{SC}\ns_mov_b64 exec, s[72:73]\ns_waitcnt lgkmcnt(0)\n"
      f"buffer_store_dwordx4 v[200:203], v{vLNs}, s[{SWS}:{SWS+3}], s7 offen{SC}\ns_branch L_lnsb{tag}")

def phase1(a):
    a("s_cmp_ge_u32 s2, 256\ns_cbranch_scc1 L_end")
    a("s_load_dwordx16 s[64:79], s[0:1], 0\ns_load_dwordx8 s[80:87], s[0:1], 64\ns_load_dwordx4 s[88:91], s[0:1], 96")
    a(f"v_lshrrev_b32 v1, 6, v0\nv_and_b32 v{vLANE}, 63, v0\nv_readfirstlane_b32 s{sW}, v1\nv_lshlrev_b32 v{vL16}, 4, v{vLANE}")
    a(f"s_and_b32 s56, s2, 7\ns_lshl_b32 s56, s56, 2\ns_lshr_b32 s57, s2, 3\ns_and_b32 s57, s57, 3\ns_add_u32 s{sH}, s56, s57")
    a(f"s_lshr_b32 s{sP}, s2, 5\ns_lshl_b32 s{sF}, s{sH}, 3\ns_add_u32 s{sF}, s{sF}, s{sP}")
    t = 236
    a(f"v_lshrrev_b32 v{t}, 3, v{vLANE}\nv_lshlrev_b32 v{t}, 10, v{t}")
    a(f"v_and_b32 v{t+1}, 7, v{vLANE}\nv_lshrrev_b32 v{t+2}, 4, v{vLANE}\nv_xor_b32 v{t+1}, v{t+1}, v{t+2}\nv_lshlrev_b32 v{t+1}, 4, v{t+1}")
    a(f"v_add_u32 v{vDA}, v{t}, v{t+1}\nv_xor_b32 v{t+1}, 64, v{t+1}\nv_add_u32 v{vDA+1}, v{t}, v{t+1}")
    w_dma_voff(a, vDW, 8192, t)
    a(f"s_lshl_b32 s{sAoff}, s{sP}, 8\ns_lshl_b32 s{sT}, s{sW}, 5\ns_add_u32 s{sAoff}, s{sAoff}, s{sT}\ns_lshl_b32 s{sAoff}, s{sAoff}, 10")
    a(f"s_and_b32 s{sT}, s{sW}, 3\ns_lshl_b32 s{sWoff}, s{sT}, 17\ns_lshl_b32 s{sT}, s{sH}, 8\ns_add_u32 s{sWoff}, s{sWoff}, s{sT}")
    a(f"s_lshl_b32 s{sLdsA}, s{sW}, 12\ns_add_u32 s{sLdsW}, s{sLdsA}, 32768")
    a("s_waitcnt lgkmcnt(0)")
    srd(a, SX, 64, 2*MB); srd(a, SCKV, 66, 2*MB); srd(a, SWO, 70, 4*MB)
    a("s_mov_b32 s100, s74\ns_mov_b32 s101, s75\ns_mov_b32 s96, s72\ns_mov_b32 s97, s73")
    a(f"s_cmp_lt_u32 s{sW}, 4\ns_cselect_b32 s56, s70, s72\ns_cselect_b32 s57, s71, s73")
    srd(a, SWKV, 56, 4*MB); srd(a, SWS, 90, WS_BYTES)
    stamp(a, 0)
    if LIN:
        a(f"v_lshlrev_b32 v{vT128}, 7, v{vLANE}")
        a(f"s_and_b32 s57, s{sW}, 3\ns_cmp_ge_u32 s57, 2\ns_cbranch_scc1 L_l1")
        a(f"s_lshl_b32 s58, s2, 1\ns_add_u32 s57, s57, s58\ns_lshl_b32 s57, s57, 13")
        a(f"buffer_load_dword v229, v{vT128}, s[{SWKV}:{SWKV+3}], s57 offen\ns_branch L_l2")
        a.label("L_l1")
        a(f"s_cmp_lg_u32 s{sW}, 2\ns_cbranch_scc1 L_l2\ns_lshl_b32 s57, s2, 13")
        a(f"buffer_load_dword v229, v{vT128}, s[{SCKV}:{SCKV+3}], s57 offen")
        a.label("L_l2")
    if T0:
        a(f"v_lshlrev_b32 v{vT1K}, 10, v{vLANE}")
        a(f"v_bfe_u32 v{t+1}, v{vLANE}, 4, 1\nv_lshlrev_b32 v{t+1}, 6, v{t+1}\nv_bfe_u32 v{t+2}, v{vLANE}, 1, 3\nv_add_u32 v{t+1}, v{t+1}, v{t+2}\nv_lshlrev_b32 v{t+1}, 13, v{t+1}")
        a(f"v_and_b32 v{t+2}, 1, v{vLANE}\nv_lshl_add_u32 v241, v{t+2}, 7, v{t+1}")
        a(f"s_cmp_ge_u32 s{sW}, 2\ns_cbranch_scc1 L_z1")
        a(f"s_lshl_b32 s57, s{sP}, 2\ns_and_b32 s58, s{sH}, 3\ns_add_u32 s57, s57, s58\ns_lshl_b32 s57, s57, 16\ns_lshl_b32 s58, s{sW}, 7\ns_add_u32 s57, s57, s58")
        a(f"buffer_load_dword v229, v{vT1K}, s[{SCKV}:{SCKV+3}], s57 offen\ns_branch L_z2")
        a.label("L_z1")
        a(f"s_and_b32 s57, s{sW}, 3\ns_cmp_lg_u32 s57, 2\ns_cbranch_scc1 L_z2")
        a(f"s_lshl_b32 s57, s{sP}, 16\ns_lshl_b32 s58, s{sH}, 8\ns_add_u32 s57, s57, s58")
        a(f"buffer_load_dword v229, v241, s[{SWKV}:{SWKV+3}], s57 offen")
        a.label("L_z2")
        a(f"s_lshl_b32 s56, s{sF}, 3\ns_add_u32 s56, s56, s{sW}\ns_lshl_b32 s57, s56, 10")
        a(f"buffer_load_dwordx4 v[200:203], v{vL16}, s[{SX}:{SX+3}], s57 offen")
        a(publish(0))
    else:
        a(f"s_lshl_b32 s56, s{sF}, 3\ns_add_u32 s56, s56, s{sW}\ns_lshl_b32 s57, s56, 10")
        for i in range(8): a(p1_dma(i))
        a(p1_adv())
        a(f"buffer_load_dwordx4 v[200:203], v{vL16}, s[{SX}:{SX+3}], s57 offen")
        a(publish(0))
    a.label("L_st_j")
    stamp(a, 4)
    srd(a, SWQ, 68, 4*MB); srd(a, SWO, 100, 4*MB); srd(a, SW1, 78, 512*1376*2); srd(a, SB1, 80, 1376*2); srd(a, SW2, 82, 512*1376*2)
    srd(a, SB2, 84, 1024); srd(a, SOUT, 86, 2*MB); srd(a, SDBG, 88, 256)
    if TLB:
        srd(a, 64, 96, 4*MB)
        a(f"v_lshlrev_b32 v230, 16, v{vLANE}\ns_lshr_b32 s57, s2, 3\ns_cmp_lg_u32 s{sW}, 3\ns_cbranch_scc1 L_tl9")
        for i, sd in enumerate((SWKV, 64, SWQ, SW1, SWO, SW2)):
            a(f"s_cmp_lg_u32 s57, {i}\ns_cbranch_scc1 L_tl{i}\nbuffer_load_dword v229, v230, s[{sd}:{sd+3}], 0 offen\nL_tl{i}:")
        if TLB >= 2:
            a(f"s_sub_u32 s58, s57, 9\ns_lshl_b32 s58, s58, 22\ns_add_u32 s58, s58, {AF}")
            a(f"s_cmp_eq_u32 s57, 6\ns_cselect_b32 s58, 0, s58")
            a(f"s_and_b32 s56, s2, 7\ns_lshl_b32 s56, s56, 21\ns_add_u32 s{sT}, s56, {KF}\ns_cmp_eq_u32 s57, 7\ns_cselect_b32 s58, s{sT}, s58")
            a(f"s_add_u32 s{sT}, s56, {VF}\ns_cmp_eq_u32 s57, 8\ns_cselect_b32 s58, s{sT}, s58")
            a(f"s_cmp_eq_u32 s57, 15\ns_cselect_b32 s58, {EX}, s58\ns_cmp_eq_u32 s57, 16\ns_cselect_b32 s58, {EX + 4*MB}, s58")
            a(f"s_cmp_lt_u32 s57, 6\ns_cbranch_scc1 L_tl9\ns_cmp_gt_u32 s57, 16\ns_cbranch_scc1 L_tl8")
            a(f"buffer_load_dword v229, v230, s[{SWS}:{SWS+3}], s58 offen sc1\ns_branch L_tl9")
            a.label("L_tl8")
            a(f"s_cmp_lg_u32 s57, 17\ns_cbranch_scc1 L_tl9\nbuffer_load_dword v229, v230, s[{SOUT}:{SOUT+3}], 0 offen")
        a.label("L_tl9")
    a(f"s_and_b32 s{sT}, s{sW}, 1\ns_lshl_b32 s{sT}, s{sT}, 14")
    a(f"v_and_b32 v{t}, 15, v{vLANE}\nv_lshlrev_b32 v{t+1}, 7, v{t}\nv_add_u32 v{t+1}, s{sT}, v{t+1}")
    a(f"v_lshrrev_b32 v{t}, 1, v{t}\nv_lshrrev_b32 v{t+2}, 4, v{vLANE}\nv_xor_b32 v{t}, v{t}, v{t+2}")
    a(f"v_lshl_add_u32 v{vAr}, v{t}, 4, v{t+1}\nv_xor_b32 v{vAr+1}, 64, v{vAr}")
    a(f"s_lshr_b32 s56, s{sW}, 2\ns_lshl_b32 s56, s56, 14\ns_add_u32 s56, s56, 32768\ns_bfe_u32 s57, s{sW}, 0x10001\ns_lshl_b32 s57, s57, 2")
    w_read_addr(a, vWr, 4, 56, 57, t)
    att_ids(a)
    a(f"s_lshl_b32 s{sXn}, s{sRt0}, 14")
    a(f"s_lshr_b32 s{sC1}, s{sH}, 2\ns_add_u32 s{sC1}, s{sC1}, s{sP}\ns_and_b32 s{sC1}, s{sC1}, 7\ns_and_b32 s{sT}, s{sH}, 3\ns_lshl_b32 s{sT}, s{sT}, 3\ns_add_u32 s{sC1}, s{sC1}, s{sT}")
    a(f"s_cmp_lt_u32 s{sC1}, 22\ns_cselect_b32 s{sHasM}, 1, 0")
    a(f"s_lshl_b32 s{sJ}, s{sW}, 17\ns_lshl_b32 s{sT}, s{sH}, 8\ns_add_u32 s{sJ}, s{sJ}, s{sT}")
    a(f"s_lshl_b32 s{sNlds}, s{sW}, 12\ns_lshl_b32 s{sL1}, s{sW}, 11\ns_mov_b32 s{sOOB}, {OOB}")
    a(f"v_lshrrev_b32 v{t}, 3, v{vLANE}\nv_mul_u32_u24 v{t}, 2752, v{t}\nv_bfe_u32 v{t+1}, v{vLANE}, 1, 2\nv_bfe_u32 v{t+2}, v{vLANE}, 4, 1")
    a(f"v_xor_b32 v{t+1}, v{t+1}, v{t+2}\nv_lshlrev_b32 v{t+1}, 5, v{t+1}\nv_and_b32 v{t+2}, 1, v{vLANE}\nv_lshl_add_u32 v{t+1}, v{t+2}, 4, v{t+1}")
    a(f"v_add_u32 v{vD1}, v{t}, v{t+1}\nv_xor_b32 v{t+1}, 64, v{t+1}\nv_add_u32 v{vD1+1}, v{t}, v{t+1}")
    a(f"s_mul_i32 s{sW1b}, s{sW}, {16*2752}\ns_lshl_b32 s{sT}, s{sC1}, 7\ns_add_u32 s{sW1b}, s{sW1b}, s{sT}\ns_cmp_lg_u32 s{sHasM}, 0\ns_cselect_b32 s{sW1b}, s{sW1b}, s{sOOB}")
    a(f"s_lshl_b32 s{sT}, s{sW}, 2\ns_lshr_b32 s{sXit}, 0x22211221, s{sT}\ns_and_b32 s{sXit}, s{sXit}, 15")
    a(f"s_lshl_b32 s{sPost}, 1, s{sXit}\ns_mov_b32 s{sPre}, 0x40")
    a(f"s_cmp_eq_u32 s{sW}, 0\ns_cselect_b32 s{sT}, 0x28, 0\ns_or_b32 s{sPost}, s{sPost}, s{sT}\ns_cmp_eq_u32 s{sW}, 0\ns_cselect_b32 s{sT}, 4, 0\ns_or_b32 s{sPre}, s{sPre}, s{sT}")
    a(f"s_cmp_eq_u32 s{sW}, 4\ns_cselect_b32 s{sT}, 0x7c, 0\ns_or_b32 s{sPost}, s{sPost}, s{sT}\ns_cmp_eq_u32 s{sW}, 5\ns_cselect_b32 s{sT}, 0x38, 0\ns_or_b32 s{sPost}, s{sPost}, s{sT}")
    a(f"s_and_b32 s{sT}, s{sW}, 3\ns_cmp_eq_u32 s{sT}, 2\ns_cselect_b32 s{sT}, 0x60, 0\ns_or_b32 s{sPost}, s{sPost}, s{sT}")
    a(f"v_lshlrev_b32 v{vPA}, 2, v{vLANE}\nv_lshlrev_b32 v{vT128}, 7, v{vLANE}\nv_lshlrev_b32 v{vT1K}, 10, v{vLANE}")
    a(f"v_lshrrev_b32 v{t+1}, 4, v{vLANE}\nv_lshlrev_b32 v{t+1}, 6, v{t+1}\nv_bfe_u32 v{t+2}, v{vLANE}, 1, 3\nv_add_u32 v{t+1}, v{t+1}, v{t+2}\nv_lshlrev_b32 v{t+1}, 13, v{t+1}")
    a(f"v_and_b32 v{t+2}, 1, v{vLANE}\nv_lshl_add_u32 v{vTW}, v{t+2}, 7, v{t+1}")
    a(f"v_and_b32 v241, 0xfffff, v{vTW}")
    a(f"v_and_b32 v{t}, 7, v{vLANE}\nv_mul_u32_u24 v{vLNr}, 1040, v{t}\nv_lshrrev_b32 v{t+2}, 3, v{vLANE}\nv_lshl_add_u32 v{vLNr}, v{t+2}, 4, v{vLNr}")
    a(f"s_lshl_b32 s57, s{sW}, 7\ns_add_u32 s57, s57, 131072\nv_add_u32 v{vLNr}, s57, v{vLNr}")
    a(f"v_lshlrev_b32 v{vLNs}, 8, v{t+2}\nv_lshl_add_u32 v{vLNs}, v{t}, 4, v{vLNs}")
    a(f"s_lshr_b32 s7, s{sF}, 1\ns_lshl_b32 s7, s7, 14\ns_lshl_b32 s58, s{sW}, 11\ns_add_u32 s7, s7, s58\ns_and_b32 s58, s{sF}, 1\ns_lshl_b32 s58, s58, 7\ns_add_u32 s7, s7, s58")
    for r in range(128): a(f"v_mov_b32 v{r}, 0")
    if T0:
        if T0 == 2: a("s_waitcnt vmcnt(0)\ns_barrier")
        for i in range(8): a(p1_dma(i))
        a(p1_adv())
    for i in range(4): a(p1_dma(i))
    a("s_waitcnt vmcnt(4)\ns_barrier")
    stamp(a, 1)
    for i in range(4, 8): a(p1_dma(i))
    a(p1_adv())
    srd(a, 64, SWS, WS_BYTES)
    a(f"v_mov_b32 v230, v{vT128}")
    a(f"s_cmp_eq_u32 s{sW}, 4\ns_cbranch_scc1 L_st_c")
    a(f"s_lshl_b32 s57, s{sP}, 16\ns_lshl_b32 s58, s{sH}, 8\ns_add_u32 s57, s57, s58\ns_add_u32 s57, s57, {1 << 20}")
    a(f"s_and_b32 s58, s{sW}, 3\ns_cmp_eq_u32 s58, 2\ns_cselect_b32 s57, s57, s{sOOB}")
    a(f"buffer_load_dword v229, v241, s[{SWKV}:{SWKV+3}], s57 offen\ns_branch L_st_a")
    a.label("L_st_c")
    a(f"s_lshl_b32 s57, s{sP}, 2\ns_and_b32 s58, s{sH}, 3\ns_add_u32 s57, s57, s58\ns_lshl_b32 s57, s57, 16\ns_add_u32 s57, s57, 256")
    a(f"buffer_load_dword v229, v{vT1K}, s[{SCKV}:{SCKV+3}], s57 offen")
    a.label("L_st_a")
    a(f"s_cmp_ge_u32 s{sW}, 4\ns_cbranch_scc1 L_p1v")
    p1_main(a, False, "k")
    ln_sub(a)
    a.label("L_p1v")
    a(f"s_call_b64 s[{sRet}:{sRet+1}], L_ln")
    if P1PRIO: a("s_setprio 1")
    p1_main(a, True, "v")
    for t in stubs: a(t)
    a.label("L_p1_done")
    if P1PRIO == 1: a("s_setprio 0")
    stamp(a, 2)

def rXm(rt, ks): return (200 + 8*(ks % 6) if ks % 6 < 5 else 64) + 4*rt
AQ, A1, CS, WR, NWR, ONE = 192, 240, 124, 104, 5, 248
QACC, MACC = 128, 72
LOW = {248: 0, 249: 1, 250: 2, 251: 3}
stubs = []
P2LA, P2WG = int(os.environ.get('P2LA', '8')), int(os.environ.get("P2WG", "4"))
def x_load(rt, ks):
    r = rXm(rt, ks)
    return (f"s_add_u32 s{sT}, s{sXn}, {rt*16384 + (ks//4)*4096}\n"
            f"buffer_load_dwordx4 v[{r}:{r+3}], v{vL16}, s[{SWS}:{SWS+3}], s{sT} offen offset:{(ks%4)*1024}{SC} ;@vm x{ks}")
def kv_store(j, grp=None):
    base = 65 if j & 2 else 64
    st = (f"s_add_u32 s{sT}, s{base}, {(j>>2)*8192}\n"
          f"buffer_store_dwordx4 v[{4*j}:{4*j+3}], v{vL16}, s[{SWS}:{SWS+3}], s{sT} offen offset:{(j&1)*1024}{SC}")
    if grp is None: return st + " ;@vm st"
    u = uid()
    return f"s_cbranch_vcc{'nz' if grp == 0 else 'z'} L_kv{u}\n" + st + " ;@mk st" + f"\nL_kv{u}:"
def att_scalars(a):
    att_ids(a)
    a(f"s_lshl_b32 s{sN}, s{sBlk}, 1\ns_lshr_b32 s{sT}, s{sRQ}, 1\ns_add_u32 s{sN}, s{sN}, s{sT}\ns_add_u32 s{sN}, s{sN}, 1")
    a(f"s_lshl_b32 s{sT}, s{sP}, 1\ns_sub_u32 s{sNW}, 32, s{sT}\ns_lshl_b32 s92, s{sRQ}, 12")
    a(f"s_lshl_b32 s{sKs}, s{sH}, 19\ns_add_u32 s{sKs}, s{sKs}, s92\ns_add_u32 s{sVs}, s{sKs}, {VF}\ns_add_u32 s{sKs}, s{sKs}, {KF}")
def kv_dma(src, t, lds):
    s = f"s_add_u32 m0, s92, {lds}\ns_add_u32 s{sT}, s{src}, {t*16384}\n"
    for i in range(4):
        s += f"buffer_load_dwordx4 v{vL16}, s[{SWS}:{SWS+3}], s{sT} offen offset:{i*1024}{SC} lds\n"
    return s
def pk(op, d, x, y, mods=""): return f"v_pk_{op}_f32 v[{d}:{d+1}], {x}, {y}{mods}"

def p2_merged(a):
    a(f"s_lshl_b32 s64, s{sH}, 19\ns_lshl_b32 s{sT}, s{sP}, 16\ns_add_u32 s64, s64, s{sT}\ns_and_b32 s{sT}, s{sW}, 1\ns_lshl_b32 s{sT}, s{sT}, 15\ns_add_u32 s64, s64, s{sT}")
    a(f"s_bfe_u32 s66, s{sW}, 0x10001\ns_lshl_b32 s67, s66, 12\ns_lshl_b32 s66, s66, 11\ns_add_u32 s66, s66, {KF}\ns_add_u32 s67, s67, {VF}")
    a(f"s_cmp_lt_u32 s{sW}, 4\ns_cselect_b32 s66, s66, s67\ns_cselect_b32 s65, 2, 1\ns_lshl_b32 s65, s65, 11\ns_add_u32 s64, s64, s66\ns_add_u32 s65, s65, s64")
    for j in range(16):
        for i in range(4): a(f"v_cvt_pk_bf16_f32 v{4*j+i}, v{8*j+2*i}, v{8*j+2*i+1}")
    lines = []
    for ks in range(5):
        for rt in range(2): lines.append(f"; issued in P1 ;@vm x{ks}")
    for i in range(6): lines.append("; issued in P1 ;@vm d1")
    b = Asm()
    att_scalars(b)
    b("s_mov_b32 s100, 0")
    t = 72
    w_read_addr(b, AQ, 8, 100, 100, t)
    b(f"v_lshrrev_b32 v{t}, 4, v{vLANE}\nv_bfe_u32 v{t+1}, v{vLANE}, 2, 2\nv_lshl_add_u32 v{t+2}, v{t}, 3, v{t+1}\nv_lshlrev_b32 v{t+2}, 7, v{t+2}")
    b(f"v_and_b32 v{t+3}, 3, v{vLANE}\nv_lshl_add_u32 v{t+2}, v{t+3}, 3, v{t+2}\nv_add_u32 v{t+2}, 32768, v{t+2}")
    b(f"v_and_b32 v{t}, 1, v{t}\nv_lshrrev_b32 v{t+1}, 1, v{t+1}\nv_lshl_or_b32 v{t}, v{t}, 1, v{t+1}")
    for ct in range(4): b(f"v_xor_b32 v{t+3}, {ct}, v{t}\nv_lshl_add_u32 v{A1+ct}, v{t+3}, 5, v{t+2}")
    for r in range(CS, CS+4): b(f"v_mov_b32 v{r}, 0")
    for r in range(ONE, ONE+4): b(f"v_mov_b32 v{r}, 0x3f803f80")
    if STG: b(f"s_bitcmp1_b32 s{sW}, {STG-1}\ns_cselect_b64 vcc, -1, 0")
    lines += [l.strip() for l in b.lines]
    lines += stamp_txt(24, 4).split("\n")
    K = 24
    fills = {}
    def F(sl, txt): fills.setdefault(sl, []).append(txt)
    for ks in range(11):
        F(K*ks + 5, x_load(0, ks+5)); F(K*ks + 17, x_load(1, ks+5))
    for i in range(16):
        if STG: F(int(i*16.2) + 1, kv_store(i, 0)); F(int(i*16.2) + 9, kv_store(i, 1))
        else: F(int(i*16.2) + 2, kv_store(i))
    for i in range(6): F(1 + 8*i + 3, p2_dma(2, i))
    ST_, BI_ = 8, 12
    F(K*6 + 1, f"v_and_b32 v4, 15, v{vLANE}\nv_lshlrev_b32 v4, 3, v4\ns_lshl_b32 s{sT}, s{sRt0}, 7\ns_add_u32 s{sT}, s{sT}, {STAT}\n"
               f"buffer_load_dwordx2 v[{ST_}:{ST_+1}], v4, s[{SWS}:{SWS+3}], s{sT} offen{SC} ;@vm m\n"
               f"buffer_load_dwordx2 v[{ST_+2}:{ST_+3}], v4, s[{SWS}:{SWS+3}], s{sT} offen offset:128{SC} ;@vm m")
    F(K*7 + 1, f"v_lshrrev_b32 v5, 4, v{vLANE}\nv_lshlrev_b32 v5, 3, v5\ns_lshl_b32 s{sT}, s{sC1}, 7\n" +
               "\n".join(f"buffer_load_dwordx2 v[{BI_+2*ct}:{BI_+2*ct+1}], v5, s[{SB1}:{SB1+3}], s{sT} offen offset:{ct*32} ;@vm m" for ct in range(4)))
    F(K*13 + 1, with_regs(f"v_and_b32 v{vPA}, 7, v{vLANE}\nv_max_u32 v{vPA}, 1, v{vPA}\nv_add_u32 v{vPA}, s{sP}, v{vPA}\nv_and_b32 v{vPA}, 7, v{vPA}\ns_lshl_b32 s{sT}, s{sH}, 3\nv_add_u32 v{vPA}, s{sT}, v{vPA}\n" + flag_addr(), LOW))
    F(K*15 + 1, with_regs(f"s_cmp_lg_u32 s{sW}, 0\ns_cbranch_scc1 L_p2_ni\n" + poll_issue() + "\nL_p2_ni:", LOW))
    Bf, t = 32, 20
    for ct in range(4):
        F(K*14 + 2 + 4*ct, f"v_lshlrev_b32 v{Bf+4*ct}, 16, v{BI_+2*ct}\nv_and_b32 v{Bf+1+4*ct}, 0xffff0000, v{BI_+2*ct}\n"
                           f"v_lshlrev_b32 v{Bf+2+4*ct}, 16, v{BI_+1+2*ct}\nv_and_b32 v{Bf+3+4*ct}, 0xffff0000, v{BI_+1+2*ct}")
    F(K*14 + 20, f"v_lshrrev_b32 v{t}, 4, v{vLANE}\nv_lshlrev_b32 v{t}, 4, v{t}\ns_lshl_b32 s{sT}, s{sW}, 6\ns_add_u32 s{sT}, s{sT}, 131072\nv_add_u32 v{t+1}, s{sT}, v{t}\nv_add_u32 v{t}, 131072, v{t}")
    S = Sched(lookahead=P2LA, per_slot=2, wait_group=P2WG)
    n = 0
    for ks in range(16):
        stg, kk = ks // 4, ks % 4
        if kk == 0 and stg > 0:
            d = SLOT[stg] - SLOT[stg-1]
            upd = "\n".join(f"v_add_u32 v{r}, {d & 0xffffffff}, v{r}" for r in list(range(AQ, AQ+8)) + list(range(A1, A1+4)))
            sy = {1: "@vmwait d1\ns_barrier\n", 2: "@vmwait d2\ns_barrier\n", 3: "@vmwait st\ns_barrier\n" + with_regs(publish(2), LOW) + "\n"}[stg]
            S.add_sync(stamp_txt(24 + stg, 4) + sy + upd, drain=False)
            if stg == 2:
                for i in range(6): F(K*8 + 1 + 3*i, p2_dma(3, i))
        order = list(range(8, 12)) + list(range(8)) if ks == 15 else list(range(12))
        firstslot = True
        for c in order:
            wf = WR + (n % NWR)*4; n += 1
            if c < 8:
                S.add_load((ks, c), [f"ds_read_b64_tr_b16 v[{wf}:{wf+1}], v{AQ+c} offset:{kk*8192}",
                                     f"ds_read_b64_tr_b16 v[{wf+2}:{wf+3}], v{AQ+c} offset:{kk*8192+1024}"], wf)
            else:
                S.add_load((ks, c), [f"ds_read_b64_tr_b16 v[{wf}:{wf+1}], v{A1+c-8} offset:{kk*4096}",
                                     f"ds_read_b64_tr_b16 v[{wf+2}:{wf+3}], v{A1+c-8} offset:{kk*4096+512}"], wf)
            for rt in range(2):
                acc = QACC + (rt*8 + c)*4 if c < 8 else MACC + (rt*4 + c-8)*4
                pre = ""
                if c >= 8 and rt == 1:
                    u = uid()
                    pre = f"s_cmp_eq_u32 s{sW}, {(ks>>3)*4+c-8}\ns_cbranch_scc1 L_cs{u}\nL_cb{u}:\n"
                    stubs.append(f"L_cs{u}:\n" + mfma(CS, wf, ONE) + f"\ns_branch L_cb{u}")
                sl = S.add_slot(pre + mfma(acc, wf, rXm(rt, ks), "0" if ks == 0 else None), [(ks, c)])
                if firstslot: S.add_pre(sl, f"@vmwait x{ks}"); firstslot = False
    for sl, fl in fills.items():
        for f in fl: S.add_fill(sl, f)
    lines += S.build()[0]
    for l in resolve_vm(lines): a(l)
    stamp(a, 28, 4)
    a(f"ds_write_b128 v{t+1}, v[{CS}:{CS+3}]")
    a(f"s_waitcnt vmcnt(0) lgkmcnt(0)\ns_cmp_lg_u32 s{sW}, 0\ns_cbranch_scc1 L_p2_np\n" + with_regs(poll_check(2), LOW) + "\nL_p2_np:\ns_barrier")
    stamp(a, 29, 4)
    def g1(txt):
        u = uid(); return f"s_cmp_eq_u32 s{sG}, 0\ns_cbranch_scc1 L_g{u}\n" + txt + f"L_g{u}:"
    a(g1(kv_dma(sKs, 0, 0)))
    C = 200
    for i in range(8): a(f"ds_read_b128 v[{C+4*i}:{C+4*i+3}], v{t} offset:{i*64}")
    a("v_mov_b32 v22, 0x3e0293ee")
    for j in range(8):
        s, d = QACC + 8*j, QACC + 4*j
        for i in range(0, 8, 2): a(pk("mul", s+i, f"v[{s+i}:{s+i+1}]", "v[22:23]", " op_sel_hi:[1,0]"))
        for i in range(4): a(f"v_cvt_pk_bf16_f32 v{d+i}, v{s+2*i}, v{s+2*i+1}")
    stamp(a, 5)
    a(g1(kv_dma(sKs, 1, 16384)))
    a(f"s_cmp_eq_u32 s{sHasM}, 0\ns_cbranch_scc1 L_p2_nm")
    k = -2.0 * 0.7978845608028654 * 1.4426950408889634
    a(f"v_mov_b32 v22, {fb(k*0.044715)}\nv_mov_b32 v23, {fb(k)}\nv_mov_b32 v48, 1.0")
    a("s_waitcnt lgkmcnt(0)")
    for i in range(0, 16, 2): a(pk("add", C+i, f"v[{C+i}:{C+i+1}]", f"v[{C+16+i}:{C+17+i}]"))
    for q in range(8):
        rt, ct = q >> 2, q & 3
        r0 = MACC + 4*q; T = 24 + (q & 1)*4; mr = f"v[{ST_+2*rt}:{ST_+2*rt+1}]"
        R = lambda j: f"v[{r0+j}:{r0+j+1}]"
        TT = lambda j: f"v[{T+j}:{T+j+1}]"
        for j in (0, 2): a(f"v_pk_fma_f32 {R(j)}, {mr}, v[{C+4*ct+j}:{C+4*ct+j+1}], {R(j)} op_sel_hi:[0,1,1] neg_lo:[1,0,0] neg_hi:[1,0,0]")
        for j in (0, 2): a(f"v_pk_fma_f32 {R(j)}, {R(j)}, {mr}, v[{Bf+4*ct+j}:{Bf+4*ct+j+1}] op_sel:[0,1,0] op_sel_hi:[1,1,1]")
        for j in (0, 2): a(f"v_pk_mul_f32 {TT(j)}, {R(j)}, {R(j)}")
        for j in (0, 2): a(f"v_pk_fma_f32 {TT(j)}, {TT(j)}, v[22:23], v[22:23] op_sel:[0,0,1] op_sel_hi:[1,0,1]")
        for j in (0, 2): a(f"v_pk_mul_f32 {TT(j)}, {TT(j)}, {R(j)}")
        for j in range(4): a(f"v_exp_f32 v{T+j}, v{T+j}")
        for j in (0, 2): a(f"v_pk_add_f32 {TT(j)}, {TT(j)}, v[48:49] op_sel_hi:[1,0]")
        for j in range(4): a(f"v_rcp_f32 v{T+j}, v{T+j}")
        for j in (0, 2): a(f"v_pk_mul_f32 {R(j)}, {R(j)}, {TT(j)}")
    for i, (x, y) in enumerate(((0, 4), (16, 20), (8, 12), (24, 28))):
        tq = 176 + 4*i
        a(f"v_cvt_pk_bf16_f32 v{tq}, v{MACC+x}, v{MACC+x+1}\nv_cvt_pk_bf16_f32 v{tq+1}, v{MACC+x+2}, v{MACC+x+3}")
        a(f"v_cvt_pk_bf16_f32 v{tq+2}, v{MACC+y}, v{MACC+y+1}\nv_cvt_pk_bf16_f32 v{tq+3}, v{MACC+y+2}, v{MACC+y+3}")
    a.label("L_p2_nm")
    a(g1(kv_dma(sVs, 0, 65536) + kv_dma(sKs, 2, 32768)))
    a(f"s_mul_i32 s66, s{sRt0}, {AFS}\ns_lshl_b32 s{sT}, s{sC1}, 11\ns_add_u32 s66, s66, s{sT}\ns_add_u32 s66, s66, {AF + 128*1024}")
    a(f"s_add_u32 s67, s66, {AFS}\ns_cmp_lt_u32 s{sC1}, 21\ns_cselect_b32 s68, s66, s{sOOB}\ns_cselect_b32 s69, s67, s{sOOB}")
    a(f"s_cmp_lt_u32 s{sC1}, 22\ns_cselect_b32 s66, s66, s{sOOB}\ns_cselect_b32 s67, s67, s{sOOB}")

def h_stores():
    return [f"buffer_store_dwordx4 v[{176+4*i}:{179+4*i}], v{vL16}, s[{SWS}:{SWS+3}], s{sb} offen offset:{off}{SC}"
            for i, (sb, off) in enumerate(((66, 0), (67, 0), (68, 1024), (69, 1024)))]

vO, vS, vQ, vP, vF, NF, vCm, vT, vL, vTS, vK, vV, vDm, vNEG = 0, 64, 128, 160, 192, 8, 224, 232, 240, 242, 244, 245, 246, 247
sMk, sVr, sVw = 80, 88, 89
def rS(b, kt, qt): return vS + b*32 + (kt*2 + qt)*4
def rP(b, ks, qt): return vP + b*16 + (ks*2 + qt)*4
def rO(dt, qt): return vO + (dt*2 + qt)*4
def rQ(qt, ds): return vQ + (qt*4 + ds)*4
def rL(b, qt): return (vL if b == 0 else 238) + qt
def v_next(s):
    return f"s_add_u32 s{s}, s{s}, 16384\ns_cmp_eq_u32 s{s}, {144*1024}\ns_cselect_b32 s{s}, {64*1024}, s{s}"
def dma_block(first=False):
    o = []
    for add in (4, 5):
        pre = (f"s_add_u32 s{sT}, s{sIt}, {add}\ns_and_b32 s100, s{sT}, 3\ns_lshl_b32 s100, s100, 14\n"
               f"s_add_u32 m0, s100, s92\ns_lshl_b32 s101, s{sT}, 14\ns_add_u32 s101, s101, s{sKs}\ns_cmp_lt_i32 s{sT}, s{sNW}\ns_cselect_b32 s101, s101, {OOB}\n")
        for i in range(4):
            o.append((pre if i == 0 else "") + f"buffer_load_dwordx4 v{vL16}, s[{SWS}:{SWS+3}], s101 offen offset:{i*1024}{SC} lds")
    for add in (2, 3):
        pre = (v_next(sVw) + f"\ns_add_u32 s{sT}, s{sIt}, {add}\ns_add_u32 m0, s92, s{sVw}\n"
               f"s_lshl_b32 s101, s{sT}, 14\ns_add_u32 s101, s101, s{sVs}\ns_cmp_lt_i32 s{sT}, s{sNW}\ns_cselect_b32 s101, s101, {OOB}\n")
        for i in range(4):
            o.append((pre if i == 0 else "") + f"buffer_load_dwordx4 v{vL16}, s[{SWS}:{SWS+3}], s101 offen offset:{i*1024}{SC} lds")
    if not first: o.append(f"s_cmp_eq_u32 s{sIt}, 3\ns_cselect_b32 s100, s76, {OOB}\nbuffer_load_dword v249, v251, s[{SWO}:{SWO+3}], s100 offen")
    else: o.append(f"buffer_load_dword v249, v251, s[{SW2}:{SW2+3}], s7 offen")
    return o
def sync_odd(first=False):
    u = uid()
    return (f"s_cmp_eq_u32 s{sG}, 0\ns_cbranch_scc1 L_sa{u}\ns_waitcnt vmcnt(0)\ns_barrier\n" +
            f"s_add_u32 s{sT}, s{sIt}, 2\ns_cmp_ge_i32 s{sT}, s{sNW}\ns_cbranch_scc1 L_sb{u}\n" + "\n".join(dma_block(first) if first else dma_block()[:-1]) +
            f"\ns_branch L_sb{u}\nL_sa{u}:\ns_barrier\nL_sb{u}:")
def add_qk(S, tile, cnt, tagn="", c0=None):
    b = tile & 1
    if b == 0: S.add_sync(f"v_xor_b32 v{vK}, 0x8000, v{vK}{tagn}", drain=False)
    for kt in range(4):
        fr = []
        for ds in range(4):
            f = vF + (cnt[0] % NF)*4; cnt[0] += 1; fr.append(f)
            S.add_load(('K', tile, kt, ds), [f"ds_read_b128 v[{f}:{f+3}], v{vK} offset:{b*16384 + (kt*4+ds)*1024}{tagn}"], f)
        order = [(ds, qt) for qt in range(2) for ds in range(4)] if CHAIN else [(ds, qt) for ds in range(4) for qt in range(2)]
        for ds, qt in order:
            S.add_slot(mfma(rS(b, kt, qt), fr[ds], rQ(qt, ds), (c0 or vCm + 4*qt) if ds == 0 else None), [('K', tile, kt, ds)])
def add_pv(S, tile, cnt, nks=2):
    b = tile & 1
    S.add_sync(v_next(sVr) + f"\nv_add_u32 v{vV}, s{sVr}, v{vL16}", drain=False)
    if CHAIN:
        for dt in range(8):
            fr = []
            for ks in range(nks):
                f = vF + (cnt[0] % NF)*4; cnt[0] += 1; fr.append(f)
                S.add_load(('V', tile, ks, dt), [f"ds_read_b128 v[{f}:{f+3}], v{vV} offset:{(ks*8+dt)*1024}"], f)
            for qt in range(2):
                for ks in range(nks):
                    S.add_slot(mfma(rO(dt, qt), fr[ks], rP(b, ks, qt)), [('V', tile, ks, dt)])
        return
    for ks in range(nks):
        for dt in range(8):
            f = vF + (cnt[0] % NF)*4; cnt[0] += 1
            S.add_load(('V', tile, ks, dt), [f"ds_read_b128 v[{f}:{f+3}], v{vV} offset:{(ks*8+dt)*1024}"], f)
            for qt in range(2):
                S.add_slot(mfma(rO(dt, qt), f, rP(b, ks, qt)), [('V', tile, ks, dt)])
def sm_pairs(b):
    out = []
    for qt in range(2):
        for ks in range(2):
            for h in range(2):
                kt = 2*ks + h
                for j in range(2):
                    s = rS(b, kt, qt) + 2*j
                    out.append((s, s+1, rP(b, ks, qt) + 2*h + j, qt, ks == 0 and h == 0 and j == 0))
    return out
def row_max(a, b, D, U):
    for qt in range(2):
        regs = [rS(b, kt, qt) + r for kt in range(4) for r in range(4)]
        a(f"v_max3_f32 v{D+qt}, v{regs[0]}, v{regs[1]}, v{regs[2]}")
        for i in range(3, 15, 2): a(f"v_max3_f32 v{D+qt}, v{D+qt}, v{regs[i]}, v{regs[i+1]}")
        a(f"v_max_f32 v{D+qt}, v{D+qt}, v{regs[15]}")
    for sw in ("v_permlane16_swap_b32", "v_permlane32_swap_b32"):
        a(f"v_mov_b32 v{U}, v{D}\nv_mov_b32 v{U+1}, v{D+1}\ns_nop 1")
        a(f"{sw} v{D}, v{U}\n{sw} v{D+1}, v{U+1}")
        a(f"v_max_f32 v{D}, v{D}, v{U}\nv_max_f32 v{D+1}, v{D+1}, v{U+1}")
def exact(a, b):
    a.label(f"L_exact{b}")
    a("s_nop 7")
    a(f"s_cmp_eq_u32 s{sMask}, 0\ns_cbranch_scc1 L_exact_nm{b}")
    els = [(kt, qt, r) for kt in range(4) for qt in range(2) for r in range(4)]
    prs = [64, 66, 68, 70]
    for i in range(len(els) + 3):
        if i < len(els):
            kt, qt, r = els[i]
            a(f"v_cmp_ge_i32 s[{prs[i%4]}:{prs[i%4]+1}], v{vDm}, {16*(kt-qt)+r}")
        if i >= 3:
            kt, qt, r = els[i-3]; s = rS(b, kt, qt) + r
            if i >= len(els): a("s_nop 0")
            a(f"v_cndmask_b32 v{s}, v{vNEG}, v{s}, s[{prs[(i-3)%4]}:{prs[(i-3)%4]+1}]")
    a.label(f"L_exact_nm{b}")
    D, Fc, U = vT, vT+2, vT+4
    row_max(a, b, D, U)
    for qt in range(2):
        a(f"v_max_f32 v{D+qt}, s{sFloor}, v{D+qt}\nv_max_f32 v{Fc+qt}, 0, v{D+qt}\nv_exp_f32 v{Fc+qt}, -v{Fc+qt}")
    for (s0, s1, dp, qt, first) in sm_pairs(b):
        a(f"v_sub_f32 v{U}, v{s0}, v{D+qt}\nv_sub_f32 v{U+1}, v{s1}, v{D+qt}")
        a(f"v_exp_f32 v{U}, v{U}\nv_exp_f32 v{U+1}, v{U+1}\ns_nop 0")
        if first: a(f"v_add_f32 v{vTS+qt}, v{U}, v{U+1}")
        else: a(f"v_add_f32 v{vTS+qt}, v{vTS+qt}, v{U}\nv_add_f32 v{vTS+qt}, v{vTS+qt}, v{U+1}")
        a(f"v_cvt_pk_bf16_f32 v{dp}, v{U}, v{U+1}")
    for qt in range(2): a(f"v_fma_f32 v{rL(b^1,qt)}, v{rL(b,qt)}, v{Fc+qt}, v{vTS+qt}")
    a(f"s_cmp_lg_u32 s{sFloor}, 0\ns_cbranch_scc1 L_exact_no{b}")
    for dt in range(8):
        for qt in range(2):
            for r in range(4): a(f"v_mul_f32 v{rO(dt,qt)+r}, v{rO(dt,qt)+r}, v{Fc+qt}")
    a.label(f"L_exact_no{b}")
    a(f"s_cmp_lg_u32 s{sMask}, 0\ns_cbranch_scc1 L_exact_ns{b}")
    for kt in range(4):
        for qt in range(2):
            for r in range(4): a(f"v_sub_f32 v{rS(b^1,kt,qt)+r}, v{rS(b^1,kt,qt)+r}, v{D+qt}")
    for qt in range(2):
        for r in range(4): a(f"v_sub_f32 v{vCm+4*qt+r}, v{vCm+4*qt+r}, v{D+qt}")
    a.label(f"L_exact_ns{b}")
    a(f"s_mov_b32 s{sFloor}, 0\ns_nop 1\ns_setpc_b64 s[{sRet}:{sRet+1}]")
def first_block(a, extra):
    D, U = vT + 4, vT
    a("s_nop 3")
    row_max(a, 0, D, U)
    for qt in range(2):
        for r in range(4): a(f"v_sub_f32 v{vCm+4*qt+r}, 0, v{D+qt}")
    a(f"s_mov_b32 s{sFloor}, 0")
    S = Sched(lookahead=14, per_slot=1, wait_group=4)
    add_qk(S, 1, [0])
    for i, (s0, s1, dp, qt, first) in enumerate(sm_pairs(0)):
        t0 = vT + (i & 1)*2; acc = rL(1, qt)
        S.add_fill(2*i, f"v_sub_f32 v{t0}, v{s0}, v{D+qt}\nv_sub_f32 v{t0+1}, v{s1}, v{D+qt}\nv_exp_f32 v{t0}, v{t0}\nv_exp_f32 v{t0+1}, v{t0+1}")
        S.add_fill(2*i+1, (f"v_add_f32 v{acc}, v{t0}, v{t0+1}" if first else f"v_add_f32 v{acc}, v{acc}, v{t0}\nv_add_f32 v{acc}, v{acc}, v{t0+1}") +
                   f"\nv_cvt_pk_bf16_f32 v{dp}, v{t0}, v{t0+1}")
    for i, t in enumerate(extra): S.add_fill(5 + 7*i, t)
    for l in S.build()[0]: a(l)
def tail_block(a, b, odd):
    S = Sched(lookahead=14, per_slot=1, wait_group=4)
    add_pv(S, b ^ 1, [0])
    k0 = 2 if odd else 0
    items = []
    for (kt, qt) in ((k0, 0), (k0+1, 1)):
        for r in range(4):
            x = rS(b, kt, qt) + r
            items.append(f"v_cndmask_b32 v{x}, v{vNEG}, v{x}, s[{sMk+2*r}:{sMk+2*r+1}]")
    started = [False, False]; i = 0
    for qt in range(2):
        for kt in range(4):
            for j in range(2):
                dp = rP(b, kt >> 1, qt) + 2*(kt & 1) + j
                if kt > k0 + qt:
                    if kt <= k0 + 1: items.append(f"v_mov_b32 v{dp}, 0")
                    continue
                s0 = rS(b, kt, qt) + 2*j; t0 = vT + (i & 1)*2; i += 1
                items.append(f"v_exp_f32 v{t0}, v{s0}\nv_exp_f32 v{t0+1}, v{s0+1}")
                items.append((f"v_add_f32 v{vTS+qt}, v{vTS+qt}, v{t0}\nv_add_f32 v{vTS+qt}, v{vTS+qt}, v{t0+1}" if started[qt] else f"v_add_f32 v{vTS+qt}, v{t0}, v{t0+1}")
                             + f"\nv_cvt_pk_bf16_f32 v{dp}, v{t0}, v{t0+1}")
                started[qt] = True
    items.append(f"v_add_f32 v{vT+4}, v{vTS}, v{vTS+1}\nv_add_f32 v{rL(b^1,0)}, v{rL(b,0)}, v{vTS}")
    items.append(f"v_cmp_nge_f32 vcc, s{sThr}, v{vT+4}\nv_add_f32 v{rL(b^1,1)}, v{rL(b,1)}, v{vTS+1}")
    n = len(items)
    for i2, t in enumerate(items):
        if n <= 30: S.add_fill(i2, t)
        else: S.add_fill(min(31, i2 * 31 // n), ("s_nop 0\n" if t.startswith("v_add") else "") + t)
    for l in S.build()[0]: a(l)
def blk(a, fn, *args, fill=()):
    S = Sched(lookahead=14, per_slot=1, wait_group=4)
    fn(S, *args)
    for i, t in enumerate(fill): S.add_fill(i * 32 // len(fill), t)
    for l in S.build()[0]: a(l)

def attention(a, events, ev_mask, idle_post):
    a(f"v_xor_b32 v{vK}, 0x8000, v{vL16}")
    a(f"s_mov_b32 s{sVr}, {48*1024}\ns_mov_b32 s{sVw}, {64*1024}")
    a(f"s_mov_b32 s{sThr}, 0x53800000\ns_mov_b32 s{sFloor}, 0xff7fffff\ns_mov_b32 s{sMask}, 0\ns_mov_b32 s{sIt}, -1\ns_mov_b32 s79, 0")
    a(ev_mask)
    a(f"v_lshlrev_b32 v251, 7, v{vLANE}\ns_bfe_u32 s64, s2, 0x40003\ns_lshl_b32 s64, s64, 3\ns_and_b32 s65, s2, 7\ns_add_u32 s64, s64, s65")
    a(f"s_lshl_b32 s76, s64, 2\ns_add_u32 s76, s76, s{sRQ}\ns_lshl_b32 s76, s76, 13\ns_lshl_b32 s7, s64, 1\ns_add_u32 s7, s7, s{sRQ}\ns_lshl_b32 s7, s7, 13")
    a(f"s_cmp_lt_u32 s{sRQ}, 2\ns_cselect_b32 s7, s7, {OOB}\ns_cmp_ge_u32 s{sP}, 4\ns_cselect_b32 s7, s7, {OOB}\ns_cselect_b32 s76, s76, {OOB}")
    a("s_waitcnt vmcnt(12) lgkmcnt(0)\ns_barrier")
    stamp(a, 7)
    b = Asm()
    b(f"v_mov_b32 v{vNEG}, 0xf149f2ca")
    b(f"s_and_b32 s{sT}, s{sRQ}, 1\ns_lshl_b32 s{sT}, s{sT}, 5")
    b(f"v_and_b32 v{vT+1}, 15, v{vLANE}\nv_lshrrev_b32 v{vT}, 4, v{vLANE}\nv_lshlrev_b32 v{vT}, 2, v{vT}\nv_sub_u32 v{vT+1}, v{vT+1}, v{vT}\nv_add_u32 v{vDm}, s{sT}, v{vT+1}")
    for r in range(4): b(f"v_cmp_ge_i32 s[{sMk+2*r}:{sMk+2*r+1}], v{vT+1}, {r}")
    for r in list(range(vO, vO+64)) + [rL(0,0), rL(0,1)]: b(f"v_mov_b32 v{r}, 0")
    blk(a, add_qk, 0, [0], "", "0", fill=[l.strip() for l in b.lines])
    a(sync_odd(True))
    a(f"s_mov_b32 s{sIt}, 0")
    a(f"s_cmp_eq_u32 s{sN}, 1\ns_cbranch_scc1 L_att_n1")
    first_block(a, h_stores())
    a("s_branch L_att_i0")
    a.label("L_att_n1")
    for t in h_stores(): a(t)
    a(f"s_mov_b32 s{sMask}, 1\ns_call_b64 s[{sRet}:{sRet+1}], L_exact0")
    a.label("L_att_i0")
    a(f"s_mov_b32 s{sIt}, 1")
    a(f"s_cmp_eq_u32 s{sN}, 1\ns_cbranch_scc1 L_att_last0")
    a(f"s_cmp_eq_u32 s{sN}, 2\ns_cbranch_scc1 L_att_tail1")
    slow = []
    def steady_loop(g):
        S = Sched(lookahead=14, per_slot=1, wait_group=8)
        cnt = [0]
        its = list(range(1, 8))
        for it in its:
            base = len(S.slots); b = it & 1
            add_qk(S, it+1, cnt, " ;@k")
            add_pv(S, it-1, cnt)
            S.add_pre(base + 32, "; @mid")
            if b == 1:
                if g == 0: S.add_pre(base + 32, "s_barrier")
                else:
                    S.add_pre(base + 32, "s_waitcnt vmcnt(0)\ns_barrier")
                    for i, o in enumerate(dma_block()): S.add_fill(base + 32 + (i*ASP)//10, o)
            pos = [int(round(i * 3.75)) for i in range(17)]
            for i, (s0, s1, dp, qt, first) in enumerate(sm_pairs(b)):
                t0 = vT + (i & 1)*2; p = base + pos[i]; w = pos[i+1] - pos[i]
                S.add_fill(p, f"v_exp_f32 v{t0}, v{s0}")
                S.add_fill(p + 1, f"v_exp_f32 v{t0+1}, v{s1}")
                if first: S.add_fill(p + 2, f"v_add_f32 v{vTS+qt}, v{t0}, v{t0+1}")
                else: S.add_fill(p + 2, f"v_add_f32 v{vTS+qt}, v{vTS+qt}, v{t0}\nv_add_f32 v{vTS+qt}, v{vTS+qt}, v{t0+1}")
                S.add_fill(p + w - 1, f"v_cvt_pk_bf16_f32 v{dp}, v{t0}, v{t0+1}")
            S.add_fill(base + 60, f"v_add_f32 v{vT+4}, v{vTS}, v{vTS+1}\nv_add_f32 v{rL(b^1,0)}, v{rL(b,0)}, v{vTS}")
            S.add_fill(base + 61, f"v_cmp_nge_f32 vcc, s{sThr}, v{vT+4}\nv_add_f32 v{rL(b^1,1)}, v{rL(b,1)}, v{vTS+1}")
            S.add_fill(base + 62, f"s_add_u32 s{sIt}, s{sIt}, 1\ns_cmp_gt_u32 s{sIt}, s{78 if b == 0 else 77}")
        segs = S.build(cuts=[64*i for i in range(len(its))])
        body1, body0 = segs[3], segs[4]
        assert body1 == segs[5] and body0 == segs[6], "attention not periodic"
        si = [i for i, l in enumerate(body0) if "@mid" in l][0]
        for l in body0[si:]:
            if ";@k" in l: a(l)
        a.raw(".p2align 6")
        a.label(f"L_att_loop{g}")
        for body, b in ((body1, 1), (body0, 0)):
            for l in body: a(l)
            a(f"s_cbranch_vccnz L_att_sl{g}{b}")
            a.label(f"L_att_bk{g}{b}")
            a("s_cbranch_scc1 L_att_tail0" if b == 1 else f"s_cbranch_scc0 L_att_loop{g}")
            slow.append(f"L_att_sl{g}{b}:\ns_call_b64 s[{sRet}:{sRet+1}], L_exact{b}\ns_cmp_gt_u32 s{sIt}, s{78 if b == 0 else 77}\ns_branch L_att_bk{g}{b}")
        if g == 0:
            a(f"s_cmp_gt_u32 s{sIt}, s77\ns_cbranch_scc1 L_att_tail1")
            a(events)
            a("s_branch L_att_loop0")
        else: a("s_branch L_att_tail1")
    a(f"s_cmp_lg_u32 s{sG}, 0\ns_cbranch_scc1 L_att_g1")
    steady_loop(0)
    a.label("L_att_g1")
    a("s_setprio 1")
    steady_loop(1)
    for t in slow: a(t)
    for b in (1, 0):
        a.label(f"L_att_tail{b}")
        a("s_waitcnt lgkmcnt(0)")
        if b == 1: a(sync_odd())
        a(f"s_mov_b32 s{sMask}, 1\ns_bitcmp1_b32 s{sRQ}, 0\ns_cbranch_scc1 L_att_to{b}")
        tail_block(a, b, False)
        a(f"s_branch L_att_tc{b}")
        a.label(f"L_att_to{b}")
        tail_block(a, b, True)
        a.label(f"L_att_tc{b}")
        a(f"s_cbranch_vccz L_att_tk{b}\ns_call_b64 s[{sRet}:{sRet+1}], L_exact{b}")
        a.label(f"L_att_tk{b}")
        a(f"s_add_u32 s{sIt}, s{sIt}, 1")
        a.label(f"L_att_last{b}")
        if b == 0: a(sync_odd())
        a(f"s_bitcmp1_b32 s{sRQ}, 0\ns_cbranch_scc1 L_att_lo{b}")
        blk(a, add_pv, b, [0], 1)
        a(f"s_branch L_att_le{b}")
        a.label(f"L_att_lo{b}")
        blk(a, add_pv, b, [0], 2)
        a.label(f"L_att_le{b}")
        if b == 0: a(f"v_mov_b32 v{rL(0,0)}, v{rL(1,0)}\nv_mov_b32 v{rL(0,1)}, v{rL(1,1)}\ns_add_u32 s{sIt}, s{sIt}, 1")
        a("s_branch L_att_epi")
    exact(a, 0); exact(a, 1)
    a.label("L_att_epi")
    stamp(a, 8)
    a("s_setprio 0")
    U = vT
    for sw in ("v_permlane16_swap_b32", "v_permlane32_swap_b32"):
        a(f"v_mov_b32 v{U}, v{vL}\nv_mov_b32 v{U+1}, v{vL+1}\ns_nop 1")
        a(f"{sw} v{vL}, v{U}\n{sw} v{vL+1}, v{U+1}")
        a(f"v_add_f32 v{vL}, v{vL}, v{U}\nv_add_f32 v{vL+1}, v{vL+1}, v{U+1}")
    a(f"v_rcp_f32 v{vL}, v{vL}\nv_rcp_f32 v{vL+1}, v{vL+1}")
    a(f"s_mul_i32 s100, s{sRt0}, {AFS}\ns_lshl_b32 s{sT}, s{sH}, 12\ns_add_u32 s100, s100, s{sT}\ns_add_u32 s100, s100, {AF}\ns_add_u32 s101, s100, {AFS}")
    n = 0
    for qt in range(2):
        sel = " op_sel_hi:[1,0]" if qt == 0 else " op_sel:[0,1] op_sel_hi:[1,1]"
        for s in range(4):
            tq = vF + (n % 4)*4; n += 1
            for k, d in enumerate((2*s, 2*s+1)):
                r = rO(d, qt)
                for j in (0, 2): a(pk("mul", r+j, f"v[{r+j}:{r+j+1}]", f"v[{vL}:{vL+1}]", sel))
            for k, d in enumerate((2*s, 2*s+1)):
                r = rO(d, qt)
                a(f"v_cvt_pk_bf16_f32 v{tq+2*k}, v{r}, v{r+1}\nv_cvt_pk_bf16_f32 v{tq+2*k+1}, v{r+2}, v{r+3}")
            a(f"buffer_store_dwordx4 v[{tq}:{tq+3}], v{vL16}, s[{SWS}:{SWS+3}], s{100+qt} offen offset:{s*1024}{SC}")
    stamp(a, 9)
    a(f"s_add_u32 s{sIt}, s{sIt}, 1")
    a.label("L_att_idle")
    a(f"s_cmp_ge_u32 s{sIt}, s{sNW}\ns_cbranch_scc1 L_att_done")
    a(sync_odd())
    a(idle_post)
    a(f"s_add_u32 s{sIt}, s{sIt}, 2\ns_branch L_att_idle")
    a.label("L_att_done")

def c_ids(sig, rb, cb):
    return (f"s_and_b32 s{sig}, s2, 3\ns_bfe_u32 s{rb}, s2, 0x10002\ns_lshl_b32 s{rb}, s{rb}, 3\ns_bfe_u32 s{sT}, s2, 0x30003\ns_add_u32 s{rb}, s{rb}, s{sT}\ns_lshr_b32 s{cb}, s2, 6")
def events():
    b = Asm()
    b(f"s_cmp_lg_u32 s{sIt}, 9\ns_cbranch_scc1 L_ev0\ns_waitcnt vmcnt(0)\ns_mov_b32 s78, s77\ns_branch L_ev9")
    b.label("L_ev0")
    b("s_mov_b32 s78, 8")
    b(c_ids(64, 65, 66))
    b(f"s_lshl_b32 s65, s65, 2\ns_add_u32 s65, s65, s66\ns_lshl_b32 s65, s65, 17\ns_add_u32 s65, s65, {EX}")
    b(f"s_lshl_b32 s66, s64, 13\ns_add_u32 s65, s65, s66\ns_lshl_b32 s66, s{sW}, 11\ns_add_u32 s65, s65, s66")
    for r in range(248, 252): b(f"v_mov_b32 v{r}, -1")
    for i in range(1, 4):
        b(f"s_add_u32 s{sT}, s64, {i}\ns_and_b32 s{sT}, s{sT}, 3\ns_lshl_b32 s{sT}, s{sT}, 15\ns_add_u32 s{sT}, s{sT}, s65")
        for j in range(2): b(f"buffer_store_dwordx4 v[248:251], v{vL16}, s[{SWS}:{SWS+3}], s{sT} offen offset:{j*1024}{SC}")
    b.label("L_ev9")
    return b.text()
def ev_mask(): return f"s_sub_u32 s77, s{sN}, 2\ns_cmp_eq_u32 s{sG}, 0\ns_cselect_b32 s78, 4, s77"
def idle_post():
    return (f"s_cmp_lg_u32 s79, 0\ns_cbranch_scc1 L_ip9\ns_cmp_lt_u32 s{sIt}, 9\ns_cbranch_scc1 L_ip9\ns_mov_b32 s79, 1\n" + with_regs(publish(3, 4), {248: 0, 251: 1}) + "\nL_ip9:")

def phase_c(a):
    sSig, sRb, sCb, sAs, sWs, sLw, sIdx = 56, 57, 58, 59, 60, 62, 63
    ACC, FA, NA, FW, NW = 0, 32, 8, 64, 4
    vA0, vWb, vAa, vWa, vDq = 224, 225, 228, 229, 232
    t = 236
    a(c_ids(sSig, sRb, sCb))
    a(f"s_sub_u32 s100, 15, s{sRb}\ns_min_u32 s100, s100, s{sRb}")
    a(f"v_and_b32 v{t}, 31, v{vLANE}\nv_lshl_add_u32 v{vPA}, v{t}, 3, s100")
    a(f"s_and_b32 s101, s2, 4\ns_lshl_b32 s101, s101, 5\ns_bfe_u32 s{sT}, s2, 0x20003\ns_lshl_b32 s{sT}, s{sT}, 3\ns_add_u32 s101, s101, s{sT}\ns_lshr_b32 s{sT}, s2, 5\ns_add_u32 s101, s101, s{sT}")
    a(f"v_and_b32 v{t}, 3, v{vLANE}\nv_lshl_add_u32 v{t}, v{t}, 5, s101\nv_cmp_gt_u32 vcc, 32, v{vLANE}\ns_nop 1\nv_cndmask_b32 v{vPA}, v{t}, v{vPA}, vcc\n" + flag_addr())
    w_dma_voff(a, vDq, 1024, t)
    a(f"s_and_b32 s{sT}, s{sW}, 1\ns_lshl_b32 s{sT}, s{sT}, 13\nv_add_u32 v{vA0}, s{sT}, v{vL16}")
    a(f"v_lshrrev_b32 v{t}, 2, v{vLANE}\nv_lshlrev_b32 v{t+1}, 8, v{t}\nv_and_b32 v{t+2}, 3, v{vLANE}\nv_lshl_add_u32 v{t+1}, v{t+2}, 3, v{t+1}\nv_add_u32 v{t+1}, 16384, v{t+1}")
    a(f"v_and_b32 v{t}, 7, v{t}\ns_and_b32 s{sT}, s{sW}, 6")
    a(f"v_xor_b32 v{t+2}, s{sT}, v{t}\nv_lshl_add_u32 v{vWb}, v{t+2}, 5, v{t+1}\nv_xor_b32 v{vWb+1}, 32, v{vWb}")
    a(f"s_lshl_b32 s97, s{sRb}, 3\ns_add_u32 s97, s97, s{sW}\ns_mul_i32 s97, s97, {AFS}\ns_add_u32 s97, s97, {AF}")
    a(f"s_lshl_b32 s98, s{sW}, 13\ns_lshl_b32 s{sT}, s{sCb}, 8\ns_add_u32 s98, s98, s{sT}")
    a(f"s_lshl_b32 s{sLw}, s{sW}, 11\ns_mul_i32 s99, s{sSig}, 11")
    NST = 22
    OWN = 3 if CB2 else 4
    def dma(st):
        sl = (st % 5) * 32768
        o = []
        if st < 6:
            pre = (f"s_add_u32 s{sIdx}, s99, {2*st}\ns_lshl_b32 s{sAs}, s{sIdx}, 10\ns_add_u32 s{sAs}, s{sAs}, s97\ns_add_u32 s{sAs}, s{sAs}, {128*1024}\n"
                   f"s_lshl_b32 s{sWs}, s{sIdx}, 15\ns_add_u32 s{sWs}, s{sWs}, s98\n")
            srdw = SW2
        else:
            pre = (f"s_lshl_b32 s{sIdx}, s{sCb}, 3\ns_add_u32 s{sIdx}, s{sIdx}, {2*(st-6)}\ns_and_b32 s{sIdx}, s{sIdx}, 31\ns_lshl_b32 s{sAs}, s{sSig}, 5\ns_add_u32 s{sIdx}, s{sIdx}, s{sAs}\n"
                   f"s_lshl_b32 s{sAs}, s{sIdx}, 10\ns_add_u32 s{sAs}, s{sAs}, s97\ns_lshl_b32 s{sWs}, s{sIdx}, 15\ns_add_u32 s{sWs}, s{sWs}, s98\n")
            srdw = SWO
        o.append(pre + f"s_add_u32 m0, s{sLw}, {sl + 16384}\ns_add_u32 s{sT}, s{sWs}, {4096 - 1024}\n"
                 f"buffer_load_dwordx4 v{vDq}, s[{srdw}:{srdw+3}], s{sWs} offen lds")
        o.append(f"buffer_load_dwordx4 v{vDq+1}, s[{srdw}:{srdw+3}], s{sT} offen offset:1024 lds")
        if st == 5:
            o.append(f"s_cmp_lt_u32 s{sSig}, 3\ns_cselect_b32 s{sAs}, s{sAs}, {OOB}\ns_add_u32 m0, s{sLw}, {sl}\ns_mov_b32 s{sT}, {OOB}\n"
                     f"buffer_load_dwordx4 v{vL16}, s[{SWS}:{SWS+3}], s{sAs} offen{SC} lds")
            o.append(f"buffer_load_dwordx4 v{vL16}, s[{SWS}:{SWS+3}], s{sT} offen offset:1024{SC} lds")
        else:
            o.append(f"s_add_u32 m0, s{sLw}, {sl}\ns_nop 0\nbuffer_load_dwordx4 v{vL16}, s[{SWS}:{SWS+3}], s{sAs} offen{SC} lds")
            o.append(f"buffer_load_dwordx4 v{vL16}, s[{SWS}:{SWS+3}], s{sAs} offen offset:1024{SC} lds")
        return o
    a(f"s_cmp_lt_u32 s{sW}, 4\ns_cbranch_scc1 L_c_g0")
    a(poll_issue() + "\ns_waitcnt vmcnt(0)\n" + poll_check(3))
    for st in range(2):
        for o in dma(st): a(o)
    a(f"s_sub_u32 s97, s97, {4*AFS}\ns_sub_u32 s98, s98, {4*8192}\ns_sub_u32 s{sLw}, s{sLw}, 8192")
    for st in range(2):
        for o in dma(st): a(o)
    a(f"s_add_u32 s97, s97, {4*AFS}\ns_add_u32 s98, s98, {4*8192}\ns_add_u32 s{sLw}, s{sLw}, 8192")
    a.label("L_c_g0")
    a("s_waitcnt vmcnt(0)\ns_barrier")
    a(publish(4))
    stamp(a, 10)
    for st in range(2, 5 if CB2 else 4):
        for o in dma(st): a(o)
    a(f"s_lshl_b32 s{sT}, s{sSig}, 6\ns_add_u32 s{sT}, s{sT}, s100\nv_and_b32 v{vPA}, 7, v{vLANE}\nv_lshl_add_u32 v{vPA}, v{vPA}, 3, s{sT}\n" + flag_addr())
    S = Sched(lookahead=10, per_slot=2, wait_group=CWG)
    na = nw = 0
    for st in range(NST):
        sl = (st % 5) * 32768
        S.add_sync(f"v_add_u32 v{vAa}, {sl}, v{vA0}\nv_add_u32 v{vWa}, {sl}, v{vWb}\nv_add_u32 v{vWa+1}, {sl}, v{vWb+1}", drain=False)
        base = len(S.slots)
        for ks in (range(2) if not CCH else []):
            wf = [FW + ((nw + i) % NW)*4 for i in range(2)]; nw += 2
            af = [FA + ((na + i) % NA)*4 for i in range(4)]; na += 4
            def ldw(ct):
                S.add_load(('W', st, ks, ct), [f"ds_read_b64_tr_b16 v[{wf[ct]}:{wf[ct]+1}], v{vWa+ct} offset:{ks*8192}",
                                               f"ds_read_b64_tr_b16 v[{wf[ct]+2}:{wf[ct]+3}], v{vWa+ct} offset:{ks*8192+4096}"], wf[ct])
            def lda(rt):
                S.add_load(('A', st, ks, rt), [f"ds_read_b128 v[{af[rt]}:{af[rt]+3}], v{vAa} offset:{(rt*2+ks)*1024}"], af[rt])
            ldw(0); lda(0); ldw(1); lda(1); lda(2); lda(3)
            for rt in range(4):
                for ct in range(2):
                    S.add_slot(mfma(ACC + (rt*2+ct)*4, wf[ct], af[rt], "0" if st == 0 and ks == 0 else None), [('W', st, ks, ct), ('A', st, ks, rt)])
        if CCH:
            wf = {}; af = {}
            def ldw2(ks, ct):
                nonlocal nw
                f = 64 + (nw % 8)*4; nw += 1; wf[ks, ct] = f
                S.add_load(('W', st, ks, ct), [f"ds_read_b64_tr_b16 v[{f}:{f+1}], v{vWa+ct} offset:{ks*8192}",
                                               f"ds_read_b64_tr_b16 v[{f+2}:{f+3}], v{vWa+ct} offset:{ks*8192+4096}"], f)
            def lda2(ks, rt):
                nonlocal na
                f = FA + (na % NA)*4; na += 1; af[ks, rt] = f
                S.add_load(('A', st, ks, rt), [f"ds_read_b128 v[{f}:{f+3}], v{vAa} offset:{(rt*2+ks)*1024}"], f)
            ldw2(0, 0); lda2(0, 0); ldw2(1, 0); lda2(1, 0); ldw2(0, 1); ldw2(1, 1)
            for rt in range(1, 4): lda2(0, rt); lda2(1, rt)
            for rt in range(4):
                for ct in range(2):
                    for ks in range(2):
                        S.add_slot(mfma(ACC + (rt*2+ct)*4, wf[ks, ct], af[ks, rt], "0" if st == 0 and ks == 0 else None), [('W', st, ks, ct), ('A', st, ks, rt)])
        if CB2:
            if st % 2 == 1 and st + 1 < NST:
                pl = poll_one(4) + "\n" if st == 3 else ""
                S.add_pre(base + 2, pl + "s_waitcnt vmcnt(0)\ns_barrier\n")
                ops = []
                for d in (3, 4):
                    if st + d < NST and st + d >= 5: ops += dma(st + d)
                for i, o in enumerate(ops): S.add_fill(base + 2 + 2*i, o)
        elif st + 1 < NST:
            left = min(NST - 1, st + 3) - (st + 1)
            pl = poll_one(4) + "\n" if st == 2 else ""
            S.add_pre(base + 2, pl + f"s_waitcnt vmcnt({4*left})\ns_barrier\n" + (stamp_txt(16 + st//2, 5) if st % 2 == 0 else ""))
            if st + 4 < NST:
                for i, o in enumerate(dma(st + 4)): S.add_fill(base + 2 + CSP*i, o)
        if st == NST - 2:
            x = Asm()
            x(f"v_and_b32 v{t}, 15, v{vLANE}\nv_lshrrev_b32 v{t+1}, 4, v{vLANE}\nv_lshlrev_b32 v{t+2}, 9, v{t+1}\nv_lshl_add_u32 v{t+2}, v{t}, 4, v{t+2}")
            x(f"v_lshlrev_b32 v{t+3}, 10, v{t}\nv_lshl_add_u32 v{t+3}, v{t+1}, 4, v{t+3}")
            x(f"v_and_b32 v{t+4}, 1, v{t+1}\nv_lshlrev_b32 v{t+4}, 9, v{t+4}\nv_lshl_add_u32 v{t+4}, v{t}, 4, v{t+4}\nv_lshrrev_b32 v{t}, 1, v{t+1}\nv_lshl_add_u32 v{t+4}, v{t}, 3, v{t+4}")
            x(f"v_lshlrev_b32 v{t+1}, 4, v{t+1}")
            x(f"s_lshl_b32 s98, s{sRb}, 7\ns_lshl_b32 s{sT}, s{sW}, 4\ns_add_u32 s98, s98, s{sT}\ns_lshl_b32 s98, s98, 10\ns_lshl_b32 s99, s{sCb}, 8\ns_lshl_b32 s{sT}, s{sSig}, 6\ns_add_u32 s99, s99, s{sT}\ns_add_u32 s98, s98, s99")
            x(f"buffer_load_dwordx4 v[100:103], v{t+3}, s[{SX}:{SX+3}], s98 offen")
            x(f"buffer_load_dwordx4 v[104:107], v{t+1}, s[{SB2}:{SB2+3}], s99 offen")
            x(f"v_and_b32 v{vPA}, 3, v{vLANE}\nv_max_u32 v{vPA}, 1, v{vPA}\nv_add_u32 v{vPA}, s{sSig}, v{vPA}\nv_and_b32 v{vPA}, 3, v{vPA}\nv_lshl_add_u32 v{vPA}, v{vPA}, 5, s101\n" + flag_addr())
            x(f"s_lshl_b32 s97, s{sRb}, 2\ns_add_u32 s97, s97, s{sCb}\ns_lshl_b32 s97, s97, 17\ns_add_u32 s97, s97, {EX}")
            x(f"s_lshl_b32 s{sT}, s{sSig}, 15\ns_add_u32 s99, s97, s{sT}\ns_lshl_b32 s{sT}, s{sW}, 12\ns_add_u32 s99, s99, s{sT}")
            ls = [l.strip() for l in x.lines]
            for i, l in enumerate(ls): S.add_fill(base + 4 + i * 24 // len(ls), l)
    for l in S.build()[0]: a(l)
    stamp(a, 12)
    a(publish(5))
    a(f"s_lshr_b32 s{sT}, s{sW}, 1\ns_cmp_eq_u32 s{sT}, s{sSig}\ns_cbranch_scc1 L_c_own")
    a("s_nop 3")
    for rt in range(4):
        r = ACC + rt*8; q = 128 + rt*4
        for k in range(4): a(f"v_cvt_pk_bf16_f32 v{q+k}, v{r+2*k}, v{r+2*k+1}")
        a(f"buffer_store_dwordx4 v[{q}:{q+3}], v{vL16}, s[{SWS}:{SWS+3}], s99 offen offset:{rt*1024}{SC}")
    a("s_branch L_c_st")
    a.label("L_c_own")
    a(f"v_add_u32 v{t}, {OWN*32768}, v{vA0}\ns_nop 3")
    for q in range(8): a(f"ds_write_b128 v{t}, v[{ACC+4*q}:{ACC+4*q+3}] offset:{q*1024}")
    a.label("L_c_st")
    a(f"s_lshl_b32 s99, s{sSig}, 13\ns_lshl_b32 s{sT}, s{sW}, 10\ns_add_u32 s99, s99, s{sT}\ns_add_u32 s97, s97, s99")
    a(f"s_lshl_b32 s{sT}, s{sW}, 11\ns_add_u32 s{sT}, s{sT}, {OWN*32768}\nv_add_u32 v{t}, s{sT}, v{t+2}")
    a(f"s_lshl_b32 s99, s{sSig}, 1\ns_add_u32 s99, s99, 1")
    a(poll_one(5, "s99") + "\ns_waitcnt lgkmcnt(0)\ns_barrier")
    stamp(a, 29, 5)
    a(f"ds_read_b128 v[32:35], v{t}\nds_read_b128 v[36:39], v{t} offset:256")
    a("s_mov_b32 s101, 0")
    a.label("L_c_rd")
    for i in range(1, 4):
        a(f"s_add_u32 s{sT}, s{sSig}, {i}\ns_and_b32 s{sT}, s{sT}, 3\ns_lshl_b32 s{sT}, s{sT}, 15\ns_add_u32 s{sT}, s{sT}, s97")
        a(f"buffer_load_dwordx2 v[{40+4*i}:{41+4*i}], v{t+4}, s[{SWS}:{SWS+3}], s{sT} offen{SC}")
        a(f"buffer_load_dwordx2 v[{42+4*i}:{43+4*i}], v{t+4}, s[{SWS}:{SWS+3}], s{sT} offen offset:256{SC}")
    a("s_waitcnt vmcnt(0)")
    a("v_max_u32 v64, v44, v45")
    for i in range(46, 56, 2): a(f"v_max3_u32 v64, v64, v{i}, v{i+1}")
    a("v_cmp_eq_u32 vcc, -1, v64\ns_cbranch_vccz L_c_ok")
    a("s_add_u32 s101, s101, 1\ns_cmp_gt_u32 s101, 0x20000\ns_cbranch_scc1 L_c_ok\ns_sleep 4\ns_branch L_c_rd")
    a.label("L_c_ok")
    unpack8(a, 100, 108); unpack8(a, 104, 116)
    for i in range(0, 8, 2): a(pk("add", 108+i, f"v[{108+i}:{109+i}]", f"v[{116+i}:{117+i}]"))
    a("s_waitcnt lgkmcnt(0)")
    for i in range(0, 8, 2): a(pk("add", 108+i, f"v[{108+i}:{109+i}]", f"v[{32+i}:{33+i}]"))
    for k in range(1, 4):
        unpack8(a, 40+4*k, 116)
        for i in range(0, 8, 2): a(pk("add", 108+i, f"v[{108+i}:{109+i}]", f"v[{116+i}:{117+i}]"))
    for i in range(4): a(f"v_cvt_pk_bf16_f32 v{100+i}, v{108+2*i}, v{109+2*i}")
    a(f"buffer_store_dwordx4 v[100:103], v{t+3}, s[{SOUT}:{SOUT+3}], s98 offen")
    if PROF: a("s_waitcnt vmcnt(0)")
    stamp(a, 13)
    if os.environ.get("DBGOUT"):
        wg = int(os.environ["DBGOUT"])
        a(f"s_cmp_lg_u32 s2, {wg}\ns_cbranch_scc1 L_end\ns_cmp_lg_u32 s{sW}, 0\ns_cbranch_scc1 L_end")
        a(f"s_waitcnt vmcnt(0)\nv_lshlrev_b32 v1, 3, v{vLANE}\ns_mov_b32 s56, {STAMP + wg*8*256}")
        a(f"buffer_load_dword v2, v1, s[{SWS}:{SWS+3}], s56 offen sc1\ns_waitcnt vmcnt(0)")
        a("v_readfirstlane_b32 s57, v2\ns_nop 3\nv_subrev_u32 v2, s57, v2")
        a(f"v_lshlrev_b32 v1, 2, v{vLANE}\nv_cmp_gt_u32 vcc, 16, v{vLANE}\ns_and_saveexec_b64 s[58:59], vcc")
        a(f"buffer_store_dword v2, v1, s[{SDBG}:{SDBG+3}], 0 offen")

def build():
    head = open("cdna_kernels/" + NAME + ".s.ref").read().split("; Override launch")[0]
    name = NAME + "_kernel"
    out = head + "; @launch grid=(256,1,1) block=(512,1,1) lds=163840\n"
    out += '.amdgcn_target "amdgcn-amd-amdhsa--gfx950"\n.text\n'
    a = Asm()
    a.raw(f".globl {name}\n.p2align 8\n.type {name},@function\n{name}:")
    b = Asm(); p2_merged(b)
    phase1(a)
    a.lines += b.lines
    stamp(a, 6)
    attention(a, events(), ev_mask(), idle_post())
    phase_c(a)
    a.label("L_end")
    a("s_endpgm")
    t = a.text()
    for p in lint(t): print("LINT", p, file=sys.stderr)
    out += t + '.section .rodata,"a"\n.p2align 6\n'
    out += (f".amdhsa_kernel {name}\n  .amdhsa_next_free_vgpr 256\n  .amdhsa_next_free_sgpr 102\n  .amdhsa_accum_offset 256\n"
            "  .amdhsa_group_segment_fixed_size 0\n  .amdhsa_kernarg_size 112\n  .amdhsa_user_sgpr_count 2\n"
            "  .amdhsa_user_sgpr_kernarg_segment_ptr 1\n  .amdhsa_system_sgpr_workgroup_id_x 1\n.end_amdhsa_kernel\n")
    return out

if __name__ == "__main__":
    open(sys.argv[1], "w").write(build())
```

```python
import sys, re, os, struct
from asmlib import *

NAME = "parallel_sum__compressed_kv_cla__mixer_channel_mlp__prompt"
MB = 1 << 20
XNF, STAT, FLG, KF, VF, AF, EX, STAMP = 0, 2*MB, 3*MB, 4*MB, 20*MB, 36*MB, 64*MB, 96*MB
AFS = 171 * 1024
WS_BYTES = 268435456
OOB = 0x40000000
PROF = int(os.environ.get("PROF", "0"))
SC = " sc1"
TLB = int(os.environ.get("TLB", "1"))
T0 = int(os.environ.get("T0", "0"))
CB2 = int(os.environ.get("CB2", "0"))
STG = int(os.environ.get("STG", "0"))
P1WG = int(os.environ.get("P1WG", "4"))
CWG = int(os.environ.get("CWG", "4"))
CCH = int(os.environ.get("CCH", "0"))
XE = int(os.environ.get("XE", "2"))
CHAIN = int(os.environ.get("CHAIN", "0"))
VB = int(os.environ.get("VB", "1"))
P1PRIO = int(os.environ.get("P1PRIO", "0"))
CSP = int(os.environ.get("CSP", "4"))
ASP = int(os.environ.get("ASP", "10"))
TW = int(os.environ.get("TW", "13"))
LATE = int(os.environ.get("LATE", "8"))
LIN = int(os.environ.get("LIN", "0"))
EARLY = int(os.environ.get("EARLY", "0"))
def fb(x): return "0x%08x" % struct.unpack("<I", struct.pack("<f", x))[0]

sW, sH, sP, sF = 3, 4, 5, 6
SX, SCKV, SWQ, SWKV, SWO, SW1, SW2, SB1, SB2, SOUT, SDBG, SWS = 8, 12, 16, 20, 24, 28, 32, 36, 40, 44, 48, 52
sCnt, sT, sRet, sSpin = 92, 93, 94, 90
vLANE, vL16 = 255, 254
vPA, vPV = 250, 249
_u = [0]
def uid():
    _u[0] += 1; return _u[0]

def stamp_txt(idx, level=1, dyn=None):
    if PROF == 0 or (level > 1 and PROF != level): return ""
    return ("s_memrealtime s[72:73]\ns_memtime s[74:75]\ns_waitcnt lgkmcnt(0)\nv_mov_b32 v252, s72\nv_mov_b32 v253, s74\n"
            f"s_lshl_b32 s75, s2, 3\ns_add_u32 s75, s75, s{sW}\ns_lshl_b32 s75, s75, 8\ns_add_u32 s75, s75, {STAMP + idx*8}\n"
            + (f"s_lshl_b32 s74, s{dyn}, 3\ns_sub_u32 s75, s75, s74\n" if dyn else "") +
            f"s_mov_b64 s[72:73], exec\ns_mov_b64 exec, 1\nbuffer_store_dwordx2 v[252:253], v{vLANE}, s[{SWS}:{SWS+3}], s75 offen\ns_mov_b64 exec, s[72:73]\n")
def stamp(a, idx, level=1): a(stamp_txt(idx, level))

def srd(a, d, ptr, nbytes):
    a(f"s_mov_b32 s{d}, s{ptr}\ns_and_b32 s{d+1}, s{ptr+1}, 0xffff\ns_mov_b32 s{d+2}, {nbytes}\ns_mov_b32 s{d+3}, 0x20000")

def resolve_vm(lines):
    out = []; ops = []
    for l in lines:
        for s in l.split("\n"):
            s = s.strip()
            if s.startswith("@vmwait"):
                tag = s.split()[1]
                idx = max(i for i, t in enumerate(ops) if t[0] == tag)
                n = sum(c for _, c in ops[idx+1:])
                assert n <= 63
                out.append(f"s_waitcnt vmcnt({n})")
            else:
                m = re.search(r";@vm (\S+)", s)
                if m: ops.append((m.group(1), 1))
                m = re.search(r";@mk (\S+)", s)
                if m: ops.append((m.group(1), 0))
                out.append(s)
    return out

def publish(val, wave=0):
    u = uid()
    if val == 1:
        st = f"v_mov_b32 v251, s{sF}\n", f"buffer_store_byte v248, v251, s[{SDBG}:{SDBG+3}], 0 offen sc1\n"
    else:
        st = f"s_lshl_b32 s{sT}, s{sF}, 7\ns_add_u32 s{sT}, s{sT}, {FLG}\nv_mov_b32 v251, s{sT}\n", f"buffer_store_dword v248, v251, s[{SWS}:{SWS+3}], 0 offen sc1\n"
    return (f"s_cmp_lg_u32 s{sW}, {wave}\ns_cbranch_scc1 L_pub{u}\nv_mov_b32 v248, {val}\n" + st[0] +
            "s_mov_b64 s[72:73], exec\ns_mov_b64 exec, 1\n" + st[1] + f"s_mov_b64 exec, s[72:73]\nL_pub{u}:")
def flag_addr(): return f"v_lshlrev_b32 v{vPA}, 7, v{vPA}\nv_add_u32 v{vPA}, {FLG}, v{vPA}"
def poll_issue(): return f"buffer_load_dword v{vPV}, v{vPA}, s[{SWS}:{SWS+3}], 0 offen sc1"
def poll_check(thr):
    u = uid()
    return (f"s_mov_b32 s{sSpin}, 0\nL_pl{u}:\nv_cmp_gt_u32 vcc, {thr}, v{vPV}\ns_cbranch_vccz L_pd{u}\n"
            f"s_add_u32 s{sSpin}, s{sSpin}, 1\ns_cmp_gt_u32 s{sSpin}, 0x40000\ns_cbranch_scc1 L_pd{u}\n"
            f"s_sleep 4\n{poll_issue()}\ns_waitcnt vmcnt(0)\ns_branch L_pl{u}\nL_pd{u}:")
def poll_one(thr, wave=0):
    u = uid()
    return (f"s_cmp_lg_u32 s{sW}, {wave}\ns_cbranch_scc1 L_po{u}\n" + poll_issue() + "\ns_waitcnt vmcnt(0)\n" + poll_check(thr) + f"\nL_po{u}:")
def poll2_issue(): return f"buffer_load_dword v{vPV}, v{vPA}, s[{SDBG}:{SDBG+3}], 0 offen sc1"
def poll2_check():
    u = uid()
    return (f"s_mov_b32 s{sSpin}, 0\nL_pl{u}:\nv_cmp_ne_u32 vcc, 0x01010101, v{vPV}\ns_cbranch_vccz L_pd{u}\n"
            f"s_add_u32 s{sSpin}, s{sSpin}, 1\ns_cmp_gt_u32 s{sSpin}, 0x40000\ns_cbranch_scc1 L_pd{u}\n"
            f"s_sleep 8\n{poll2_issue()}\ns_waitcnt vmcnt(0)\ns_branch L_pl{u}\nL_pd{u}:")
def with_regs(txt, m):
    for k, v in m.items(): txt = re.sub(rf"\bv{k}\b", f"v{v}", txt)
    return txt

def unpack8(a, src, dst):
    for i in range(4):
        a(f"v_lshlrev_b32 v{dst+2*i}, 16, v{src+i}\nv_and_b32 v{dst+2*i+1}, 0xffff0000, v{src+i}")
def w_dma_voff(a, v, stride, t):
    a(f"v_lshrrev_b32 v{t}, 4, v{vLANE}\nv_bfe_u32 v{t+1}, v{vLANE}, 1, 3\nv_xor_b32 v{t+1}, v{t+1}, v{t}\nv_lshlrev_b32 v{t+1}, 5, v{t+1}")
    a(f"v_and_b32 v{t+2}, 1, v{vLANE}\nv_lshl_add_u32 v{t+1}, v{t+2}, 4, v{t+1}\nv_mul_u32_u24 v{t}, {stride}, v{t}")
    a(f"v_add_u32 v{v}, v{t}, v{t+1}\nv_xor_b32 v{t+1}, 128, v{t+1}\nv_add_u32 v{v+1}, v{t}, v{t+1}")
def w_read_addr(a, v, n, base_s, dt0_s, t):
    a(f"v_lshrrev_b32 v{t}, 4, v{vLANE}\nv_bfe_u32 v{t+1}, v{vLANE}, 2, 2")
    a(f"v_lshl_add_u32 v{t+2}, v{t}, 3, v{t+1}\nv_lshlrev_b32 v{t+2}, 8, v{t+2}")
    a(f"v_and_b32 v{t+3}, 3, v{vLANE}\nv_lshl_add_u32 v{t+2}, v{t+3}, 3, v{t+2}\nv_add_u32 v{t+2}, s{base_s}, v{t+2}")
    a(f"v_and_b32 v{t}, 1, v{t}\nv_lshl_or_b32 v{t}, v{t}, 2, v{t+1}")
    for i in range(n):
        a(f"s_add_u32 s{sT}, s{dt0_s}, {i}\nv_xor_b32 v{t+3}, s{sT}, v{t}\nv_lshl_add_u32 v{v+i}, v{t+3}, 5, v{t+2}")
def interleave(x, y):
    out = []
    for i in range(max(len(x), len(y))):
        if i < len(x): out.append(x[i])
        if i < len(y): out.append(y[i])
    return out

def ln_row(B, nop=0):
    a = Asm()
    pk, x, t = B, B+4, B+12
    m, s, u, r, d = t, t+1, t+2, t+3, t+4
    def allreduce(v):
        for mode in ("quad_perm:[1,0,3,2]", "quad_perm:[2,3,0,1]", "row_half_mirror", "row_mirror"):
            a(f"s_nop {nop}\nv_add_f32_dpp v{v}, v{v}, v{v} {mode} row_mask:0xf bank_mask:0xf")
        for sw in ("v_permlane16_swap_b32", "v_permlane32_swap_b32"):
            a(f"v_mov_b32 v{u}, v{v}\ns_nop {nop}\n{sw} v{v}, v{u}\nv_add_f32 v{v}, v{v}, v{u}")
    def rbf(v): a(f"v_cvt_pk_bf16_f32 v{v}, v{v}, v{v}\nv_lshlrev_b32 v{v}, 16, v{v}")
    def stats():
        a(f"v_add_f32 v{m}, v{x}, v{x+1}\nv_add_f32 v{s}, v{x+2}, v{x+3}\nv_add_f32 v{u}, v{x+4}, v{x+5}\nv_add_f32 v{r}, v{x+6}, v{x+7}")
        a(f"v_add_f32 v{m}, v{m}, v{s}\nv_add_f32 v{u}, v{u}, v{r}\nv_add_f32 v{m}, v{m}, v{u}")
        allreduce(m)
        a(f"v_mul_f32 v{m}, 0x3b000000, v{m}")
        for i in range(8): a(f"v_sub_f32 v{d+i}, v{x+i}, v{m}")
        a(f"v_mul_f32 v{s}, v{d}, v{d}\nv_mul_f32 v{r}, v{d+1}, v{d+1}")
        for i in range(2, 8, 2): a(f"v_fmac_f32 v{s}, v{d+i}, v{d+i}\nv_fmac_f32 v{r}, v{d+i+1}, v{d+i+1}")
        a(f"v_add_f32 v{s}, v{s}, v{r}")
        allreduce(s)
        a(f"v_mul_f32 v{s}, 0x3b000000, v{s}")
        rbf(m); rbf(s)
        a(f"v_add_f32 v{s}, 0x3727c5ac, v{s}")
        rbf(s)
        a(f"v_sqrt_f32 v{s}, v{s}\ns_nop 0")
        rbf(s)
        a(f"v_rcp_f32 v{r}, v{s}")
    unpack8(a, pk, x)
    stats()
    for i in range(8): a(f"v_sub_f32 v{d+i}, v{x+i}, v{m}")
    for i in range(4): a(f"v_cvt_pk_bf16_f32 v{pk+i}, v{d+2*i}, v{d+2*i+1}")
    unpack8(a, pk, d)
    for i in range(8):
        a(f"v_mul_f32 v{x+i}, v{d+i}, v{r}\nv_fma_f32 v{d+i}, -v{x+i}, v{s}, v{d+i}\nv_fmac_f32 v{x+i}, v{d+i}, v{r}")
    for i in range(4): a(f"v_cvt_pk_bf16_f32 v{pk+i}, v{x+2*i}, v{x+2*i+1}")
    unpack8(a, pk, x)
    stats()
    a(f"v_mov_b32 v{B+26}, v{m}\nv_mov_b32 v{B+27}, v{r}")
    return [l.strip() for l in a.lines]

sG, sRQ, sBlk, sN, sNW, sIt, sKs, sVs, sThr, sFloor, sMask, sRt0 = 56, 57, 58, 59, 60, 61, 62, 63, 96, 97, 98, 99
def att_ids(a):
    a(f"s_lshr_b32 s{sG}, s{sW}, 2\ns_and_b32 s{sRQ}, s{sW}, 3")
    a(f"s_sub_u32 s{sBlk}, 15, s{sP}\ns_cmp_eq_u32 s{sG}, 0\ns_cselect_b32 s{sBlk}, s{sBlk}, s{sP}")
    a(f"s_lshl_b32 s{sRt0}, s{sBlk}, 3\ns_lshl_b32 s{sT}, s{sRQ}, 1\ns_add_u32 s{sRt0}, s{sRt0}, s{sT}")

P1_W, P1_A, P1_NA = 128, 160, 8
vAr, vWr, vDA, vDW, vD1 = 192, 194, 198, 244, 246
sAoff, sWoff, sLdsA, sLdsW = 60, 61, 62, 63
sNlds, sHasM, sOOB, sXit, sL1, sC1, sXn, sW1b, sJ = 70, 71, 82, 83, 85, 86, 87, 88, 89
SLOT = [0, 65536, 114688, 0]

def p1_dma(i, srdw=SWKV, dA=0, dL=0):
    if i < 4:
        return (f"s_add_u32 m0, s{sLdsA}, {(i*1024 + dL) & 0xffffffff}\ns_add_u32 s{sT}, s{sAoff}, {(i*8192 + dA) & 0xffffffff}\n"
                f"buffer_load_dwordx4 v{vDA+(i&1)}, s[{SCKV}:{SCKV+3}], s{sT} offen lds")
    j = i - 4
    return (f"s_add_u32 m0, s{sLdsW}, {(j*1024 + dL) & 0xffffffff}\ns_add_u32 s{sT}, s{sWoff}, {j*4*8192}\n"
            f"buffer_load_dwordx4 v{vDW+(j>>1)}, s[{srdw}:{srdw+3}], s{sT} offen lds")
def p1_adv():
    return (f"s_add_u32 s{sAoff}, s{sAoff}, 128\ns_add_u32 s{sWoff}, s{sWoff}, {64*8192}\n"
            f"s_xor_b32 s{sLdsA}, s{sLdsA}, 0x10000\ns_xor_b32 s{sLdsW}, s{sLdsW}, 0x10000")
def p2_dma(stg, i, tag=True):
    tg = f" ;@vm d{stg}" if tag else ""
    if i < 4:
        return (f"s_add_u32 m0, s{sNlds}, {SLOT[stg] + i*1024}\ns_add_u32 s{sT}, s{sJ}, {(stg*128 + i*4)*8192}\n"
                f"buffer_load_dwordx4 v{vDW+((i>>1)&1)}, s[{SWQ}:{SWQ+3}], s{sT} offen lds{tg}")
    j = i - 4
    return (f"s_add_u32 m0, s{sL1}, {SLOT[stg] + 32768 + j*1024}\ns_add_u32 s{sT}, s{sW1b}, {(stg*128 + j*8)*2752}\n"
            f"buffer_load_dwordx4 v{vD1+j}, s[{SW1}:{SW1+3}], s{sT} offen lds{tg}")
def accP1(isV, kt, dt):
    return (((kt >> 1)*4 + dt)*2 + (kt & 1))*4 if isV else (kt*4 + dt)*4

vT128, vT1K, vTW, vLNr, vLNs = 232, 233, 234, 235, 240
sPre, sPost = 80, 81
def side_pre(tag, isV):
    if isV: return ""
    return (f"L_pre{tag}:\ns_cmp_lg_u32 s{sCnt}, 6\ns_cbranch_scc1 L_pre1{tag}\ns_call_b64 s[{sRet}:{sRet+1}], L_ln\ns_branch L_preb{tag}\n"
            f"L_pre1{tag}:\ns_waitcnt vmcnt(0)\n" + poll2_check() + f"\ns_branch L_preb{tag}")
def side_post(tag, isV):
    def ld(v, srdn, x=""): return f"s_mov_b32 s64, s{srdn}\ns_mov_b32 s65, s{srdn+1}\ns_mov_b32 s66, s{srdn+2}\nv_mov_b32 v230, v{v}\n"
    t = f"L_post{tag}:\ns_cmp_lg_u32 s{sCnt}, s{sXit}\ns_cbranch_scc1 L_q1{tag}\n"
    t += f"s_lshr_b32 s57, s2, 3\ns_lshl_b32 s57, s57, 16\ns_lshl_b32 s58, s{sW}, 13\ns_add_u32 s57, s57, s58\n" + ld(vT128, SWS, " sc1") + f"s_branch L_postb{tag}\n"
    t += f"L_q1{tag}:\ns_and_b32 s57, s{sW}, 3\ns_cmp_lg_u32 s57, 2\ns_cbranch_scc1 L_q0{tag}\n"
    t += f"s_sub_u32 s57, 8, s{sCnt}\ns_lshl_b32 s57, s57, 20\ns_lshl_b32 s58, s{sP}, 16\ns_add_u32 s57, s57, s58\ns_lshl_b32 s58, s{sH}, 8\ns_add_u32 s57, s57, s58\n" + ld(241, SWKV) + f"s_branch L_postb{tag}\n"
    t += f"L_q0{tag}:\n"
    if isV:
        t += f"s_cmp_lg_u32 s{sW}, 4\ns_cbranch_scc1 L_q2{tag}\n"
        t += f"s_lshl_b32 s57, s{sP}, 2\ns_and_b32 s58, s{sH}, 3\ns_add_u32 s57, s57, s58\ns_lshl_b32 s57, s57, 16\ns_sub_u32 s58, 9, s{sCnt}\ns_lshl_b32 s58, s58, 7\ns_add_u32 s57, s57, s58\n" + ld(vT1K, SCKV) + f"s_branch L_postb{tag}\n"
        t += f"L_q2{tag}:\ns_cmp_eq_u32 s{sCnt}, 3\ns_cbranch_scc1 L_q3{tag}\n"
        t += f"s_and_b32 s57, s{sCnt}, 1\ns_lshl_b32 s57, s57, 21\ns_lshl_b32 s58, s{sP}, 16\ns_add_u32 s57, s57, s58\ns_lshl_b32 s58, s{sH}, 8\ns_add_u32 s57, s57, s58\n" + ld(vTW, SWQ) + f"s_branch L_postb{tag}\n"
        t += f"L_q3{tag}:\ns_lshl_b32 s57, s2, 13\n" + ld(vT128, SW1) + f"s_branch L_postb{tag}"
    else:
        t += f"s_cmp_eq_u32 s{sCnt}, 5\ns_cbranch_scc0 L_q2{tag}\n" + publish(1) + f"\ns_branch L_postb{tag}\n"
        t += f"L_q2{tag}:\n" + poll2_issue() + f"\ns_branch L_postb{tag}"
    return t
def ln_sub(a):
    a.label("L_ln")
    for l in ln_row(200, 1): a(l)
    a(f"s_mul_i32 s57, s{sW}, 1040\ns_add_u32 s57, s57, 131072\nv_add_u32 v204, s57, v{vL16}")
    a("ds_write_b128 v204, v[200:203]")
    a("s_waitcnt lgkmcnt(0)")
    a(f"s_setpc_b64 s[{sRet}:{sRet+1}]")
def ln_store_txt(tag):
    return (f"s_cmp_lg_u32 s{sCnt}, 6\ns_cbranch_scc1 L_lns{tag}\nds_read_b128 v[200:203], v{vLNr}\ns_waitcnt lgkmcnt(0)\n"
            f"buffer_store_dwordx4 v[200:203], v{vLNs}, s[{SWS}:{SWS+3}], s7 offen{SC}\nL_lns{tag}:\n")

def p1_main(a, isV, tag):
    S = Sched(lookahead=24, per_slot=1, wait_group=P1WG)
    for st in range(8):
        for ks in range(2):
            for kt in range(8):
                for dt in range(4):
                    acc = accP1(isV, kt, dt)
                    wf = P1_W + ((st*2+ks) & 1) * 16 + dt * 4
                    af = P1_A + ((st*16 + ks*8 + kt) % P1_NA) * 4
                    S.add_slot(mfma(acc, af, wf) if isV else mfma(acc, wf, af), [('W', st, ks, dt), ('A', st, ks, kt)])
    x = "\n".join(f"v_xor_b32 v{r}, 0x10000, v{r}" for r in list(range(vAr, vAr+2)) + list(range(vWr, vWr+4)))
    for st in range(9):
        dmas = []
        if st > 0:
            sy = ""
            if st < 7 and not isV: sy += f"s_bitcmp1_b32 s{sPre}, s{sCnt}\ns_cbranch_scc1 L_pre{tag}\nL_preb{tag}:\n"
            sy += f"s_waitcnt vmcnt({1 if st < 8 else 0})\ns_barrier\n" + (stamp_txt(22, 4, sCnt) if st < 7 else stamp_txt(15 + st, 4))
            if st < 7:
                sy += f"s_cmp_eq_u32 s{sCnt}, 6\ns_cbranch_scc1 L_lns{tag}\nL_lnsb{tag}:\n"
                dmas = [p1_dma(i) for i in range(8)]
                dmas[7] += ("\n" + p1_adv() + f"\ns_mov_b32 s57, s{sOOB}\ns_bitcmp1_b32 s{sPost}, s{sCnt}\ns_cbranch_scc1 L_post{tag}\nL_postb{tag}:\n"
                            "buffer_load_dword v229, v230, s[64:67], s57 offen sc1")
            else:
                dmas = [p2_dma(st - 7, i, False) for i in range(6)]
            if (isV and VB) or st == 8:
                sy += "\n".join(dmas) + "\n"; dmas = []
            S.add_sync(sy + (x if st < 8 else ""), drain=True, delay=3)
        if st == 8: break
        for ks in range(2):
            order = [('W', 0), ('W', 1), ('A', 0), ('W', 2), ('W', 3)] + [('A', k) for k in range(1, 8)]
            for (kind, i) in order:
                if kind == 'W':
                    wf = P1_W + ((st*2+ks) & 1) * 16 + i * 4
                    S.add_load(('W', st, ks, i),
                               [f"ds_read_b64_tr_b16 v[{wf}:{wf+1}], v{vWr+i} offset:{ks*8192}",
                                f"ds_read_b64_tr_b16 v[{wf+2}:{wf+3}], v{vWr+i} offset:{ks*8192+1024}"], wf)
                else:
                    af = P1_A + ((st*16 + ks*8 + i) % P1_NA) * 4
                    S.add_load(('A', st, ks, i), [f"ds_read_b128 v[{af}:{af+3}], v{vAr+ks} offset:{i*2048}"], af)
                if dmas and ks == 0:
                    S.add_sync(dmas.pop(0), drain=False)
                    if kind == 'W' and dmas: S.add_sync(dmas.pop(0), drain=False)
    S.ops[-1]['force_at'] = 64*7 + 44
    for i in range(10): S.add_fill(64*7 + XE + 3*i, x_load(i & 1, i >> 1).replace(";@vm", ";"))
    segs = S.build(cuts=[64*s for s in range(8)])
    body = segs[2]
    for k in range(3, 7): assert body == segs[k], "p1 not periodic"
    bi = [i for i, l in enumerate(body) if "s_barrier" in l][0]
    for l in body[bi+1:]:
        if l.startswith("ds_read"): a(l)
    a(f"s_mov_b32 s{sCnt}, 6")
    a.label(f"L_p1_{tag}")
    for l in body: a(l)
    a(f"s_sub_u32 s{sCnt}, s{sCnt}, 1\ns_cmp_lg_u32 s{sCnt}, 0\ns_cbranch_scc1 L_p1_{tag}")
    for l in segs[7] + segs[8]: a(l)
    a("s_branch L_p1_done")
    a(side_pre(tag, isV)); a(side_post(tag, isV))
    a(f"L_lns{tag}:\nds_read_b128 v[200:203], v{vLNr}\n"
      f"s_lshl_b32 s57, s{sF}, 3\ns_add_u32 s57, s57, s{sW}\ns_lshl_b32 s57, s57, 3\ns_add_u32 s57, s57, {STAT}\n"
      "s_mov_b64 s[72:73], exec\ns_mov_b64 exec, 1\n"
      f"buffer_store_dwordx2 v[226:227], v{vLANE}, s[{SWS}:{SWS+3}], s57 offen{SC}\ns_mov_b64 exec, s[72:73]\ns_waitcnt lgkmcnt(0)\n"
      f"buffer_store_dwordx4 v[200:203], v{vLNs}, s[{SWS}:{SWS+3}], s7 offen{SC}\ns_branch L_lnsb{tag}")

def phase1(a):
    a("s_cmp_ge_u32 s2, 256\ns_cbranch_scc1 L_end")
    a("s_load_dwordx16 s[64:79], s[0:1], 0\ns_load_dwordx8 s[80:87], s[0:1], 64\ns_load_dwordx4 s[88:91], s[0:1], 96")
    a(f"v_lshrrev_b32 v1, 6, v0\nv_and_b32 v{vLANE}, 63, v0\nv_readfirstlane_b32 s{sW}, v1\nv_lshlrev_b32 v{vL16}, 4, v{vLANE}")
    a(f"s_and_b32 s56, s2, 7\ns_lshl_b32 s56, s56, 2\ns_lshr_b32 s57, s2, 3\ns_and_b32 s57, s57, 3\ns_add_u32 s{sH}, s56, s57")
    a(f"s_lshr_b32 s{sP}, s2, 5\ns_lshl_b32 s{sF}, s{sH}, 3\ns_add_u32 s{sF}, s{sF}, s{sP}")
    t = 236
    a(f"v_lshrrev_b32 v{t}, 3, v{vLANE}\nv_lshlrev_b32 v{t}, 10, v{t}")
    a(f"v_and_b32 v{t+1}, 7, v{vLANE}\nv_lshrrev_b32 v{t+2}, 4, v{vLANE}\nv_xor_b32 v{t+1}, v{t+1}, v{t+2}\nv_lshlrev_b32 v{t+1}, 4, v{t+1}")
    a(f"v_add_u32 v{vDA}, v{t}, v{t+1}\nv_xor_b32 v{t+1}, 64, v{t+1}\nv_add_u32 v{vDA+1}, v{t}, v{t+1}")
    w_dma_voff(a, vDW, 8192, t)
    a(f"s_lshl_b32 s{sAoff}, s{sP}, 8\ns_lshl_b32 s{sT}, s{sW}, 5\ns_add_u32 s{sAoff}, s{sAoff}, s{sT}\ns_lshl_b32 s{sAoff}, s{sAoff}, 10")
    a(f"s_and_b32 s{sT}, s{sW}, 3\ns_lshl_b32 s{sWoff}, s{sT}, 17\ns_lshl_b32 s{sT}, s{sH}, 8\ns_add_u32 s{sWoff}, s{sWoff}, s{sT}")
    a(f"s_lshl_b32 s{sLdsA}, s{sW}, 12\ns_add_u32 s{sLdsW}, s{sLdsA}, 32768")
    a("s_waitcnt lgkmcnt(0)")
    srd(a, SX, 64, 2*MB); srd(a, SCKV, 66, 2*MB); srd(a, SWO, 70, 4*MB)
    a("s_mov_b32 s100, s74\ns_mov_b32 s101, s75\ns_mov_b32 s96, s72\ns_mov_b32 s97, s73")
    a(f"s_cmp_lt_u32 s{sW}, 4\ns_cselect_b32 s56, s70, s72\ns_cselect_b32 s57, s71, s73")
    srd(a, SWKV, 56, 4*MB); srd(a, SWS, 90, WS_BYTES)
    stamp(a, 0)
    if LIN:
        a(f"v_lshlrev_b32 v{vT128}, 7, v{vLANE}")
        a(f"s_and_b32 s57, s{sW}, 3\ns_cmp_ge_u32 s57, 2\ns_cbranch_scc1 L_l1")
        a(f"s_lshl_b32 s58, s2, 1\ns_add_u32 s57, s57, s58\ns_lshl_b32 s57, s57, 13")
        a(f"buffer_load_dword v229, v{vT128}, s[{SWKV}:{SWKV+3}], s57 offen\ns_branch L_l2")
        a.label("L_l1")
        a(f"s_cmp_lg_u32 s{sW}, 2\ns_cbranch_scc1 L_l2\ns_lshl_b32 s57, s2, 13")
        a(f"buffer_load_dword v229, v{vT128}, s[{SCKV}:{SCKV+3}], s57 offen")
        a.label("L_l2")
    if T0:
        a(f"v_lshlrev_b32 v{vT1K}, 10, v{vLANE}")
        a(f"v_bfe_u32 v{t+1}, v{vLANE}, 4, 1\nv_lshlrev_b32 v{t+1}, 6, v{t+1}\nv_bfe_u32 v{t+2}, v{vLANE}, 1, 3\nv_add_u32 v{t+1}, v{t+1}, v{t+2}\nv_lshlrev_b32 v{t+1}, 13, v{t+1}")
        a(f"v_and_b32 v{t+2}, 1, v{vLANE}\nv_lshl_add_u32 v241, v{t+2}, 7, v{t+1}")
        a(f"s_cmp_ge_u32 s{sW}, 2\ns_cbranch_scc1 L_z1")
        a(f"s_lshl_b32 s57, s{sP}, 2\ns_and_b32 s58, s{sH}, 3\ns_add_u32 s57, s57, s58\ns_lshl_b32 s57, s57, 16\ns_lshl_b32 s58, s{sW}, 7\ns_add_u32 s57, s57, s58")
        a(f"buffer_load_dword v229, v{vT1K}, s[{SCKV}:{SCKV+3}], s57 offen\ns_branch L_z2")
        a.label("L_z1")
        a(f"s_and_b32 s57, s{sW}, 3\ns_cmp_lg_u32 s57, 2\ns_cbranch_scc1 L_z2")
        a(f"s_lshl_b32 s57, s{sP}, 16\ns_lshl_b32 s58, s{sH}, 8\ns_add_u32 s57, s57, s58")
        a(f"buffer_load_dword v229, v241, s[{SWKV}:{SWKV+3}], s57 offen")
        a.label("L_z2")
        a(f"s_lshl_b32 s56, s{sF}, 3\ns_add_u32 s56, s56, s{sW}\ns_lshl_b32 s57, s56, 10")
        a(f"buffer_load_dwordx4 v[200:203], v{vL16}, s[{SX}:{SX+3}], s57 offen")
        a(publish(0))
    else:
        a(f"s_lshl_b32 s56, s{sF}, 3\ns_add_u32 s56, s56, s{sW}\ns_lshl_b32 s57, s56, 10")
        for i in range(8): a(p1_dma(i))
        a(p1_adv())
        a(f"buffer_load_dwordx4 v[200:203], v{vL16}, s[{SX}:{SX+3}], s57 offen")
        a(publish(0))
    a.label("L_st_j")
    stamp(a, 4)
    srd(a, SWQ, 68, 4*MB); srd(a, SWO, 100, 4*MB); srd(a, SW1, 78, 512*1376*2); srd(a, SB1, 80, 1376*2); srd(a, SW2, 82, 512*1376*2)
    srd(a, SB2, 84, 1024); srd(a, SOUT, 86, 2*MB); srd(a, SDBG, 88, 256)
    if TLB:
        srd(a, 64, 96, 4*MB)
        a(f"v_lshlrev_b32 v230, 16, v{vLANE}\ns_lshr_b32 s57, s2, 3\ns_cmp_lg_u32 s{sW}, 3\ns_cbranch_scc1 L_tl9")
        for i, sd in enumerate((SWKV, 64, SWQ, SW1, SWO, SW2)):
            a(f"s_cmp_lg_u32 s57, {i}\ns_cbranch_scc1 L_tl{i}\nbuffer_load_dword v229, v230, s[{sd}:{sd+3}], 0 offen\nL_tl{i}:")
        if TLB >= 2:
            a(f"s_sub_u32 s58, s57, 9\ns_lshl_b32 s58, s58, 22\ns_add_u32 s58, s58, {AF}")
            a(f"s_cmp_eq_u32 s57, 6\ns_cselect_b32 s58, 0, s58")
            a(f"s_and_b32 s56, s2, 7\ns_lshl_b32 s56, s56, 21\ns_add_u32 s{sT}, s56, {KF}\ns_cmp_eq_u32 s57, 7\ns_cselect_b32 s58, s{sT}, s58")
            a(f"s_add_u32 s{sT}, s56, {VF}\ns_cmp_eq_u32 s57, 8\ns_cselect_b32 s58, s{sT}, s58")
            a(f"s_cmp_eq_u32 s57, 15\ns_cselect_b32 s58, {EX}, s58\ns_cmp_eq_u32 s57, 16\ns_cselect_b32 s58, {EX + 4*MB}, s58")
            a(f"s_cmp_lt_u32 s57, 6\ns_cbranch_scc1 L_tl9\ns_cmp_gt_u32 s57, 16\ns_cbranch_scc1 L_tl8")
            a(f"buffer_load_dword v229, v230, s[{SWS}:{SWS+3}], s58 offen sc1\ns_branch L_tl9")
            a.label("L_tl8")
            a(f"s_cmp_lg_u32 s57, 17\ns_cbranch_scc1 L_tl9\nbuffer_load_dword v229, v230, s[{SOUT}:{SOUT+3}], 0 offen")
        a.label("L_tl9")
    a(f"s_and_b32 s{sT}, s{sW}, 1\ns_lshl_b32 s{sT}, s{sT}, 14")
    a(f"v_and_b32 v{t}, 15, v{vLANE}\nv_lshlrev_b32 v{t+1}, 7, v{t}\nv_add_u32 v{t+1}, s{sT}, v{t+1}")
    a(f"v_lshrrev_b32 v{t}, 1, v{t}\nv_lshrrev_b32 v{t+2}, 4, v{vLANE}\nv_xor_b32 v{t}, v{t}, v{t+2}")
    a(f"v_lshl_add_u32 v{vAr}, v{t}, 4, v{t+1}\nv_xor_b32 v{vAr+1}, 64, v{vAr}")
    a(f"s_lshr_b32 s56, s{sW}, 2\ns_lshl_b32 s56, s56, 14\ns_add_u32 s56, s56, 32768\ns_bfe_u32 s57, s{sW}, 0x10001\ns_lshl_b32 s57, s57, 2")
    w_read_addr(a, vWr, 4, 56, 57, t)
    att_ids(a)
    a(f"s_lshl_b32 s{sXn}, s{sRt0}, 14")
    a(f"s_lshr_b32 s{sC1}, s{sH}, 2\ns_add_u32 s{sC1}, s{sC1}, s{sP}\ns_and_b32 s{sC1}, s{sC1}, 7\ns_sub_u32 s{sT}, 64, s{sH}\ns_and_b32 s{sT}, s{sT}, 3\ns_lshl_b32 s{sT}, s{sT}, 3\ns_add_u32 s{sC1}, s{sC1}, s{sT}")
    a(f"s_cmp_lt_u32 s{sC1}, 22\ns_cselect_b32 s{sHasM}, 1, 0")
    a(f"s_lshl_b32 s{sJ}, s{sW}, 17\ns_lshl_b32 s{sT}, s{sH}, 8\ns_add_u32 s{sJ}, s{sJ}, s{sT}")
    a(f"s_lshl_b32 s{sNlds}, s{sW}, 12\ns_lshl_b32 s{sL1}, s{sW}, 11\ns_mov_b32 s{sOOB}, {OOB}")
    a(f"v_lshrrev_b32 v{t}, 3, v{vLANE}\nv_mul_u32_u24 v{t}, 2752, v{t}\nv_bfe_u32 v{t+1}, v{vLANE}, 1, 2\nv_bfe_u32 v{t+2}, v{vLANE}, 4, 1")
    a(f"v_xor_b32 v{t+1}, v{t+1}, v{t+2}\nv_lshlrev_b32 v{t+1}, 5, v{t+1}\nv_and_b32 v{t+2}, 1, v{vLANE}\nv_lshl_add_u32 v{t+1}, v{t+2}, 4, v{t+1}")
    a(f"v_add_u32 v{vD1}, v{t}, v{t+1}\nv_xor_b32 v{t+1}, 64, v{t+1}\nv_add_u32 v{vD1+1}, v{t}, v{t+1}")
    a(f"s_mul_i32 s{sW1b}, s{sW}, {16*2752}\ns_lshl_b32 s{sT}, s{sC1}, 7\ns_add_u32 s{sW1b}, s{sW1b}, s{sT}\ns_cmp_lg_u32 s{sHasM}, 0\ns_cselect_b32 s{sW1b}, s{sW1b}, s{sOOB}")
    a(f"s_lshl_b32 s{sT}, s{sW}, 2\ns_lshr_b32 s{sXit}, 0x22211221, s{sT}\ns_and_b32 s{sXit}, s{sXit}, 15")
    a(f"s_lshl_b32 s{sPost}, 1, s{sXit}\ns_mov_b32 s{sPre}, 0x40")
    a(f"s_cmp_eq_u32 s{sW}, 0\ns_cselect_b32 s{sT}, 0x28, 0\ns_or_b32 s{sPost}, s{sPost}, s{sT}\ns_cmp_eq_u32 s{sW}, 0\ns_cselect_b32 s{sT}, 4, 0\ns_or_b32 s{sPre}, s{sPre}, s{sT}")
    a(f"s_cmp_eq_u32 s{sW}, 4\ns_cselect_b32 s{sT}, 0x7c, 0\ns_or_b32 s{sPost}, s{sPost}, s{sT}\ns_cmp_eq_u32 s{sW}, 5\ns_cselect_b32 s{sT}, 0x38, 0\ns_or_b32 s{sPost}, s{sPost}, s{sT}")
    a(f"s_and_b32 s{sT}, s{sW}, 3\ns_cmp_eq_u32 s{sT}, 2\ns_cselect_b32 s{sT}, 0x60, 0\ns_or_b32 s{sPost}, s{sPost}, s{sT}")
    a(f"v_lshlrev_b32 v{vPA}, 2, v{vLANE}\nv_lshlrev_b32 v{vT128}, 7, v{vLANE}\nv_lshlrev_b32 v{vT1K}, 10, v{vLANE}")
    a(f"v_lshrrev_b32 v{t+1}, 4, v{vLANE}\nv_lshlrev_b32 v{t+1}, 6, v{t+1}\nv_bfe_u32 v{t+2}, v{vLANE}, 1, 3\nv_add_u32 v{t+1}, v{t+1}, v{t+2}\nv_lshlrev_b32 v{t+1}, 13, v{t+1}")
    a(f"v_and_b32 v{t+2}, 1, v{vLANE}\nv_lshl_add_u32 v{vTW}, v{t+2}, 7, v{t+1}")
    a(f"v_and_b32 v241, 0xfffff, v{vTW}")
    a(f"v_and_b32 v{t}, 7, v{vLANE}\nv_mul_u32_u24 v{vLNr}, 1040, v{t}\nv_lshrrev_b32 v{t+2}, 3, v{vLANE}\nv_lshl_add_u32 v{vLNr}, v{t+2}, 4, v{vLNr}")
    a(f"s_lshl_b32 s57, s{sW}, 7\ns_add_u32 s57, s57, 131072\nv_add_u32 v{vLNr}, s57, v{vLNr}")
    a(f"v_lshlrev_b32 v{vLNs}, 8, v{t+2}\nv_lshl_add_u32 v{vLNs}, v{t}, 4, v{vLNs}")
    a(f"s_lshr_b32 s7, s{sF}, 1\ns_lshl_b32 s7, s7, 14\ns_lshl_b32 s58, s{sW}, 11\ns_add_u32 s7, s7, s58\ns_and_b32 s58, s{sF}, 1\ns_lshl_b32 s58, s58, 7\ns_add_u32 s7, s7, s58")
    for r in range(128): a(f"v_mov_b32 v{r}, 0")
    if T0:
        if T0 == 2: a("s_waitcnt vmcnt(0)\ns_barrier")
        for i in range(8): a(p1_dma(i))
        a(p1_adv())
    for i in range(4): a(p1_dma(i))
    a("s_waitcnt vmcnt(4)\ns_barrier")
    stamp(a, 1)
    for i in range(4, 8): a(p1_dma(i))
    a(p1_adv())
    srd(a, 64, SWS, WS_BYTES)
    a(f"v_mov_b32 v230, v{vT128}")
    a(f"s_cmp_eq_u32 s{sW}, 4\ns_cbranch_scc1 L_st_c")
    a(f"s_lshl_b32 s57, s{sP}, 16\ns_lshl_b32 s58, s{sH}, 8\ns_add_u32 s57, s57, s58\ns_add_u32 s57, s57, {1 << 20}")
    a(f"s_and_b32 s58, s{sW}, 3\ns_cmp_eq_u32 s58, 2\ns_cselect_b32 s57, s57, s{sOOB}")
    a(f"buffer_load_dword v229, v241, s[{SWKV}:{SWKV+3}], s57 offen\ns_branch L_st_a")
    a.label("L_st_c")
    a(f"s_lshl_b32 s57, s{sP}, 2\ns_and_b32 s58, s{sH}, 3\ns_add_u32 s57, s57, s58\ns_lshl_b32 s57, s57, 16\ns_add_u32 s57, s57, 256")
    a(f"buffer_load_dword v229, v{vT1K}, s[{SCKV}:{SCKV+3}], s57 offen")
    a.label("L_st_a")
    a(f"s_cmp_ge_u32 s{sW}, 4\ns_cbranch_scc1 L_p1v")
    p1_main(a, False, "k")
    ln_sub(a)
    a.label("L_p1v")
    a(f"s_call_b64 s[{sRet}:{sRet+1}], L_ln")
    if P1PRIO: a("s_setprio 1")
    p1_main(a, True, "v")
    for t in stubs: a(t)
    a.label("L_p1_done")
    if P1PRIO == 1: a("s_setprio 0")
    stamp(a, 2)

def rXm(rt, ks): return (200 + 8*(ks % 6) if ks % 6 < 5 else 64) + 4*rt
AQ, A1, CS, WR, NWR, ONE = 192, 240, 124, 104, 5, 248
QACC, MACC = 128, 72
LOW = {248: 0, 249: 1, 250: 2, 251: 3}
stubs = []
P2LA, P2WG = int(os.environ.get('P2LA', '8')), int(os.environ.get("P2WG", "4"))
def x_load(rt, ks):
    r = rXm(rt, ks)
    return (f"s_add_u32 s{sT}, s{sXn}, {rt*16384 + (ks//4)*4096}\n"
            f"buffer_load_dwordx4 v[{r}:{r+3}], v{vL16}, s[{SWS}:{SWS+3}], s{sT} offen offset:{(ks%4)*1024}{SC} ;@vm x{ks}")
def kv_store(j, grp=None):
    base = 65 if j & 2 else 64
    st = (f"s_add_u32 s{sT}, s{base}, {(j>>2)*8192}\n"
          f"buffer_store_dwordx4 v[{4*j}:{4*j+3}], v{vL16}, s[{SWS}:{SWS+3}], s{sT} offen offset:{(j&1)*1024}{SC}")
    if grp is None: return st + " ;@vm st"
    u = uid()
    return f"s_cbranch_vcc{'nz' if grp == 0 else 'z'} L_kv{u}\n" + st + " ;@mk st" + f"\nL_kv{u}:"
def att_scalars(a):
    att_ids(a)
    a(f"s_lshl_b32 s{sN}, s{sBlk}, 1\ns_lshr_b32 s{sT}, s{sRQ}, 1\ns_add_u32 s{sN}, s{sN}, s{sT}\ns_add_u32 s{sN}, s{sN}, 1")
    a(f"s_lshl_b32 s{sT}, s{sP}, 1\ns_sub_u32 s{sNW}, 32, s{sT}\ns_lshl_b32 s92, s{sRQ}, 12")
    a(f"s_lshl_b32 s{sKs}, s{sH}, 19\ns_add_u32 s{sKs}, s{sKs}, s92\ns_add_u32 s{sVs}, s{sKs}, {VF}\ns_add_u32 s{sKs}, s{sKs}, {KF}")
def kv_dma(src, t, lds):
    s = f"s_add_u32 m0, s92, {lds}\ns_add_u32 s{sT}, s{src}, {t*16384}\n"
    for i in range(4):
        s += f"buffer_load_dwordx4 v{vL16}, s[{SWS}:{SWS+3}], s{sT} offen offset:{i*1024}{SC} lds\n"
    return s
def pk(op, d, x, y, mods=""): return f"v_pk_{op}_f32 v[{d}:{d+1}], {x}, {y}{mods}"

def p2_merged(a):
    a(f"s_lshl_b32 s64, s{sH}, 19\ns_lshl_b32 s{sT}, s{sP}, 16\ns_add_u32 s64, s64, s{sT}\ns_and_b32 s{sT}, s{sW}, 1\ns_lshl_b32 s{sT}, s{sT}, 15\ns_add_u32 s64, s64, s{sT}")
    a(f"s_bfe_u32 s66, s{sW}, 0x10001\ns_lshl_b32 s67, s66, 12\ns_lshl_b32 s66, s66, 11\ns_add_u32 s66, s66, {KF}\ns_add_u32 s67, s67, {VF}")
    a(f"s_cmp_lt_u32 s{sW}, 4\ns_cselect_b32 s66, s66, s67\ns_cselect_b32 s65, 2, 1\ns_lshl_b32 s65, s65, 11\ns_add_u32 s64, s64, s66\ns_add_u32 s65, s65, s64")
    for j in range(16):
        for i in range(4): a(f"v_cvt_pk_bf16_f32 v{4*j+i}, v{8*j+2*i}, v{8*j+2*i+1}")
    lines = []
    for ks in range(5):
        for rt in range(2): lines.append(f"; issued in P1 ;@vm x{ks}")
    for i in range(6): lines.append("; issued in P1 ;@vm d1")
    b = Asm()
    att_scalars(b)
    b("s_mov_b32 s100, 0")
    t = 72
    w_read_addr(b, AQ, 8, 100, 100, t)
    b(f"v_lshrrev_b32 v{t}, 4, v{vLANE}\nv_bfe_u32 v{t+1}, v{vLANE}, 2, 2\nv_lshl_add_u32 v{t+2}, v{t}, 3, v{t+1}\nv_lshlrev_b32 v{t+2}, 7, v{t+2}")
    b(f"v_and_b32 v{t+3}, 3, v{vLANE}\nv_lshl_add_u32 v{t+2}, v{t+3}, 3, v{t+2}\nv_add_u32 v{t+2}, 32768, v{t+2}")
    b(f"v_and_b32 v{t}, 1, v{t}\nv_lshrrev_b32 v{t+1}, 1, v{t+1}\nv_lshl_or_b32 v{t}, v{t}, 1, v{t+1}")
    for ct in range(4): b(f"v_xor_b32 v{t+3}, {ct}, v{t}\nv_lshl_add_u32 v{A1+ct}, v{t+3}, 5, v{t+2}")
    for r in range(CS, CS+4): b(f"v_mov_b32 v{r}, 0")
    for r in range(ONE, ONE+4): b(f"v_mov_b32 v{r}, 0x3f803f80")
    if STG: b(f"s_bitcmp1_b32 s{sW}, {STG-1}\ns_cselect_b64 vcc, -1, 0")
    lines += [l.strip() for l in b.lines]
    lines += stamp_txt(24, 4).split("\n")
    K = 24
    fills = {}
    def F(sl, txt): fills.setdefault(sl, []).append(txt)
    for ks in range(11):
        F(K*ks + 5, x_load(0, ks+5)); F(K*ks + 17, x_load(1, ks+5))
    for i in range(16):
        if STG: F(int(i*16.2) + 1, kv_store(i, 0)); F(int(i*16.2) + 9, kv_store(i, 1))
        else: F(int(i*16.2) + 2, kv_store(i))
    for i in range(6): F(1 + 8*i + 3, p2_dma(2, i))
    ST_, BI_ = 8, 12
    F(K*6 + 1, f"v_and_b32 v4, 15, v{vLANE}\nv_lshlrev_b32 v4, 3, v4\ns_lshl_b32 s{sT}, s{sRt0}, 7\ns_add_u32 s{sT}, s{sT}, {STAT}\n"
               f"buffer_load_dwordx2 v[{ST_}:{ST_+1}], v4, s[{SWS}:{SWS+3}], s{sT} offen{SC} ;@vm m\n"
               f"buffer_load_dwordx2 v[{ST_+2}:{ST_+3}], v4, s[{SWS}:{SWS+3}], s{sT} offen offset:128{SC} ;@vm m")
    F(K*7 + 1, f"v_lshrrev_b32 v5, 4, v{vLANE}\nv_lshlrev_b32 v5, 3, v5\ns_lshl_b32 s{sT}, s{sC1}, 7\n" +
               "\n".join(f"buffer_load_dwordx2 v[{BI_+2*ct}:{BI_+2*ct+1}], v5, s[{SB1}:{SB1+3}], s{sT} offen offset:{ct*32} ;@vm m" for ct in range(4)))
    F(K*13 + 1, with_regs(f"v_and_b32 v{vPA}, 7, v{vLANE}\nv_max_u32 v{vPA}, 1, v{vPA}\nv_add_u32 v{vPA}, s{sP}, v{vPA}\nv_and_b32 v{vPA}, 7, v{vPA}\ns_lshl_b32 s{sT}, s{sH}, 3\nv_add_u32 v{vPA}, s{sT}, v{vPA}\n" + flag_addr(), LOW))
    F(K*15 + 1, with_regs(f"s_cmp_lg_u32 s{sW}, 0\ns_cbranch_scc1 L_p2_ni\n" + poll_issue() + "\nL_p2_ni:", LOW))
    Bf, t = 32, 20
    for ct in range(4):
        F(K*14 + 2 + 4*ct, f"v_lshlrev_b32 v{Bf+4*ct}, 16, v{BI_+2*ct}\nv_and_b32 v{Bf+1+4*ct}, 0xffff0000, v{BI_+2*ct}\n"
                           f"v_lshlrev_b32 v{Bf+2+4*ct}, 16, v{BI_+1+2*ct}\nv_and_b32 v{Bf+3+4*ct}, 0xffff0000, v{BI_+1+2*ct}")
    F(K*14 + 20, f"v_lshrrev_b32 v{t}, 4, v{vLANE}\nv_lshlrev_b32 v{t}, 4, v{t}\ns_lshl_b32 s{sT}, s{sW}, 6\ns_add_u32 s{sT}, s{sT}, 131072\nv_add_u32 v{t+1}, s{sT}, v{t}\nv_add_u32 v{t}, 131072, v{t}")
    S = Sched(lookahead=P2LA, per_slot=2, wait_group=P2WG)
    n = 0
    for ks in range(16):
        stg, kk = ks // 4, ks % 4
        if kk == 0 and stg > 0:
            d = SLOT[stg] - SLOT[stg-1]
            upd = "\n".join(f"v_add_u32 v{r}, {d & 0xffffffff}, v{r}" for r in list(range(AQ, AQ+8)) + list(range(A1, A1+4)))
            sy = {1: "@vmwait d1\ns_barrier\n", 2: "@vmwait d2\ns_barrier\n", 3: "@vmwait st\ns_barrier\n" + with_regs(publish(2), LOW) + "\n"}[stg]
            S.add_sync(stamp_txt(24 + stg, 4) + sy + upd, drain=False)
            if stg == 2:
                for i in range(6): F(K*8 + 1 + 3*i, p2_dma(3, i))
        order = list(range(8, 12)) + list(range(8)) if ks == 15 else list(range(12))
        firstslot = True
        for c in order:
            wf = WR + (n % NWR)*4; n += 1
            if c < 8:
                S.add_load((ks, c), [f"ds_read_b64_tr_b16 v[{wf}:{wf+1}], v{AQ+c} offset:{kk*8192}",
                                     f"ds_read_b64_tr_b16 v[{wf+2}:{wf+3}], v{AQ+c} offset:{kk*8192+1024}"], wf)
            else:
                S.add_load((ks, c), [f"ds_read_b64_tr_b16 v[{wf}:{wf+1}], v{A1+c-8} offset:{kk*4096}",
                                     f"ds_read_b64_tr_b16 v[{wf+2}:{wf+3}], v{A1+c-8} offset:{kk*4096+512}"], wf)
            for rt in range(2):
                acc = QACC + (rt*8 + c)*4 if c < 8 else MACC + (rt*4 + c-8)*4
                pre = ""
                if c >= 8 and rt == 1:
                    u = uid()
                    pre = f"s_cmp_eq_u32 s{sW}, {(ks>>3)*4+c-8}\ns_cbranch_scc1 L_cs{u}\nL_cb{u}:\n"
                    stubs.append(f"L_cs{u}:\n" + mfma(CS, wf, ONE) + f"\ns_branch L_cb{u}")
                sl = S.add_slot(pre + mfma(acc, wf, rXm(rt, ks), "0" if ks == 0 else None), [(ks, c)])
                if firstslot: S.add_pre(sl, f"@vmwait x{ks}"); firstslot = False
    for sl, fl in fills.items():
        for f in fl: S.add_fill(sl, f)
    lines += S.build()[0]
    for l in resolve_vm(lines): a(l)
    stamp(a, 28, 4)
    a(f"ds_write_b128 v{t+1}, v[{CS}:{CS+3}]")
    a(f"s_waitcnt vmcnt(0) lgkmcnt(0)\ns_cmp_lg_u32 s{sW}, 0\ns_cbranch_scc1 L_p2_np\n" + with_regs(poll_check(2), LOW) + "\nL_p2_np:\ns_barrier")
    stamp(a, 29, 4)
    def g1(txt):
        u = uid(); return f"s_cmp_eq_u32 s{sG}, 0\ns_cbranch_scc1 L_g{u}\n" + txt + f"L_g{u}:"
    a(g1(kv_dma(sKs, 0, 0)))
    C = 200
    for i in range(8): a(f"ds_read_b128 v[{C+4*i}:{C+4*i+3}], v{t} offset:{i*64}")
    a("v_mov_b32 v22, 0x3e0293ee")
    for j in range(8):
        s, d = QACC + 8*j, QACC + 4*j
        for i in range(0, 8, 2): a(pk("mul", s+i, f"v[{s+i}:{s+i+1}]", "v[22:23]", " op_sel_hi:[1,0]"))
        for i in range(4): a(f"v_cvt_pk_bf16_f32 v{d+i}, v{s+2*i}, v{s+2*i+1}")
    stamp(a, 5)
    a(g1(kv_dma(sKs, 1, 16384)))
    a(f"s_cmp_eq_u32 s{sHasM}, 0\ns_cbranch_scc1 L_p2_nm")
    k = -2.0 * 0.7978845608028654 * 1.4426950408889634
    a(f"v_mov_b32 v22, {fb(k*0.044715)}\nv_mov_b32 v23, {fb(k)}\nv_mov_b32 v48, 1.0")
    a("s_waitcnt lgkmcnt(0)")
    for i in range(0, 16, 2): a(pk("add", C+i, f"v[{C+i}:{C+i+1}]", f"v[{C+16+i}:{C+17+i}]"))
    for q in range(8):
        rt, ct = q >> 2, q & 3
        r0 = MACC + 4*q; T = 24 + (q & 1)*4; mr = f"v[{ST_+2*rt}:{ST_+2*rt+1}]"
        R = lambda j: f"v[{r0+j}:{r0+j+1}]"
        TT = lambda j: f"v[{T+j}:{T+j+1}]"
        for j in (0, 2): a(f"v_pk_fma_f32 {R(j)}, {mr}, v[{C+4*ct+j}:{C+4*ct+j+1}], {R(j)} op_sel_hi:[0,1,1] neg_lo:[1,0,0] neg_hi:[1,0,0]")
        for j in (0, 2): a(f"v_pk_fma_f32 {R(j)}, {R(j)}, {mr}, v[{Bf+4*ct+j}:{Bf+4*ct+j+1}] op_sel:[0,1,0] op_sel_hi:[1,1,1]")
        for j in (0, 2): a(f"v_pk_mul_f32 {TT(j)}, {R(j)}, {R(j)}")
        for j in (0, 2): a(f"v_pk_fma_f32 {TT(j)}, {TT(j)}, v[22:23], v[22:23] op_sel:[0,0,1] op_sel_hi:[1,0,1]")
        for j in (0, 2): a(f"v_pk_mul_f32 {TT(j)}, {TT(j)}, {R(j)}")
        for j in range(4): a(f"v_exp_f32 v{T+j}, v{T+j}")
        for j in (0, 2): a(f"v_pk_add_f32 {TT(j)}, {TT(j)}, v[48:49] op_sel_hi:[1,0]")
        for j in range(4): a(f"v_rcp_f32 v{T+j}, v{T+j}")
        for j in (0, 2): a(f"v_pk_mul_f32 {R(j)}, {R(j)}, {TT(j)}")
    for i, (x, y) in enumerate(((0, 4), (16, 20), (8, 12), (24, 28))):
        tq = 176 + 4*i
        a(f"v_cvt_pk_bf16_f32 v{tq}, v{MACC+x}, v{MACC+x+1}\nv_cvt_pk_bf16_f32 v{tq+1}, v{MACC+x+2}, v{MACC+x+3}")
        a(f"v_cvt_pk_bf16_f32 v{tq+2}, v{MACC+y}, v{MACC+y+1}\nv_cvt_pk_bf16_f32 v{tq+3}, v{MACC+y+2}, v{MACC+y+3}")
    a.label("L_p2_nm")
    a(g1(kv_dma(sVs, 0, 65536) + kv_dma(sKs, 2, 32768)))
    a(f"s_mul_i32 s66, s{sRt0}, {AFS}\ns_lshl_b32 s{sT}, s{sC1}, 11\ns_add_u32 s66, s66, s{sT}\ns_add_u32 s66, s66, {AF + 128*1024}")
    a(f"s_add_u32 s67, s66, {AFS}\ns_cmp_lt_u32 s{sC1}, 21\ns_cselect_b32 s68, s66, s{sOOB}\ns_cselect_b32 s69, s67, s{sOOB}")
    a(f"s_cmp_lt_u32 s{sC1}, 22\ns_cselect_b32 s66, s66, s{sOOB}\ns_cselect_b32 s67, s67, s{sOOB}")

def h_stores():
    return [f"buffer_store_dwordx4 v[{176+4*i}:{179+4*i}], v{vL16}, s[{SWS}:{SWS+3}], s{sb} offen offset:{off}{SC}"
            for i, (sb, off) in enumerate(((66, 0), (67, 0), (68, 1024), (69, 1024)))]

vO, vS, vQ, vP, vF, NF, vCm, vT, vL, vTS, vK, vV, vDm, vNEG = 0, 64, 128, 160, 192, 8, 224, 232, 240, 242, 244, 245, 246, 247
sMk, sVr, sVw = 80, 88, 89
def rS(b, kt, qt): return vS + b*32 + (kt*2 + qt)*4
def rP(b, ks, qt): return vP + b*16 + (ks*2 + qt)*4
def rO(dt, qt): return vO + (dt*2 + qt)*4
def rQ(qt, ds): return vQ + (qt*4 + ds)*4
def rL(b, qt): return (vL if b == 0 else 238) + qt
def v_next(s):
    return f"s_add_u32 s{s}, s{s}, 16384\ns_cmp_eq_u32 s{s}, {144*1024}\ns_cselect_b32 s{s}, {64*1024}, s{s}"
def dma_block(first=False):
    o = []
    for add in (4, 5):
        pre = (f"s_add_u32 s{sT}, s{sIt}, {add}\ns_and_b32 s100, s{sT}, 3\ns_lshl_b32 s100, s100, 14\n"
               f"s_add_u32 m0, s100, s92\ns_lshl_b32 s101, s{sT}, 14\ns_add_u32 s101, s101, s{sKs}\ns_cmp_lt_i32 s{sT}, s{sNW}\ns_cselect_b32 s101, s101, {OOB}\n")
        for i in range(4):
            o.append((pre if i == 0 else "") + f"buffer_load_dwordx4 v{vL16}, s[{SWS}:{SWS+3}], s101 offen offset:{i*1024}{SC} lds")
    for add in (2, 3):
        pre = (v_next(sVw) + f"\ns_add_u32 s{sT}, s{sIt}, {add}\ns_add_u32 m0, s92, s{sVw}\n"
               f"s_lshl_b32 s101, s{sT}, 14\ns_add_u32 s101, s101, s{sVs}\ns_cmp_lt_i32 s{sT}, s{sNW}\ns_cselect_b32 s101, s101, {OOB}\n")
        for i in range(4):
            o.append((pre if i == 0 else "") + f"buffer_load_dwordx4 v{vL16}, s[{SWS}:{SWS+3}], s101 offen offset:{i*1024}{SC} lds")
    if not first: o.append(f"s_cmp_eq_u32 s{sIt}, 3\ns_cselect_b32 s100, s76, {OOB}\nbuffer_load_dword v249, v251, s[{SWO}:{SWO+3}], s100 offen")
    else: o.append(f"buffer_load_dword v249, v251, s[{SW2}:{SW2+3}], s7 offen")
    return o
def sync_odd(first=False):
    u = uid()
    return (f"s_cmp_eq_u32 s{sG}, 0\ns_cbranch_scc1 L_sa{u}\ns_waitcnt vmcnt(0)\ns_barrier\n" +
            f"s_add_u32 s{sT}, s{sIt}, 2\ns_cmp_ge_i32 s{sT}, s{sNW}\ns_cbranch_scc1 L_sb{u}\n" + "\n".join(dma_block(first) if first else dma_block()[:-1]) +
            f"\ns_branch L_sb{u}\nL_sa{u}:\ns_barrier\nL_sb{u}:")
def add_qk(S, tile, cnt, tagn="", c0=None):
    b = tile & 1
    if b == 0: S.add_sync(f"v_xor_b32 v{vK}, 0x8000, v{vK}{tagn}", drain=False)
    for kt in range(4):
        fr = []
        for ds in range(4):
            f = vF + (cnt[0] % NF)*4; cnt[0] += 1; fr.append(f)
            S.add_load(('K', tile, kt, ds), [f"ds_read_b128 v[{f}:{f+3}], v{vK} offset:{b*16384 + (kt*4+ds)*1024}{tagn}"], f)
        order = [(ds, qt) for qt in range(2) for ds in range(4)] if CHAIN else [(ds, qt) for ds in range(4) for qt in range(2)]
        for ds, qt in order:
            S.add_slot(mfma(rS(b, kt, qt), fr[ds], rQ(qt, ds), (c0 or vCm + 4*qt) if ds == 0 else None), [('K', tile, kt, ds)])
def add_pv(S, tile, cnt, nks=2):
    b = tile & 1
    S.add_sync(v_next(sVr) + f"\nv_add_u32 v{vV}, s{sVr}, v{vL16}", drain=False)
    if CHAIN:
        for dt in range(8):
            fr = []
            for ks in range(nks):
                f = vF + (cnt[0] % NF)*4; cnt[0] += 1; fr.append(f)
                S.add_load(('V', tile, ks, dt), [f"ds_read_b128 v[{f}:{f+3}], v{vV} offset:{(ks*8+dt)*1024}"], f)
            for qt in range(2):
                for ks in range(nks):
                    S.add_slot(mfma(rO(dt, qt), fr[ks], rP(b, ks, qt)), [('V', tile, ks, dt)])
        return
    for ks in range(nks):
        for dt in range(8):
            f = vF + (cnt[0] % NF)*4; cnt[0] += 1
            S.add_load(('V', tile, ks, dt), [f"ds_read_b128 v[{f}:{f+3}], v{vV} offset:{(ks*8+dt)*1024}"], f)
            for qt in range(2):
                S.add_slot(mfma(rO(dt, qt), f, rP(b, ks, qt)), [('V', tile, ks, dt)])
def sm_pairs(b):
    out = []
    for qt in range(2):
        for ks in range(2):
            for h in range(2):
                kt = 2*ks + h
                for j in range(2):
                    s = rS(b, kt, qt) + 2*j
                    out.append((s, s+1, rP(b, ks, qt) + 2*h + j, qt, ks == 0 and h == 0 and j == 0))
    return out
def row_max(a, b, D, U):
    for qt in range(2):
        regs = [rS(b, kt, qt) + r for kt in range(4) for r in range(4)]
        a(f"v_max3_f32 v{D+qt}, v{regs[0]}, v{regs[1]}, v{regs[2]}")
        for i in range(3, 15, 2): a(f"v_max3_f32 v{D+qt}, v{D+qt}, v{regs[i]}, v{regs[i+1]}")
        a(f"v_max_f32 v{D+qt}, v{D+qt}, v{regs[15]}")
    for sw in ("v_permlane16_swap_b32", "v_permlane32_swap_b32"):
        a(f"v_mov_b32 v{U}, v{D}\nv_mov_b32 v{U+1}, v{D+1}\ns_nop 1")
        a(f"{sw} v{D}, v{U}\n{sw} v{D+1}, v{U+1}")
        a(f"v_max_f32 v{D}, v{D}, v{U}\nv_max_f32 v{D+1}, v{D+1}, v{U+1}")
def exact(a, b):
    a.label(f"L_exact{b}")
    a("s_nop 7")
    a(f"s_cmp_eq_u32 s{sMask}, 0\ns_cbranch_scc1 L_exact_nm{b}")
    els = [(kt, qt, r) for kt in range(4) for qt in range(2) for r in range(4)]
    prs = [64, 66, 68, 70]
    for i in range(len(els) + 3):
        if i < len(els):
            kt, qt, r = els[i]
            a(f"v_cmp_ge_i32 s[{prs[i%4]}:{prs[i%4]+1}], v{vDm}, {16*(kt-qt)+r}")
        if i >= 3:
            kt, qt, r = els[i-3]; s = rS(b, kt, qt) + r
            if i >= len(els): a("s_nop 0")
            a(f"v_cndmask_b32 v{s}, v{vNEG}, v{s}, s[{prs[(i-3)%4]}:{prs[(i-3)%4]+1}]")
    a.label(f"L_exact_nm{b}")
    D, Fc, U = vT, vT+2, vT+4
    row_max(a, b, D, U)
    for qt in range(2):
        a(f"v_max_f32 v{D+qt}, s{sFloor}, v{D+qt}\nv_max_f32 v{Fc+qt}, 0, v{D+qt}\nv_exp_f32 v{Fc+qt}, -v{Fc+qt}")
    for (s0, s1, dp, qt, first) in sm_pairs(b):
        a(f"v_sub_f32 v{U}, v{s0}, v{D+qt}\nv_sub_f32 v{U+1}, v{s1}, v{D+qt}")
        a(f"v_exp_f32 v{U}, v{U}\nv_exp_f32 v{U+1}, v{U+1}\ns_nop 0")
        if first: a(f"v_add_f32 v{vTS+qt}, v{U}, v{U+1}")
        else: a(f"v_add_f32 v{vTS+qt}, v{vTS+qt}, v{U}\nv_add_f32 v{vTS+qt}, v{vTS+qt}, v{U+1}")
        a(f"v_cvt_pk_bf16_f32 v{dp}, v{U}, v{U+1}")
    for qt in range(2): a(f"v_fma_f32 v{rL(b^1,qt)}, v{rL(b,qt)}, v{Fc+qt}, v{vTS+qt}")
    a(f"s_cmp_lg_u32 s{sFloor}, 0\ns_cbranch_scc1 L_exact_no{b}")
    for dt in range(8):
        for qt in range(2):
            for r in range(4): a(f"v_mul_f32 v{rO(dt,qt)+r}, v{rO(dt,qt)+r}, v{Fc+qt}")
    a.label(f"L_exact_no{b}")
    a(f"s_cmp_lg_u32 s{sMask}, 0\ns_cbranch_scc1 L_exact_ns{b}")
    for kt in range(4):
        for qt in range(2):
            for r in range(4): a(f"v_sub_f32 v{rS(b^1,kt,qt)+r}, v{rS(b^1,kt,qt)+r}, v{D+qt}")
    for qt in range(2):
        for r in range(4): a(f"v_sub_f32 v{vCm+4*qt+r}, v{vCm+4*qt+r}, v{D+qt}")
    a.label(f"L_exact_ns{b}")
    a(f"s_mov_b32 s{sFloor}, 0\ns_nop 1\ns_setpc_b64 s[{sRet}:{sRet+1}]")
def first_block(a, extra):
    D, U = vT + 4, vT
    a("s_nop 3")
    row_max(a, 0, D, U)
    for qt in range(2):
        for r in range(4): a(f"v_sub_f32 v{vCm+4*qt+r}, 0, v{D+qt}")
    a(f"s_mov_b32 s{sFloor}, 0")
    S = Sched(lookahead=14, per_slot=1, wait_group=4)
    add_qk(S, 1, [0])
    for i, (s0, s1, dp, qt, first) in enumerate(sm_pairs(0)):
        t0 = vT + (i & 1)*2; acc = rL(1, qt)
        S.add_fill(2*i, f"v_sub_f32 v{t0}, v{s0}, v{D+qt}\nv_sub_f32 v{t0+1}, v{s1}, v{D+qt}\nv_exp_f32 v{t0}, v{t0}\nv_exp_f32 v{t0+1}, v{t0+1}")
        S.add_fill(2*i+1, (f"v_add_f32 v{acc}, v{t0}, v{t0+1}" if first else f"v_add_f32 v{acc}, v{acc}, v{t0}\nv_add_f32 v{acc}, v{acc}, v{t0+1}") +
                   f"\nv_cvt_pk_bf16_f32 v{dp}, v{t0}, v{t0+1}")
    for i, t in enumerate(extra): S.add_fill(5 + 7*i, t)
    for l in S.build()[0]: a(l)
def tail_block(a, b, odd):
    S = Sched(lookahead=14, per_slot=1, wait_group=4)
    add_pv(S, b ^ 1, [0])
    k0 = 2 if odd else 0
    items = []
    for (kt, qt) in ((k0, 0), (k0+1, 1)):
        for r in range(4):
            x = rS(b, kt, qt) + r
            items.append(f"v_cndmask_b32 v{x}, v{vNEG}, v{x}, s[{sMk+2*r}:{sMk+2*r+1}]")
    started = [False, False]; i = 0
    for qt in range(2):
        for kt in range(4):
            for j in range(2):
                dp = rP(b, kt >> 1, qt) + 2*(kt & 1) + j
                if kt > k0 + qt:
                    if kt <= k0 + 1: items.append(f"v_mov_b32 v{dp}, 0")
                    continue
                s0 = rS(b, kt, qt) + 2*j; t0 = vT + (i & 1)*2; i += 1
                items.append(f"v_exp_f32 v{t0}, v{s0}\nv_exp_f32 v{t0+1}, v{s0+1}")
                items.append((f"v_add_f32 v{vTS+qt}, v{vTS+qt}, v{t0}\nv_add_f32 v{vTS+qt}, v{vTS+qt}, v{t0+1}" if started[qt] else f"v_add_f32 v{vTS+qt}, v{t0}, v{t0+1}")
                             + f"\nv_cvt_pk_bf16_f32 v{dp}, v{t0}, v{t0+1}")
                started[qt] = True
    items.append(f"v_add_f32 v{vT+4}, v{vTS}, v{vTS+1}\nv_add_f32 v{rL(b^1,0)}, v{rL(b,0)}, v{vTS}")
    items.append(f"v_cmp_nge_f32 vcc, s{sThr}, v{vT+4}\nv_add_f32 v{rL(b^1,1)}, v{rL(b,1)}, v{vTS+1}")
    n = len(items)
    for i2, t in enumerate(items):
        if n <= 30: S.add_fill(i2, t)
        else: S.add_fill(min(31, i2 * 31 // n), ("s_nop 0\n" if t.startswith("v_add") else "") + t)
    for l in S.build()[0]: a(l)
def blk(a, fn, *args, fill=()):
    S = Sched(lookahead=14, per_slot=1, wait_group=4)
    fn(S, *args)
    for i, t in enumerate(fill): S.add_fill(i * 32 // len(fill), t)
    for l in S.build()[0]: a(l)

def attention(a, events, ev_mask, idle_post):
    a(f"v_xor_b32 v{vK}, 0x8000, v{vL16}")
    a(f"s_mov_b32 s{sVr}, {48*1024}\ns_mov_b32 s{sVw}, {64*1024}")
    a(f"s_mov_b32 s{sThr}, 0x53800000\ns_mov_b32 s{sFloor}, 0xff7fffff\ns_mov_b32 s{sMask}, 0\ns_mov_b32 s{sIt}, -1\ns_mov_b32 s79, 0")
    a(ev_mask)
    a(f"v_lshlrev_b32 v251, 7, v{vLANE}\ns_bfe_u32 s64, s2, 0x40003\ns_lshl_b32 s64, s64, 3\ns_and_b32 s65, s2, 7\ns_add_u32 s64, s64, s65")
    a(f"s_lshl_b32 s76, s64, 2\ns_add_u32 s76, s76, s{sRQ}\ns_lshl_b32 s76, s76, 13\ns_lshl_b32 s7, s64, 1\ns_add_u32 s7, s7, s{sRQ}\ns_lshl_b32 s7, s7, 13")
    a(f"s_cmp_lt_u32 s{sRQ}, 2\ns_cselect_b32 s7, s7, {OOB}\ns_cmp_ge_u32 s{sP}, 4\ns_cselect_b32 s7, s7, {OOB}\ns_cselect_b32 s76, s76, {OOB}")
    a("s_waitcnt vmcnt(12) lgkmcnt(0)\ns_barrier")
    stamp(a, 7)
    b = Asm()
    b(f"v_mov_b32 v{vNEG}, 0xf149f2ca")
    b(f"s_and_b32 s{sT}, s{sRQ}, 1\ns_lshl_b32 s{sT}, s{sT}, 5")
    b(f"v_and_b32 v{vT+1}, 15, v{vLANE}\nv_lshrrev_b32 v{vT}, 4, v{vLANE}\nv_lshlrev_b32 v{vT}, 2, v{vT}\nv_sub_u32 v{vT+1}, v{vT+1}, v{vT}\nv_add_u32 v{vDm}, s{sT}, v{vT+1}")
    for r in range(4): b(f"v_cmp_ge_i32 s[{sMk+2*r}:{sMk+2*r+1}], v{vT+1}, {r}")
    for r in list(range(vO, vO+64)) + [rL(0,0), rL(0,1)]: b(f"v_mov_b32 v{r}, 0")
    blk(a, add_qk, 0, [0], "", "0", fill=[l.strip() for l in b.lines])
    a(sync_odd(True))
    a(f"s_mov_b32 s{sIt}, 0")
    a(f"s_cmp_eq_u32 s{sN}, 1\ns_cbranch_scc1 L_att_n1")
    first_block(a, h_stores())
    a("s_branch L_att_i0")
    a.label("L_att_n1")
    for t in h_stores(): a(t)
    a(f"s_mov_b32 s{sMask}, 1\ns_call_b64 s[{sRet}:{sRet+1}], L_exact0")
    a.label("L_att_i0")
    a(f"s_mov_b32 s{sIt}, 1")
    a(f"s_cmp_eq_u32 s{sN}, 1\ns_cbranch_scc1 L_att_last0")
    a(f"s_cmp_eq_u32 s{sN}, 2\ns_cbranch_scc1 L_att_tail1")
    slow = []
    def steady_loop(g):
        S = Sched(lookahead=14, per_slot=1, wait_group=8)
        cnt = [0]
        its = list(range(1, 8))
        for it in its:
            base = len(S.slots); b = it & 1
            add_qk(S, it+1, cnt, " ;@k")
            add_pv(S, it-1, cnt)
            S.add_pre(base + 32, "; @mid")
            if b == 1:
                if g == 0: S.add_pre(base + 32, "s_barrier")
                else:
                    S.add_pre(base + 32, "s_waitcnt vmcnt(0)\ns_barrier")
                    for i, o in enumerate(dma_block()): S.add_fill(base + 32 + (i*ASP)//10, o)
            pos = [int(round(i * 3.75)) for i in range(17)]
            for i, (s0, s1, dp, qt, first) in enumerate(sm_pairs(b)):
                t0 = vT + (i & 1)*2; p = base + pos[i]; w = pos[i+1] - pos[i]
                S.add_fill(p, f"v_exp_f32 v{t0}, v{s0}")
                S.add_fill(p + 1, f"v_exp_f32 v{t0+1}, v{s1}")
                if first: S.add_fill(p + 2, f"v_add_f32 v{vTS+qt}, v{t0}, v{t0+1}")
                else: S.add_fill(p + 2, f"v_add_f32 v{vTS+qt}, v{vTS+qt}, v{t0}\nv_add_f32 v{vTS+qt}, v{vTS+qt}, v{t0+1}")
                S.add_fill(p + w - 1, f"v_cvt_pk_bf16_f32 v{dp}, v{t0}, v{t0+1}")
            S.add_fill(base + 60, f"v_add_f32 v{vT+4}, v{vTS}, v{vTS+1}\nv_add_f32 v{rL(b^1,0)}, v{rL(b,0)}, v{vTS}")
            S.add_fill(base + 61, f"v_cmp_nge_f32 vcc, s{sThr}, v{vT+4}\nv_add_f32 v{rL(b^1,1)}, v{rL(b,1)}, v{vTS+1}")
            S.add_fill(base + 62, f"s_add_u32 s{sIt}, s{sIt}, 1\ns_cmp_gt_u32 s{sIt}, s{78 if b == 0 else 77}")
        segs = S.build(cuts=[64*i for i in range(len(its))])
        body1, body0 = segs[3], segs[4]
        assert body1 == segs[5] and body0 == segs[6], "attention not periodic"
        si = [i for i, l in enumerate(body0) if "@mid" in l][0]
        for l in body0[si:]:
            if ";@k" in l: a(l)
        a.raw(".p2align 6")
        a.label(f"L_att_loop{g}")
        for body, b in ((body1, 1), (body0, 0)):
            for l in body: a(l)
            a(f"s_cbranch_vccnz L_att_sl{g}{b}")
            a.label(f"L_att_bk{g}{b}")
            a("s_cbranch_scc1 L_att_tail0" if b == 1 else f"s_cbranch_scc0 L_att_loop{g}")
            slow.append(f"L_att_sl{g}{b}:\ns_call_b64 s[{sRet}:{sRet+1}], L_exact{b}\ns_cmp_gt_u32 s{sIt}, s{78 if b == 0 else 77}\ns_branch L_att_bk{g}{b}")
        if g == 0:
            a(f"s_cmp_gt_u32 s{sIt}, s77\ns_cbranch_scc1 L_att_tail1")
            a(events)
            a("s_branch L_att_loop0")
        else:
            a(f"s_cmp_gt_u32 s{sIt}, s77\ns_cbranch_scc1 L_att_tail1")
            a("s_mov_b32 s78, s77\ns_mov_b32 s79, 1")
            a(with_regs(publish(3, 4), {248: 232, 251: 233}))
            a("s_branch L_att_loop1")
    a(f"s_cmp_lg_u32 s{sG}, 0\ns_cbranch_scc1 L_att_g1")
    steady_loop(0)
    a.label("L_att_g1")
    a("s_setprio 1")
    steady_loop(1)
    for t in slow: a(t)
    for b in (1, 0):
        a.label(f"L_att_tail{b}")
        a("s_waitcnt lgkmcnt(0)")
        if b == 1: a(sync_odd())
        a(f"s_mov_b32 s{sMask}, 1\ns_bitcmp1_b32 s{sRQ}, 0\ns_cbranch_scc1 L_att_to{b}")
        tail_block(a, b, False)
        a(f"s_branch L_att_tc{b}")
        a.label(f"L_att_to{b}")
        tail_block(a, b, True)
        a.label(f"L_att_tc{b}")
        a(f"s_cbranch_vccz L_att_tk{b}\ns_call_b64 s[{sRet}:{sRet+1}], L_exact{b}")
        a.label(f"L_att_tk{b}")
        a(f"s_add_u32 s{sIt}, s{sIt}, 1")
        a.label(f"L_att_last{b}")
        if b == 0: a(sync_odd())
        a(f"s_bitcmp1_b32 s{sRQ}, 0\ns_cbranch_scc1 L_att_lo{b}")
        blk(a, add_pv, b, [0], 1)
        a(f"s_branch L_att_le{b}")
        a.label(f"L_att_lo{b}")
        blk(a, add_pv, b, [0], 2)
        a.label(f"L_att_le{b}")
        if b == 0: a(f"v_mov_b32 v{rL(0,0)}, v{rL(1,0)}\nv_mov_b32 v{rL(0,1)}, v{rL(1,1)}\ns_add_u32 s{sIt}, s{sIt}, 1")
        a("s_branch L_att_epi")
    exact(a, 0); exact(a, 1)
    a.label("L_att_epi")
    stamp(a, 8)
    a("s_setprio 0")
    U = vT
    for sw in ("v_permlane16_swap_b32", "v_permlane32_swap_b32"):
        a(f"v_mov_b32 v{U}, v{vL}\nv_mov_b32 v{U+1}, v{vL+1}\ns_nop 1")
        a(f"{sw} v{vL}, v{U}\n{sw} v{vL+1}, v{U+1}")
        a(f"v_add_f32 v{vL}, v{vL}, v{U}\nv_add_f32 v{vL+1}, v{vL+1}, v{U+1}")
    a(f"v_rcp_f32 v{vL}, v{vL}\nv_rcp_f32 v{vL+1}, v{vL+1}")
    a(f"s_mul_i32 s100, s{sRt0}, {AFS}\ns_lshl_b32 s{sT}, s{sH}, 12\ns_add_u32 s100, s100, s{sT}\ns_add_u32 s100, s100, {AF}\ns_add_u32 s101, s100, {AFS}")
    n = 0
    for qt in range(2):
        sel = " op_sel_hi:[1,0]" if qt == 0 else " op_sel:[0,1] op_sel_hi:[1,1]"
        for s in range(4):
            tq = vF + (n % 4)*4; n += 1
            for k, d in enumerate((2*s, 2*s+1)):
                r = rO(d, qt)
                for j in (0, 2): a(pk("mul", r+j, f"v[{r+j}:{r+j+1}]", f"v[{vL}:{vL+1}]", sel))
            for k, d in enumerate((2*s, 2*s+1)):
                r = rO(d, qt)
                a(f"v_cvt_pk_bf16_f32 v{tq+2*k}, v{r}, v{r+1}\nv_cvt_pk_bf16_f32 v{tq+2*k+1}, v{r+2}, v{r+3}")
            a(f"buffer_store_dwordx4 v[{tq}:{tq+3}], v{vL16}, s[{SWS}:{SWS+3}], s{100+qt} offen offset:{s*1024}{SC}")
    stamp(a, 9)
    a(f"s_add_u32 s{sIt}, s{sIt}, 1")
    a.label("L_att_idle")
    a(f"s_cmp_ge_u32 s{sIt}, s{sNW}\ns_cbranch_scc1 L_att_done")
    a(sync_odd())
    a(idle_post)
    a(f"s_add_u32 s{sIt}, s{sIt}, 2\ns_branch L_att_idle")
    a.label("L_att_done")

def c_ids(sig, rb, cb):
    return (f"s_and_b32 s{sig}, s2, 3\ns_bfe_u32 s{rb}, s2, 0x10002\ns_lshl_b32 s{rb}, s{rb}, 3\ns_bfe_u32 s{sT}, s2, 0x30003\ns_add_u32 s{rb}, s{rb}, s{sT}\ns_lshr_b32 s{cb}, s2, 6")
def events():
    b = Asm()
    b(f"s_cmp_lg_u32 s{sIt}, 9\ns_cbranch_scc1 L_ev0\ns_waitcnt vmcnt(0)\ns_mov_b32 s78, s77\ns_branch L_ev9")
    b.label("L_ev0")
    b("s_mov_b32 s78, 8")
    b(c_ids(64, 65, 66))
    b(f"s_lshl_b32 s65, s65, 2\ns_add_u32 s65, s65, s66\ns_lshl_b32 s65, s65, 17\ns_add_u32 s65, s65, {EX}")
    b(f"s_lshl_b32 s66, s64, 13\ns_add_u32 s65, s65, s66\ns_lshl_b32 s66, s{sW}, 11\ns_add_u32 s65, s65, s66")
    for r in range(248, 252): b(f"v_mov_b32 v{r}, -1")
    for i in range(1, 4):
        b(f"s_add_u32 s{sT}, s64, {i}\ns_and_b32 s{sT}, s{sT}, 3\ns_lshl_b32 s{sT}, s{sT}, 15\ns_add_u32 s{sT}, s{sT}, s65")
        for j in range(2): b(f"buffer_store_dwordx4 v[248:251], v{vL16}, s[{SWS}:{SWS+3}], s{sT} offen offset:{j*1024}{SC}")
    b.label("L_ev9")
    return b.text()
def ev_mask(): return f"s_sub_u32 s77, s{sN}, 2\ns_min_u32 s78, s77, 10\ns_cmp_eq_u32 s{sG}, 0\ns_cselect_b32 s78, 4, s78"
def idle_post():
    return (f"s_cmp_lg_u32 s79, 0\ns_cbranch_scc1 L_ip9\ns_cmp_lt_u32 s{sIt}, 9\ns_cbranch_scc1 L_ip9\ns_mov_b32 s79, 1\n" + with_regs(publish(3, 4), {248: 0, 251: 1}) + "\nL_ip9:")

def phase_c(a):
    sSig, sRb, sCb, sAs, sWs, sLw, sIdx = 56, 57, 58, 59, 60, 62, 63
    ACC, FA, NA, FW, NW = 0, 32, 8, 64, 4
    vA0, vWb, vAa, vWa, vDq = 224, 225, 228, 229, 232
    t = 236
    a(c_ids(sSig, sRb, sCb))
    a(f"s_sub_u32 s100, 15, s{sRb}\ns_min_u32 s100, s100, s{sRb}")
    a(f"v_and_b32 v{t}, 31, v{vLANE}\nv_lshl_add_u32 v{vPA}, v{t}, 3, s100")
    a(f"s_and_b32 s101, s2, 4\ns_lshl_b32 s101, s101, 5\ns_bfe_u32 s{sT}, s2, 0x20003\ns_lshl_b32 s{sT}, s{sT}, 3\ns_add_u32 s101, s101, s{sT}\ns_lshr_b32 s{sT}, s2, 5\ns_add_u32 s101, s101, s{sT}")
    a(f"v_and_b32 v{t}, 3, v{vLANE}\nv_lshl_add_u32 v{t}, v{t}, 5, s101\nv_cmp_gt_u32 vcc, 32, v{vLANE}\ns_nop 1\nv_cndmask_b32 v{vPA}, v{t}, v{vPA}, vcc\n" + flag_addr())
    w_dma_voff(a, vDq, 1024, t)
    a(f"s_and_b32 s{sT}, s{sW}, 1\ns_lshl_b32 s{sT}, s{sT}, 13\nv_add_u32 v{vA0}, s{sT}, v{vL16}")
    a(f"v_lshrrev_b32 v{t}, 2, v{vLANE}\nv_lshlrev_b32 v{t+1}, 8, v{t}\nv_and_b32 v{t+2}, 3, v{vLANE}\nv_lshl_add_u32 v{t+1}, v{t+2}, 3, v{t+1}\nv_add_u32 v{t+1}, 16384, v{t+1}")
    a(f"v_and_b32 v{t}, 7, v{t}\ns_and_b32 s{sT}, s{sW}, 6")
    a(f"v_xor_b32 v{t+2}, s{sT}, v{t}\nv_lshl_add_u32 v{vWb}, v{t+2}, 5, v{t+1}\nv_xor_b32 v{vWb+1}, 32, v{vWb}")
    a(f"s_lshl_b32 s97, s{sRb}, 3\ns_add_u32 s97, s97, s{sW}\ns_mul_i32 s97, s97, {AFS}\ns_add_u32 s97, s97, {AF}")
    a(f"s_lshl_b32 s98, s{sW}, 13\ns_lshl_b32 s{sT}, s{sCb}, 8\ns_add_u32 s98, s98, s{sT}")
    a(f"s_lshl_b32 s{sLw}, s{sW}, 11\ns_mul_i32 s99, s{sSig}, 11")
    NST = 22
    OWN = 3 if CB2 else 4
    def dma(st):
        sl = (st % 5) * 32768
        o = []
        if st < 6:
            pre = (f"s_add_u32 s{sIdx}, s99, {2*st}\ns_lshl_b32 s{sAs}, s{sIdx}, 10\ns_add_u32 s{sAs}, s{sAs}, s97\ns_add_u32 s{sAs}, s{sAs}, {128*1024}\n"
                   f"s_lshl_b32 s{sWs}, s{sIdx}, 15\ns_add_u32 s{sWs}, s{sWs}, s98\n")
            srdw = SW2
        else:
            pre = (f"s_lshl_b32 s{sIdx}, s{sCb}, 3\ns_add_u32 s{sIdx}, s{sIdx}, {2*(st-6)}\ns_and_b32 s{sIdx}, s{sIdx}, 31\ns_lshl_b32 s{sAs}, s{sSig}, 5\ns_add_u32 s{sIdx}, s{sIdx}, s{sAs}\n"
                   f"s_lshl_b32 s{sAs}, s{sIdx}, 10\ns_add_u32 s{sAs}, s{sAs}, s97\ns_lshl_b32 s{sWs}, s{sIdx}, 15\ns_add_u32 s{sWs}, s{sWs}, s98\n")
            srdw = SWO
        o.append(pre + f"s_add_u32 m0, s{sLw}, {sl + 16384}\ns_add_u32 s{sT}, s{sWs}, {4096 - 1024}\n"
                 f"buffer_load_dwordx4 v{vDq}, s[{srdw}:{srdw+3}], s{sWs} offen lds")
        o.append(f"buffer_load_dwordx4 v{vDq+1}, s[{srdw}:{srdw+3}], s{sT} offen offset:1024 lds")
        if st == 5:
            o.append(f"s_cmp_lt_u32 s{sSig}, 3\ns_cselect_b32 s{sAs}, s{sAs}, {OOB}\ns_add_u32 m0, s{sLw}, {sl}\ns_mov_b32 s{sT}, {OOB}\n"
                     f"buffer_load_dwordx4 v{vL16}, s[{SWS}:{SWS+3}], s{sAs} offen{SC} lds")
            o.append(f"buffer_load_dwordx4 v{vL16}, s[{SWS}:{SWS+3}], s{sT} offen offset:1024{SC} lds")
        else:
            o.append(f"s_add_u32 m0, s{sLw}, {sl}\ns_nop 0\nbuffer_load_dwordx4 v{vL16}, s[{SWS}:{SWS+3}], s{sAs} offen{SC} lds")
            o.append(f"buffer_load_dwordx4 v{vL16}, s[{SWS}:{SWS+3}], s{sAs} offen offset:1024{SC} lds")
        return o
    a(f"s_cmp_lt_u32 s{sW}, 4\ns_cbranch_scc1 L_c_g0")
    a(poll_issue() + "\ns_waitcnt vmcnt(0)\n" + poll_check(3))
    for st in range(2):
        for o in dma(st): a(o)
    a(f"s_sub_u32 s97, s97, {4*AFS}\ns_sub_u32 s98, s98, {4*8192}\ns_sub_u32 s{sLw}, s{sLw}, 8192")
    for st in range(2):
        for o in dma(st): a(o)
    a(f"s_add_u32 s97, s97, {4*AFS}\ns_add_u32 s98, s98, {4*8192}\ns_add_u32 s{sLw}, s{sLw}, 8192")
    a.label("L_c_g0")
    a("s_waitcnt vmcnt(0)\ns_barrier")
    a(publish(4))
    stamp(a, 10)
    for st in range(2, 5 if CB2 else 4):
        for o in dma(st): a(o)
    a(f"s_lshl_b32 s{sT}, s{sSig}, 6\ns_add_u32 s{sT}, s{sT}, s100\nv_and_b32 v{vPA}, 7, v{vLANE}\nv_lshl_add_u32 v{vPA}, v{vPA}, 3, s{sT}\n" + flag_addr())
    S = Sched(lookahead=10, per_slot=2, wait_group=CWG)
    na = nw = 0
    for st in range(NST):
        sl = (st % 5) * 32768
        S.add_sync(f"v_add_u32 v{vAa}, {sl}, v{vA0}\nv_add_u32 v{vWa}, {sl}, v{vWb}\nv_add_u32 v{vWa+1}, {sl}, v{vWb+1}", drain=False)
        base = len(S.slots)
        for ks in (range(2) if not CCH else []):
            wf = [FW + ((nw + i) % NW)*4 for i in range(2)]; nw += 2
            af = [FA + ((na + i) % NA)*4 for i in range(4)]; na += 4
            def ldw(ct):
                S.add_load(('W', st, ks, ct), [f"ds_read_b64_tr_b16 v[{wf[ct]}:{wf[ct]+1}], v{vWa+ct} offset:{ks*8192}",
                                               f"ds_read_b64_tr_b16 v[{wf[ct]+2}:{wf[ct]+3}], v{vWa+ct} offset:{ks*8192+4096}"], wf[ct])
            def lda(rt):
                S.add_load(('A', st, ks, rt), [f"ds_read_b128 v[{af[rt]}:{af[rt]+3}], v{vAa} offset:{(rt*2+ks)*1024}"], af[rt])
            ldw(0); lda(0); ldw(1); lda(1); lda(2); lda(3)
            for rt in range(4):
                for ct in range(2):
                    S.add_slot(mfma(ACC + (rt*2+ct)*4, wf[ct], af[rt], "0" if st == 0 and ks == 0 else None), [('W', st, ks, ct), ('A', st, ks, rt)])
        if CCH:
            wf = {}; af = {}
            def ldw2(ks, ct):
                nonlocal nw
                f = 64 + (nw % 8)*4; nw += 1; wf[ks, ct] = f
                S.add_load(('W', st, ks, ct), [f"ds_read_b64_tr_b16 v[{f}:{f+1}], v{vWa+ct} offset:{ks*8192}",
                                               f"ds_read_b64_tr_b16 v[{f+2}:{f+3}], v{vWa+ct} offset:{ks*8192+4096}"], f)
            def lda2(ks, rt):
                nonlocal na
                f = FA + (na % NA)*4; na += 1; af[ks, rt] = f
                S.add_load(('A', st, ks, rt), [f"ds_read_b128 v[{f}:{f+3}], v{vAa} offset:{(rt*2+ks)*1024}"], f)
            ldw2(0, 0); lda2(0, 0); ldw2(1, 0); lda2(1, 0); ldw2(0, 1); ldw2(1, 1)
            for rt in range(1, 4): lda2(0, rt); lda2(1, rt)
            for rt in range(4):
                for ct in range(2):
                    for ks in range(2):
                        S.add_slot(mfma(ACC + (rt*2+ct)*4, wf[ks, ct], af[ks, rt], "0" if st == 0 and ks == 0 else None), [('W', st, ks, ct), ('A', st, ks, rt)])
        if CB2:
            if st % 2 == 1 and st + 1 < NST:
                pl = poll_one(4) + "\n" if st == 3 else ""
                S.add_pre(base + 2, pl + "s_waitcnt vmcnt(0)\ns_barrier\n")
                ops = []
                for d in (3, 4):
                    if st + d < NST and st + d >= 5: ops += dma(st + d)
                for i, o in enumerate(ops): S.add_fill(base + 2 + 2*i, o)
        elif st + 1 < NST:
            left = min(NST - 1, st + 3) - (st + 1)
            pl = poll_one(4) + "\n" if st == 2 else ""
            S.add_pre(base + 2, pl + f"s_waitcnt vmcnt({4*left})\ns_barrier\n" + (stamp_txt(16 + st//2, 5) if st % 2 == 0 else ""))
            if st + 4 < NST:
                for i, o in enumerate(dma(st + 4)): S.add_fill(base + 2 + CSP*i, o)
        if st == NST - 2:
            x = Asm()
            x(f"v_and_b32 v{t}, 15, v{vLANE}\nv_lshrrev_b32 v{t+1}, 4, v{vLANE}\nv_lshlrev_b32 v{t+2}, 9, v{t+1}\nv_lshl_add_u32 v{t+2}, v{t}, 4, v{t+2}")
            x(f"v_lshlrev_b32 v{t+3}, 10, v{t}\nv_lshl_add_u32 v{t+3}, v{t+1}, 4, v{t+3}")
            x(f"v_and_b32 v{t+4}, 1, v{t+1}\nv_lshlrev_b32 v{t+4}, 9, v{t+4}\nv_lshl_add_u32 v{t+4}, v{t}, 4, v{t+4}\nv_lshrrev_b32 v{t}, 1, v{t+1}\nv_lshl_add_u32 v{t+4}, v{t}, 3, v{t+4}")
            x(f"v_lshlrev_b32 v{t+1}, 4, v{t+1}")
            x(f"s_lshl_b32 s98, s{sRb}, 7\ns_lshl_b32 s{sT}, s{sW}, 4\ns_add_u32 s98, s98, s{sT}\ns_lshl_b32 s98, s98, 10\ns_lshl_b32 s99, s{sCb}, 8\ns_lshl_b32 s{sT}, s{sSig}, 6\ns_add_u32 s99, s99, s{sT}\ns_add_u32 s98, s98, s99")
            x(f"buffer_load_dwordx4 v[100:103], v{t+3}, s[{SX}:{SX+3}], s98 offen")
            x(f"buffer_load_dwordx4 v[104:107], v{t+1}, s[{SB2}:{SB2+3}], s99 offen")
            x(f"v_and_b32 v{vPA}, 3, v{vLANE}\nv_max_u32 v{vPA}, 1, v{vPA}\nv_add_u32 v{vPA}, s{sSig}, v{vPA}\nv_and_b32 v{vPA}, 3, v{vPA}\nv_lshl_add_u32 v{vPA}, v{vPA}, 5, s101\n" + flag_addr())
            x(f"s_lshl_b32 s97, s{sRb}, 2\ns_add_u32 s97, s97, s{sCb}\ns_lshl_b32 s97, s97, 17\ns_add_u32 s97, s97, {EX}")
            x(f"s_lshl_b32 s{sT}, s{sSig}, 15\ns_add_u32 s99, s97, s{sT}\ns_lshl_b32 s{sT}, s{sW}, 12\ns_add_u32 s99, s99, s{sT}")
            ls = [l.strip() for l in x.lines]
            for i, l in enumerate(ls): S.add_fill(base + 4 + i * 24 // len(ls), l)
    for l in S.build()[0]: a(l)
    stamp(a, 12)
    a(publish(5))
    a(f"s_lshr_b32 s{sT}, s{sW}, 1\ns_cmp_eq_u32 s{sT}, s{sSig}\ns_cbranch_scc1 L_c_own")
    a("s_nop 3")
    for rt in range(4):
        r = ACC + rt*8; q = 128 + rt*4
        for k in range(4): a(f"v_cvt_pk_bf16_f32 v{q+k}, v{r+2*k}, v{r+2*k+1}")
        a(f"buffer_store_dwordx4 v[{q}:{q+3}], v{vL16}, s[{SWS}:{SWS+3}], s99 offen offset:{rt*1024}{SC}")
    a("s_branch L_c_st")
    a.label("L_c_own")
    a(f"v_add_u32 v{t}, {OWN*32768}, v{vA0}\ns_nop 3")
    for q in range(8): a(f"ds_write_b128 v{t}, v[{ACC+4*q}:{ACC+4*q+3}] offset:{q*1024}")
    a.label("L_c_st")
    a(f"s_lshl_b32 s99, s{sSig}, 13\ns_lshl_b32 s{sT}, s{sW}, 10\ns_add_u32 s99, s99, s{sT}\ns_add_u32 s97, s97, s99")
    a(f"s_lshl_b32 s{sT}, s{sW}, 11\ns_add_u32 s{sT}, s{sT}, {OWN*32768}\nv_add_u32 v{t}, s{sT}, v{t+2}")
    a(f"s_lshl_b32 s99, s{sSig}, 1\ns_add_u32 s99, s99, 1")
    a(poll_one(5, "s99") + "\ns_waitcnt lgkmcnt(0)\ns_barrier")
    stamp(a, 29, 5)
    a(f"ds_read_b128 v[32:35], v{t}\nds_read_b128 v[36:39], v{t} offset:256")
    a("s_mov_b32 s101, 0")
    a.label("L_c_rd")
    for i in range(1, 4):
        a(f"s_add_u32 s{sT}, s{sSig}, {i}\ns_and_b32 s{sT}, s{sT}, 3\ns_lshl_b32 s{sT}, s{sT}, 15\ns_add_u32 s{sT}, s{sT}, s97")
        a(f"buffer_load_dwordx2 v[{40+4*i}:{41+4*i}], v{t+4}, s[{SWS}:{SWS+3}], s{sT} offen{SC}")
        a(f"buffer_load_dwordx2 v[{42+4*i}:{43+4*i}], v{t+4}, s[{SWS}:{SWS+3}], s{sT} offen offset:256{SC}")
    a("s_waitcnt vmcnt(0)")
    a("v_max_u32 v64, v44, v45")
    for i in range(46, 56, 2): a(f"v_max3_u32 v64, v64, v{i}, v{i+1}")
    a("v_cmp_eq_u32 vcc, -1, v64\ns_cbranch_vccz L_c_ok")
    a("s_add_u32 s101, s101, 1\ns_cmp_gt_u32 s101, 0x20000\ns_cbranch_scc1 L_c_ok\ns_sleep 4\ns_branch L_c_rd")
    a.label("L_c_ok")
    unpack8(a, 100, 108); unpack8(a, 104, 116)
    for i in range(0, 8, 2): a(pk("add", 108+i, f"v[{108+i}:{109+i}]", f"v[{116+i}:{117+i}]"))
    a("s_waitcnt lgkmcnt(0)")
    for i in range(0, 8, 2): a(pk("add", 108+i, f"v[{108+i}:{109+i}]", f"v[{32+i}:{33+i}]"))
    for k in range(1, 4):
        unpack8(a, 40+4*k, 116)
        for i in range(0, 8, 2): a(pk("add", 108+i, f"v[{108+i}:{109+i}]", f"v[{116+i}:{117+i}]"))
    for i in range(4): a(f"v_cvt_pk_bf16_f32 v{100+i}, v{108+2*i}, v{109+2*i}")
    a(f"buffer_store_dwordx4 v[100:103], v{t+3}, s[{SOUT}:{SOUT+3}], s98 offen")
    if PROF: a("s_waitcnt vmcnt(0)")
    stamp(a, 13)
    if os.environ.get("DBGOUT"):
        wg = int(os.environ["DBGOUT"])
        a(f"s_cmp_lg_u32 s2, {wg}\ns_cbranch_scc1 L_end\ns_cmp_lg_u32 s{sW}, 0\ns_cbranch_scc1 L_end")
        a(f"s_waitcnt vmcnt(0)\nv_lshlrev_b32 v1, 3, v{vLANE}\ns_mov_b32 s56, {STAMP + wg*8*256}")
        a(f"buffer_load_dword v2, v1, s[{SWS}:{SWS+3}], s56 offen sc1\ns_waitcnt vmcnt(0)")
        a("v_readfirstlane_b32 s57, v2\ns_nop 3\nv_subrev_u32 v2, s57, v2")
        a(f"v_lshlrev_b32 v1, 2, v{vLANE}\nv_cmp_gt_u32 vcc, 16, v{vLANE}\ns_and_saveexec_b64 s[58:59], vcc")
        a(f"buffer_store_dword v2, v1, s[{SDBG}:{SDBG+3}], 0 offen")

def build():
    head = open("cdna_kernels/" + NAME + ".s.ref").read().split("; Override launch")[0]
    name = NAME + "_kernel"
    out = head + "; @launch grid=(256,1,1) block=(512,1,1) lds=163840\n"
    out += '.amdgcn_target "amdgcn-amd-amdhsa--gfx950"\n.text\n'
    a = Asm()
    a.raw(f".globl {name}\n.p2align 8\n.type {name},@function\n{name}:")
    b = Asm(); p2_merged(b)
    phase1(a)
    a.lines += b.lines
    stamp(a, 6)
    attention(a, events(), ev_mask(), idle_post())
    phase_c(a)
    a.label("L_end")
    a("s_endpgm")
    t = a.text()
    for p in lint(t): print("LINT", p, file=sys.stderr)
    out += t + '.section .rodata,"a"\n.p2align 6\n'
    out += (f".amdhsa_kernel {name}\n  .amdhsa_next_free_vgpr 256\n  .amdhsa_next_free_sgpr 102\n  .amdhsa_accum_offset 256\n"
            "  .amdhsa_group_segment_fixed_size 0\n  .amdhsa_kernarg_size 112\n  .amdhsa_user_sgpr_count 2\n"
            "  .amdhsa_user_sgpr_kernarg_segment_ptr 1\n  .amdhsa_system_sgpr_workgroup_id_x 1\n.end_amdhsa_kernel\n")
    return out

if __name__ == "__main__":
    open(sys.argv[1], "w").write(build())
```
